```python
import torch

def _softmax(x, axis=-1):
    return torch.softmax(x, dim=axis)
def _gelu(x):
    return torch.nn.functional.gelu(x, approximate="tanh")
def _silu(x):
    return torch.nn.functional.silu(x)
def _sigmoid(x):
    return torch.sigmoid(x)
def _layernorm(x, axis=-1, eps=1e-5):
    m = x.mean(dim=axis, keepdim=True)
    v = x.var(dim=axis, keepdim=True, unbiased=False)
    return (x - m) / torch.sqrt(v + eps)
def _scatter_add(tgt, idx, src, axis=0):
    return tgt.clone().index_add_(axis, idx, src)
def _segment_sum(src, seg, n):
    out = torch.zeros((n,) + src.shape[1:], dtype=src.dtype)
    return out.index_add_(0, seg, src)
def _pad(x, pw):
    flat = tuple(v for pair in reversed(pw) for v in pair)
    return torch.nn.functional.pad(x, flat)

kernel_name = 'concat_heads__spectral_fnet__spectral_fnet__prompt'

def setup_inputs():

    _w = (lambda a: (lambda t: t.to(torch.bfloat16) if t.is_floating_point() else t)(torch.as_tensor(a)))
    def _A_setup():
        B, S, D = 1, 2048, 448
        ns = torch.arange(S)[:, None] * torch.arange(S)[None, :]
        nd = torch.arange(D)[:, None] * torch.arange(D)[None, :]
        Ws_re = torch.cos(-2.0 * torch.pi * ns / S).to(float)
        Ws_im = torch.sin(-2.0 * torch.pi * ns / S).to(float)
        Wd_re = torch.cos(-2.0 * torch.pi * nd / D).to(float)
        Wd_im = torch.sin(-2.0 * torch.pi * nd / D).to(float)
        return {
            "x": _w((lambda *s: torch.randn(*s, dtype=torch.bfloat16) * 0.05)(B, S, D)),
            "dft_seq_re": _w(Ws_re),
            "dft_seq_im": _w(Ws_im),
            "dft_hid_re": _w(Wd_re),
            "dft_hid_im": _w(Wd_im),
        }
    _A_in = _A_setup()

    def _B_setup():
        B, S, D = 1, 2048, 448
        ns = torch.arange(S)[:, None] * torch.arange(S)[None, :]
        nd = torch.arange(D)[:, None] * torch.arange(D)[None, :]
        Ws_re = torch.cos(-2.0 * torch.pi * ns / S).to(float)
        Ws_im = torch.sin(-2.0 * torch.pi * ns / S).to(float)
        Wd_re = torch.cos(-2.0 * torch.pi * nd / D).to(float)
        Wd_im = torch.sin(-2.0 * torch.pi * nd / D).to(float)
        return {
            "x": _w((lambda *s: torch.randn(*s, dtype=torch.bfloat16) * 0.05)(B, S, D)),
            "dft_seq_re": _w(Ws_re),
            "dft_seq_im": _w(Ws_im),
            "dft_hid_re": _w(Wd_re),
            "dft_hid_im": _w(Wd_im),
        }
    _B_in = _B_setup()

    return {
        "A_x": _A_in["x"],
        "A_dft_seq_re": _A_in["dft_seq_re"],
        "A_dft_seq_im": _A_in["dft_seq_im"],
        "A_dft_hid_re": _A_in["dft_hid_re"],
        "A_dft_hid_im": _A_in["dft_hid_im"],
        "B_x": _B_in["x"],
        "B_dft_seq_re": _B_in["dft_seq_re"],
        "B_dft_seq_im": _B_in["dft_seq_im"],
        "B_dft_hid_re": _B_in["dft_hid_re"],
        "B_dft_hid_im": _B_in["dft_hid_im"],
    }

def reference(A_x, A_dft_seq_re, A_dft_seq_im, A_dft_hid_re, A_dft_hid_im, B_x, B_dft_seq_re, B_dft_seq_im, B_dft_hid_re, B_dft_hid_im):
    def _A_ref(x, dft_seq_re, dft_seq_im, dft_hid_re, dft_hid_im):
        a = torch.einsum("bsd,ed->bse", x, dft_hid_re)
        b = torch.einsum("bsd,ed->bse", x, dft_hid_im)
        y = torch.einsum("ts,bse->bte", dft_seq_re, a) - torch.einsum("ts,bse->bte", dft_seq_im, b)
        return y

    def _B_ref(x, dft_seq_re, dft_seq_im, dft_hid_re, dft_hid_im):
        a = torch.einsum("bsd,ed->bse", x, dft_hid_re)
        b = torch.einsum("bsd,ed->bse", x, dft_hid_im)
        y = torch.einsum("ts,bse->bte", dft_seq_re, a) - torch.einsum("ts,bse->bte", dft_seq_im, b)
        return y

    a = _A_ref(A_x, A_dft_seq_re, A_dft_seq_im, A_dft_hid_re, A_dft_hid_im)
    b = _B_ref(B_x, B_dft_seq_re, B_dft_seq_im, B_dft_hid_re, B_dft_hid_im)
    return torch.concatenate([a, b], axis=-1)
```

```python
import re

def regs(op):
    op = op.strip()
    op = re.sub(r'^-|^abs\(|\)$', '', op)
    m = re.fullmatch(r'([vsa])\[(\d+):(\d+)\]', op)
    if m:
        return {(m.group(1), i) for i in range(int(m.group(2)), int(m.group(3)) + 1)}
    m = re.fullmatch(r'([vsa])(\d+)', op)
    if m:
        return {(m.group(1), int(m.group(2)))}
    if op in ('vcc', 'vcc_lo', 'vcc_hi'):
        return {('s', 'vcc')}
    if op == 'm0':
        return {('s', 'm0')}
    if op == 'exec':
        return {('s', 'exec')}
    return set()

TRANS = ('v_sin', 'v_cos', 'v_exp', 'v_log', 'v_rcp', 'v_rsq', 'v_sqrt')

class Ins:
    def __init__(self, text):
        self.text = text
        t = text.split(';')[0].strip()
        self.label = t.endswith(':')
        parts = t.split(None, 1)
        self.mn = parts[0] if parts else ''
        ops = []
        if len(parts) > 1:
            ops = [o.strip() for o in re.split(r',(?![^\[]*\])', parts[1])]
            if ops:
                ops[-1] = ops[-1].split()[0] if ops[-1].split() else ops[-1]
        self.ops = ops
        mn = self.mn
        self.w = set(); self.r = set(); self.rc = set(); self.rab = set()
        self.kind = 'other'
        R = lambda idx: set().union(*[regs(ops[i]) for i in idx if i < len(ops)]) if idx else set()
        n = len(ops)
        if mn.startswith('v_mfma'):
            self.kind = 'mfma'
            self.w = R([0]); self.rab = R([1, 2]); self.rc = R([3]); self.r = self.rab | self.rc
            self.passes = 4 if '16x16' in mn else 8
        elif mn.startswith('v_permlane'):
            self.kind = 'valu'; self.perm = True
            self.w = R([0, 1]); self.r = R([0, 1])
        elif mn.startswith('v_'):
            self.kind = 'valu'
            self.w = R([0]); self.r = R(range(1, n))
            if mn.startswith(('v_fmac', 'v_pk_fmac', 'v_writelane')):
                self.r |= self.w
            if mn.startswith('v_cndmask') and n == 3:
                self.r |= {('s', 'vcc')}
            if mn.startswith(('v_add_co', 'v_sub_co', 'v_addc_co')):
                self.w |= R([1])
        elif mn.startswith('ds_read') or mn.startswith('ds_bpermute') or mn.startswith('ds_permute') or mn.startswith('ds_swizzle'):
            self.kind = 'ds'; self.w = R([0]); self.r = R(range(1, n))
        elif mn.startswith('ds_'):
            self.kind = 'ds'; self.r = R(range(0, n))
        elif mn.startswith(('buffer_load', 'global_load')):
            self.kind = 'vmem'
            if ' lds' in t or '_lds_' in mn:
                self.r = R(range(0, n)) | {('s', 'm0')}; self.dma = True
            else:
                self.w = R([0]); self.r = R(range(1, n))
        elif mn.startswith(('buffer_store', 'global_store', 'buffer_atomic', 'global_atomic')):
            self.kind = 'vmem'; self.r = R(range(0, n)); self.store = True
            self.wide = mn.endswith('x4') or mn.endswith('x3')
            self.data = R([0]) if mn.startswith('buffer') else R([1])
        elif mn.startswith('s_'):
            self.kind = 'salu'
            if mn.startswith(('s_cmp', 's_waitcnt', 's_barrier', 's_nop', 's_cbranch', 's_branch', 's_endpgm', 's_setprio', 's_sleep', 's_bitcmp')):
                self.r = R(range(0, n))
            else:
                self.w = R([0]); self.r = R(range(1, n))
        self.states = 1
        if mn == 's_nop':
            self.states = int(ops[0]) + 1
        if self.label or not mn or mn.startswith('.'):
            self.states = 0
            self.kind = 'none'

def need(p, c):
    n = 0
    vw = {x for x in p.w if x[0] in 'va'}
    sw = {x for x in p.w if x[0] == 's'}
    if p.kind == 'valu':
        if c.kind == 'mfma' and vw & c.r: n = max(n, 2)
        if getattr(c, 'perm', False) and vw & c.r: n = max(n, 2)
        if c.mn.startswith(('v_readfirstlane', 'v_readlane')) and vw & c.r: n = max(n, 1)
        if c.kind == 'vmem' and sw & c.r: n = max(n, 5)
        if c.kind == 'valu' and sw & c.r: n = max(n, 2)
        if c.kind == 'salu' and sw & c.r: n = max(n, 1)
        if p.mn.startswith(TRANS) and c.kind in ('valu', 'mfma') and vw & c.r: n = max(n, 1)
        if 'dpp' in c.text or 'row_' in c.text or 'quad_perm' in c.text:
            if vw & c.r: n = max(n, 2)
    if p.kind == 'mfma':
        big = {4: 8, 8: 12}[p.passes]
        if c.kind == 'mfma':
            if p.w & c.rab: n = max(n, big)
            if p.w & c.rc and not (p.w == c.rc and p.passes == c.passes): n = max(n, {4: 6, 8: 10}[p.passes])
            if p.w & c.w and not (p.w == c.rc and p.w == c.w): n = max(n, big)
        elif c.kind in ('valu', 'ds', 'vmem'):
            if p.w & (c.r | c.w): n = max(n, big)
        if c.kind == 'valu' and p.rc & c.w: n = max(n, {4: 3, 8: 7}[p.passes])
    if p.kind == 'salu' and ('s', 'm0') in p.w and getattr(c, 'dma', False): n = max(n, 1)
    if getattr(p, 'store', False) and p.wide and c.kind in ('valu', 'ds', 'vmem', 'mfma') and p.data & c.w: n = max(n, 2)
    return n

class Asm:
    def __init__(self):
        self.ins = []
    def __call__(self, text):
        for line in text.strip().split('\n'):
            line = line.strip()
            if line:
                self.ins.append(Ins(line))
    def finish(self, verbose=False):
        out = []
        nn = 0
        for c in self.ins:
            if c.kind != 'none':
                dist = 0; pad = 0
                for p in reversed(out):
                    if dist >= 20: break
                    if p.kind != 'none':
                        pad = max(pad, need(p, c) - dist)
                    dist += p.states
                while pad > 0:
                    k = min(pad, 16)
                    out.append(Ins('s_nop %d' % (k - 1))); pad -= k; nn += k
                    if verbose: print('nop', k, 'before', c.text)
            out.append(c)
        self.nops = nn
        return '\n'.join((i.text if i.label else '    ' + i.text) for i in out) + '\n'
```

```python
import numpy as np

S, D = 2048, 448
L = np.arange(64)
LN = L & 15
LG = L >> 4

def bf16_bits(x):
    x = np.asarray(x, dtype=np.float32)
    u = x.view(np.uint32).astype(np.uint64)
    r = (u + 0x7FFF + ((u >> 16) & 1)) >> 16
    return r.astype(np.uint16)

def bf16_val(b):
    return (np.asarray(b, dtype=np.uint16).astype(np.uint32) << 16).view(np.float32)

def rb(x):
    return bf16_val(bf16_bits(x))

def cs(num, den):
    a = 2 * np.pi * (np.asarray(num) % den) / den
    c, s = np.cos(a), np.sin(a)
    c = np.where(np.abs(c) < 1e-12, 0.0, c)
    s = np.where(np.abs(s) < 1e-12, 0.0, s)
    return c, s

def mfma(A, B, C=None):
    Am = np.zeros((16, 32)); Bm = np.zeros((32, 16))
    for l in range(64):
        Am[l & 15, 8 * (l >> 4):8 * (l >> 4) + 8] = A[l]
        Bm[8 * (l >> 4):8 * (l >> 4) + 8, l & 15] = B[l]
    Dm = Am @ Bm
    Dl = np.zeros((64, 4))
    for l in range(64):
        Dl[l] = Dm[4 * (l >> 4):4 * (l >> 4) + 4, l & 15]
    if C is not None:
        Dl = Dl + C
    return Dl.astype(np.float32)

def k1_stage1(w, kap):
    T = np.zeros((64, 8))
    for l in range(64):
        m, g = l & 15, l >> 4
        if (m >> 2) != g:
            continue
        o = m & 3
        al, c = o >> 1, o & 1
        sig = 2 * w + al
        a = 8 * kap + np.arange(8)
        if sig == 0:
            T[l] = 1.0 if c == 0 else (-1.0) ** a
        else:
            co, si = cs(sig * a, 16)
            T[l] = co if c == 0 else -si
    return T

def k1_t1(sig, nu, blo):
    if nu == 0:
        return sig + 16 * blo
    return 16 * blo + (8 if sig == 0 else 16 - sig)

def k1_stage2(s2, sig, nu):
    T = np.zeros((64, 8))
    for l in range(64):
        n, g = l & 15, l >> 4
        blo, c2 = n >> 1, n & 1
        for i in range(8):
            bp, c = i >> 1, i & 1
            b = 4 * bp + g
            sarg = 8 * b + s2
            if sig >= 1:
                t = sig + 16 * blo if nu == 0 else sig - 16 * (blo + 1)
                co, si = cs(t * sarg, 2048)
                if c2 == 0:
                    v = co if c == 0 else si
                else:
                    v = -si if c == 0 else co
                    if t < 0:
                        v = -v
            else:
                if nu == 0:
                    if c == 1:
                        v = 0.0
                    elif blo == 0:
                        v = 1.0 if c2 == 0 else (-1.0) ** b
                    else:
                        co, si = cs(16 * blo * sarg, 2048)
                        v = co if c2 == 0 else -si
                else:
                    if c == 0:
                        v = 0.0
                    else:
                        co, si = cs((8 + 16 * blo) * sarg, 2048)
                        v = co if c2 == 0 else -si
            T[l, i] = v
    return T

def k2_stageA(var, w, kap):
    T = np.zeros((64, 8))
    for l in range(64):
        m, g = l & 15, l >> 4
        if (m >> 2) != g:
            continue
        o = m & 3
        tl, c1 = o >> 1, o & 1
        t2 = 2 * w + tl
        for i in range(8):
            s2, c = 4 * kap + (i >> 1), i & 1
            if var == 0:
                co, si = cs(t2 * s2, 8)
                if c1 == 0:
                    v = co if c == 0 else si
                else:
                    v = -si if c == 0 else co
            elif var == 1:
                co, si = cs(t2 * s2, 8)
                v = 0.0 if c == 1 else (co if c1 == 0 else -si)
            else:
                co, si = cs((2 * t2 + 1) * s2, 16)
                v = 0.0 if c == 0 else (co if c1 == 0 else -si)
            T[l, i] = v
    return T

def k2_B1(c2):
    T = np.zeros((64, 8))
    for l in range(64):
        eb, g = l & 15, l >> 4
        for i in range(8):
            sub, c1 = i >> 1, i & 1
            co, si = cs(eb * (4 * g + sub), 16)
            if c2 == 0:
                T[l, i] = co if c1 == 0 else si
            else:
                T[l, i] = -si if c1 == 0 else co
    return T

def k2_tw(ta):
    da = 16 * ta + 4 * LG[:, None] + np.arange(4)[None, :]
    co, si = cs(LN[:, None] * da, 448)
    return co.astype(np.float32), si.astype(np.float32)

def k2_B2(mu, ta):
    T = np.zeros((64, 8))
    for l in range(64):
        n, g = l & 15, l >> 4
        ea = 16 * mu + n
        for i in range(8):
            c2, ii = i >> 2, i & 3
            da = 16 * ta + 4 * g + ii
            if ea >= 28 or da >= 28:
                continue
            co, si = cs(ea * da, 28)
            T[l, i] = co if c2 == 0 else si
    return T

def swap16(X, Y):
    X = X.copy(); Y = Y.copy()
    for base in (0, 32):
        t = X[base + 16:base + 32].copy()
        X[base + 16:base + 32] = Y[base:base + 16]
        Y[base:base + 16] = t
    return X, Y

def tr_read(lds, addr):
    out = np.zeros((64, 4), dtype=np.float32)
    for l in range(64):
        gb = l & ~15
        col = l & 15
        for r in range(4):
            src = gb + 4 * r + (col >> 2)
            out[l, r] = lds[addr[src] // 2 + (col & 3)]
    return out

CH = 14336

def emu_k1(x, ws, branch, s2, j, tabs):
    lds = np.zeros(8192, dtype=np.float32)
    for w in range(4):
        for k in range(4):
            for l in range(64):
                g, al, q = l >> 4, (l >> 2) & 3, l & 3
                a = 4 * w + al
                b = 4 * k + g
                half = (q >> 1) ^ (g & 1)
                col = half * 16 + (q & 1) * 8
                s = 128 * a + 8 * b + s2
                dst = (w * 4096 + k * 1024 + l * 16) // 2
                lds[dst:dst + 8] = x[s, 32 * j + col:32 * j + col + 8]
    r_, cc = (L >> 2) & 3, L & 3
    for w in range(4):
        D1 = {}
        for bp in range(4):
            for nt in range(2):
                base = LG * 256 + r_ * 64 + (nt ^ (LG & 1)) * 32 + cc * 8
                acc = None
                for kap in range(2):
                    op = np.concatenate([tr_read(lds, base + (2 * kap + hh) * 4096 + bp * 1024) for hh in range(2)], axis=1)
                    acc = mfma(tabs['k1s1'][w][kap], op, acc)
                D1[bp, nt] = acc
        for al in range(2):
            sig = 2 * w + al
            for nu in range(2):
                pk = []
                for nt in range(2):
                    A = rb(np.concatenate([D1[p, nt][:, 2 * al:2 * al + 2] for p in range(4)], axis=1))
                    pk.append(rb(mfma(A, tabs['k1s2'][s2][sig][nu])))
                X0, Y0 = swap16(pk[0][:, 0:2], pk[1][:, 0:2])
                X1, Y1 = swap16(pk[0][:, 2:4], pk[1][:, 2:4])
                val = np.concatenate([X0, X1, Y0, Y1], axis=1)
                for l in range(64):
                    n, g = l & 15, l >> 4
                    blo, c2 = n >> 1, n & 1
                    piece = ((g & 1) << 1) | (g >> 1)
                    t1 = k1_t1(sig, nu, blo)
                    off = branch * 128 * CH + t1 * CH + (j // 7) * 7168 + s2 * 896 + (j % 7) * 128 + c2 * 64 + piece * 16
                    ws[off // 2:off // 2 + 8] = val[l]

def emu_k2(ws, out, branch, tau, tabs):
    var = 1 if tau == 0 else (2 if tau == 128 else 0)
    chunk = branch * 128 * CH + (tau & 127) * CH
    lds = np.zeros(7168 + 8, dtype=np.float32)
    for blk in range(16):
        for q in range(56):
            c, qq = q // 28, q % 28
            src = chunk + blk * 896 + (qq >> 2) * 128 + c * 64 + (qq & 3) * 16
            dst = blk * 896 + q * 16
            lds[dst // 2:dst // 2 + 8] = ws[src // 2:src // 2 + 8]
    r_, cc = (L >> 2) & 3, L & 3
    b0 = (LG >> 1) * 7168 + (LG & 1) * 224 + (r_ >> 1) * 896 + (r_ & 1) * 448
    base = [b0 + cc * 8, b0 + 32 + np.minimum(cc, 2) * 8]
    for w in range(4):
        DA = {}
        for ta in range(2):
            for sub in range(4):
                acc = None
                for kap in range(2):
                    op = np.concatenate([tr_read(lds, base[ta] + (4 * kap + 2 * hh) * 896 + sub * 56) for hh in range(2)], axis=1)
                    acc = mfma(tabs['k2A'][var][w][kap], op, acc)
                DA[ta, sub] = acc
        for tl in range(2):
            H = []
            for ta in range(2):
                A = rb(np.concatenate([DA[ta, p][:, 2 * tl:2 * tl + 2] for p in range(4)], axis=1))
                Gr = mfma(A, tabs['k2B1'][0]); Gi = mfma(A, tabs['k2B1'][1])
                co, si = tabs['k2tw'][ta]
                Hr = co * Gr + si * Gi
                Hi = co * Gi - si * Gr
                H.append(rb(np.concatenate([Hr, Hi], axis=1)))
            pk = []
            for mu in range(2):
                acc = mfma(H[0], tabs['k2B2'][mu][0])
                acc = mfma(H[1], tabs['k2B2'][mu][1], acc)
                pk.append(rb(acc))
            X0, Y0 = swap16(pk[0][:, 0:2], pk[1][:, 0:2])
            X1, Y1 = swap16(pk[0][:, 2:4], pk[1][:, 2:4])
            F = np.concatenate([X0, X1, Y0, Y1], axis=1)
            ea = LN + 16 * (LG & 1)
            p = 2 * ea + (LG >> 1)
            valid = ea < 28
            t = tau + 256 * (2 * w + tl)
            lane_of = {int(p[l]): l for l in range(64) if valid[l]}
            for l in range(64):
                if not valid[l]:
                    continue
                out[t, branch * 448 + 8 * p[l]: branch * 448 + 8 * p[l] + 8] = F[l]
                if var == 0:
                    nx = F[lane_of[(int(p[l]) + 1) % 56]]
                    M = np.concatenate([[nx[0]], F[l][7:0:-1]])
                    pp = 55 - p[l]
                    out[(2048 - t) % 2048, branch * 448 + 8 * pp: branch * 448 + 8 * pp + 8] = M

def build_tables():
    tabs = {}
    tabs['k1s1'] = [[rb(k1_stage1(w, k)) for k in range(2)] for w in range(4)]
    tabs['k1s2'] = [[[rb(k1_stage2(s2, sig, nu)) for nu in range(2)] for sig in range(8)] for s2 in range(8)]
    tabs['k2A'] = [[[rb(k2_stageA(v, w, k)) for k in range(2)] for w in range(4)] for v in range(3)]
    tabs['k2B1'] = [rb(k2_B1(c)) for c in range(2)]
    tabs['k2tw'] = [k2_tw(ta) for ta in range(2)]
    tabs['k2B2'] = [[rb(k2_B2(mu, ta)) for ta in range(2)] for mu in range(2)]
    return tabs

if __name__ == '__main__':
    import time
    rng = np.random.default_rng(0)
    x = rb(rng.standard_normal((S, D)) * 0.05)
    tabs = build_tables()
    ws = np.full(2 * 128 * CH // 2, np.nan, dtype=np.float32)
    t0 = time.time()
    for s2 in range(8):
        for j in range(14):
            emu_k1(x, ws, 0, s2, j, tabs)
    print('k1', time.time() - t0, np.isnan(ws[:128 * CH // 2]).sum())
    out = np.full((S, 896), np.nan, dtype=np.float32)
    for tau in range(129):
        emu_k2(ws, out, 0, tau, tabs)
    print('k2', time.time() - t0)
    ref = np.fft.fft2(x.astype(np.float64)).real
    o = out[:, :448]
    print('nan', np.isnan(o).sum(), 'maxerr', np.nanmax(np.abs(o - ref)), 'rms err', np.sqrt(np.nanmean((o - ref) ** 2)), 'rms ref', ref.std(), 'max ref', np.abs(ref).max())
```

```python
import sys, numpy as np
from asmlib import Asm
import design as dz

NAME = 'concat_heads__spectral_fnet__spectral_fnet__prompt'
CH = 14336
XB = 2048 * 896
WSB = 2 * 128 * CH
OUTB = 2048 * 1792

def vr(a, n=4):
    return 'v[%d:%d]' % (a, a + n - 1)

def op_bytes(T):
    return dz.bf16_bits(T).astype('<u2').tobytes()

def emit_data(b):
    q = np.frombuffer(b, dtype='<u8')
    lines = []
    for i in range(0, len(q), 8):
        lines.append('.quad ' + ','.join(('0x%x' % v) if v else '0' for v in q[i:i + 8]))
    return '\n'.join(lines) + '\n'

def k1_tables(tabs):
    b = b''
    for w in range(4):
        for k in range(2):
            b += op_bytes(tabs['k1s1'][w][k])
    for s2 in range(8):
        for sig in range(8):
            for nu in range(2):
                b += op_bytes(tabs['k1s2'][s2][sig][nu])
    return b

def k2_tables(tabs):
    b = b''
    for c in range(2):
        b += op_bytes(tabs['k2B1'][c])
    for ta in range(2):
        for x in tabs['k2tw'][ta]:
            b += x.astype('<f4').tobytes()
    for mu in range(2):
        for ta in range(2):
            b += op_bytes(tabs['k2B2'][mu][ta])
    for v in range(3):
        for w in range(4):
            for k in range(2):
                b += op_bytes(tabs['k2A'][v][w][k])
    return b

def staged_reads(a, order, rd, mf, after, depth=7):
    n = len(order)
    for i in range(min(depth, n)):
        rd(order[i])
    for i in range(n):
        issued = min(depth + i, n)
        a('s_waitcnt lgkmcnt(%d)' % (2 * (issued - i - 1)))
        mf(order[i])
        if depth + i < n:
            rd(order[depth + i])
        for t in after.get(i, []):
            a(t)

def gen_k1(opt):
    a = Asm()
    a('''
k1_kernel:
s_cmp_ge_u32 s2, 224
s_cbranch_scc1 K1_END
s_bfe_u32 s5, s2, 0x10003
s_mul_i32 s7, s5, 40
s_load_dwordx2 s[8:9], s[0:1], s7
s_load_dwordx2 s[12:13], s[0:1], 96
v_lshrrev_b32 v6, 6, v0
v_and_b32 v0, 63, v0
v_readfirstlane_b32 s4, v6
s_getpc_b64 s[16:17]
K1_PC:
s_and_b32 s3, s2, 7
s_lshr_b32 s6, s2, 4
s_add_u32 s16, s16, K1_TAB-K1_PC
s_addc_u32 s17, s17, 0
s_lshl_b32 s20, s4, 11
s_lshl_b32 s21, s3, 14
s_lshl_b32 s22, s4, 12
s_add_u32 s21, s21, s22
s_add_u32 s21, s21, 8192
s_add_u32 s18, s16, s21
s_addc_u32 s19, s17, 0
s_add_u32 s16, s16, s20
s_addc_u32 s17, s17, 0
v_lshlrev_b32 v1, 4, v0
global_load_dwordx4 v[8:11], v1, s[16:17]
global_load_dwordx4 v[12:15], v1, s[16:17] offset:1024
global_load_dwordx4 v[16:19], v1, s[18:19]
global_load_dwordx4 v[20:23], v1, s[18:19] offset:1024
global_load_dwordx4 v[24:27], v1, s[18:19] offset:2048
global_load_dwordx4 v[28:31], v1, s[18:19] offset:3072
s_mov_b32 m0, s22
v_lshrrev_b32 v6, 4, v0
v_bfe_u32 v7, v0, 2, 2
v_mul_u32_u24 v2, 7168, v6
v_mul_u32_u24 v7, 114688, v7
v_lshrrev_b32 v3, 3, v0
v_and_b32 v3, 2, v3
v_xor_b32 v4, v3, v0
v_and_b32 v4, 3, v4
v_lshlrev_b32 v4, 4, v4
v_add3_u32 v2, v2, v7, v4
s_lshl_b32 s24, s4, 9
s_add_u32 s24, s24, s3
s_mul_i32 s24, s24, 896
s_lshl_b32 s25, s6, 6
s_add_u32 s24, s24, s25
s_add_u32 s25, s24, 27648
s_add_u32 s26, s24, 55296
s_add_u32 s27, s24, 82944
s_mov_b32 s10, %d
s_mov_b32 s11, 0x20000
s_waitcnt lgkmcnt(0)
buffer_load_dwordx4 v2, s[8:11], s24 offen lds
buffer_load_dwordx4 v2, s[8:11], s25 offen offset:1024 lds
buffer_load_dwordx4 v2, s[8:11], s26 offen offset:2048 lds
buffer_load_dwordx4 v2, s[8:11], s27 offen offset:3072 lds
''' % XB)
    a('''
v_lshlrev_b32 v3, 4, v3
v_and_b32 v4, 3, v0
v_lshl_add_u32 v3, v4, 3, v3
v_and_b32 v4, 0x3c0, v1
v_add_u32 v3, v3, v4
v_xor_b32 v4, 32, v3
v_bfe_u32 v5, v0, 1, 3
v_mul_u32_u24 v5, %d, v5
v_and_b32 v7, 1, v0
v_lshl_add_u32 v5, v7, 6, v5
v_bfe_u32 v7, v0, 4, 1
v_lshl_add_u32 v5, v7, 5, v5
v_lshrrev_b32 v7, 5, v0
v_lshl_add_u32 v5, v7, 4, v5
s_mov_b32 s14, %d
s_mov_b32 s15, 0x20000
s_mul_i32 s20, s5, %d
s_mul_i32 s21, s3, 896
s_add_u32 s20, s20, s21
s_lshl_b32 s21, s6, 7
s_add_u32 s20, s20, s21
s_cmp_ge_u32 s6, 7
s_cselect_b32 s21, 6272, 0
s_add_u32 s20, s20, s21
s_mul_i32 s21, s4, %d
s_add_u32 s28, s20, s21
s_add_u32 s30, s28, %d
s_sub_u32 s31, s20, s21
s_add_u32 s29, s31, %d
s_add_u32 s31, s31, %d
s_add_u32 s20, s20, %d
s_cmp_eq_u32 s4, 0
s_cselect_b32 s29, s20, s29
''' % (16 * CH, WSB, 128 * CH, 2 * CH, CH, 16 * CH, 15 * CH, 8 * CH))
    a('s_waitcnt vmcnt(0)\ns_barrier')
    ACC = lambda bp, nt: 32 + 4 * (bp + 4 * nt)
    order = [(kap, nt, bp) for kap in range(2) for nt in range(2) for bp in range(4)]
    OPR = {o: 64 + 4 * i for i, o in enumerate(order)}
    def rd(o):
        kap, nt, bp = o
        for hh in range(2):
            a('ds_read_b64_tr_b16 %s, v%d offset:%d' % (vr(OPR[o] + 2 * hh, 2), 3 + nt, (2 * kap + hh) * 4096 + bp * 1024))
    def mf(o):
        kap, nt, bp = o
        a('v_mfma_f32_16x16x32_bf16 %s, %s, %s, %s' % (vr(ACC(bp, nt)), vr(8 + 4 * kap), vr(OPR[o]), vr(ACC(bp, nt)) if kap else '0'))
    A2 = lambda al, nt: 64 + 4 * (al + 2 * nt)
    def cv(nt, p):
        return ['v_cvt_pk_bf16_f32 v%d, v%d, v%d' % (A2(al, nt) + p, ACC(p, nt) + 2 * al, ACC(p, nt) + 2 * al + 1) for al in range(2)]
    after = {12: cv(0, 0), 13: cv(0, 1), 14: cv(0, 2), 15: cv(0, 3)}
    staged_reads(a, order, rd, mf, after)
    D2 = lambda al, nu, nt: 96 + 4 * (nt + 2 * nu + 4 * al)
    def m2(al, nu, nt):
        a('v_mfma_f32_16x16x32_bf16 %s, %s, %s, 0' % (vr(D2(al, nu, nt)), vr(A2(al, nt)), vr(16 + 4 * (2 * al + nu))))
    k = 0
    for al in range(2):
        for nu in range(2):
            m2(al, nu, 0)
            for t in cv(1, k): a(t)
            k += 1
    for al in range(2):
        for nu in range(2):
            m2(al, nu, 1)
    SO = {(0, 0): 's28', (0, 1): 's29', (1, 0): 's30', (1, 1): 's31'}
    for al in range(2):
        for nu in range(2):
            P = 32 + 4 * (2 * al + nu)
            for nt in range(2):
                for h in range(2):
                    a('v_cvt_pk_bf16_f32 v%d, v%d, v%d' % (P + 2 * nt + h, D2(al, nu, nt) + 2 * h, D2(al, nu, nt) + 2 * h + 1))
    for al in range(2):
        for nu in range(2):
            P = 32 + 4 * (2 * al + nu)
            a('v_permlane16_swap_b32 v%d, v%d' % (P, P + 2))
            a('v_permlane16_swap_b32 v%d, v%d' % (P + 1, P + 3))
            a('buffer_store_dwordx4 %s, v5, s[12:15], %s offen %s' % (vr(P), SO[al, nu], opt.get('k1st', '')))
    a('K1_END:\ns_endpgm')
    return a.finish(opt.get('v'))

def gen_k2(opt):
    a = Asm()
    a('''
k2_kernel:
s_cmp_ge_u32 s2, 258
s_cbranch_scc1 K2_END
s_load_dwordx2 s[8:9], s[0:1], 96
s_load_dwordx2 s[12:13], s[0:1], 80
v_lshrrev_b32 v6, 6, v0
v_and_b32 v0, 63, v0
v_readfirstlane_b32 s4, v6
s_getpc_b64 s[16:17]
K2_PC:
s_and_b32 s5, s2, 1
s_lshr_b32 s3, s2, 1
s_add_u32 s16, s16, K2_TAB-K2_PC+4096
s_addc_u32 s17, s17, 0
s_cmp_eq_u32 s3, 0
s_cselect_b32 s20, 8192, 0
s_cmp_eq_u32 s3, 128
s_cselect_b32 s20, 16384, s20
s_lshl_b32 s21, s4, 11
s_add_u32 s21, s21, s20
s_add_u32 s21, s21, 6144
s_add_u32 s18, s16, s21
s_addc_u32 s19, s17, 0
s_add_u32 s22, s16, 4096
s_addc_u32 s23, s17, 0
v_lshlrev_b32 v1, 4, v0
global_load_dwordx4 v[8:11], v1, s[18:19]
global_load_dwordx4 v[12:15], v1, s[18:19] offset:1024
global_load_dwordx4 v[16:19], v1, s[16:17] offset:-4096
global_load_dwordx4 v[20:23], v1, s[16:17] offset:-3072
global_load_dwordx4 v[24:27], v1, s[16:17] offset:-2048
global_load_dwordx4 v[28:31], v1, s[16:17] offset:-1024
global_load_dwordx4 v[32:35], v1, s[16:17]
global_load_dwordx4 v[36:39], v1, s[16:17] offset:1024
global_load_dwordx4 v[40:43], v1, s[16:17] offset:2048
global_load_dwordx4 v[44:47], v1, s[16:17] offset:3072
global_load_dwordx4 v[48:51], v1, s[22:23]
global_load_dwordx4 v[52:55], v1, s[22:23] offset:1024
s_mul_i32 s24, s4, 3584
s_mov_b32 m0, s24
v_cmp_le_u32 vcc, 28, v0
v_subrev_u32 v6, 28, v0
v_cndmask_b32 v6, v0, v6, vcc
v_cndmask_b32 v7, 0, 64, vcc
v_lshrrev_b32 v2, 2, v6
v_lshl_add_u32 v2, v2, 7, v7
v_and_b32 v6, 3, v6
v_lshl_add_u32 v2, v6, 4, v2
s_and_b32 s25, s3, 127
s_lshl_b32 s26, s5, 7
s_add_u32 s25, s25, s26
s_mul_i32 s25, s25, %d
s_add_u32 s24, s24, s25
s_mov_b32 s10, %d
s_mov_b32 s11, 0x20000
s_bfm_b64 exec, 56, 0
s_waitcnt lgkmcnt(0)
buffer_load_dwordx4 v2, s[8:11], s24 offen lds
buffer_load_dwordx4 v2, s[8:11], s24 offen offset:896 lds
buffer_load_dwordx4 v2, s[8:11], s24 offen offset:1792 lds
buffer_load_dwordx4 v2, s[8:11], s24 offen offset:2688 lds
s_mov_b64 exec, -1
''' % (CH, WSB))
    a('''
v_lshrrev_b32 v3, 5, v0
v_mul_u32_u24 v3, 7168, v3
v_bfe_u32 v6, v0, 4, 1
v_mul_u32_u24 v4, 224, v6
v_bfe_u32 v7, v0, 3, 1
v_mul_u32_u24 v7, 896, v7
v_add3_u32 v3, v3, v4, v7
v_bfe_u32 v7, v0, 2, 1
v_mul_u32_u24 v7, 448, v7
v_and_b32 v5, 3, v0
v_min_u32 v4, 2, v5
v_lshlrev_b32 v4, 3, v4
v_add3_u32 v4, v3, v4, v7
v_add_u32 v4, 32, v4
v_lshlrev_b32 v5, 3, v5
v_add3_u32 v3, v3, v5, v7
v_and_b32 v5, 31, v0
v_lshrrev_b32 v6, 5, v0
v_lshl_add_u32 v2, v5, 1, v6
v_add_u32 v7, 1, v2
v_cmp_ne_u32 vcc, 56, v7
v_mov_b32 v1, 0x40000000
v_cndmask_b32 v7, 0, v7, vcc
v_cmp_gt_u32 vcc, 28, v5
v_lshlrev_b32 v5, 4, v2
v_sub_u32 v6, 880, v5
v_cndmask_b32 v5, v1, v5, vcc
v_cndmask_b32 v6, v1, v6, vcc
v_and_b32 v1, 1, v7
v_lshlrev_b32 v7, 1, v7
v_and_b32 v7, 0x7c, v7
v_lshl_add_u32 v7, v1, 7, v7
s_mov_b32 s14, %d
s_mov_b32 s15, 0x20000
s_lshl_b32 s21, s4, 9
s_add_u32 s21, s21, s3
s_mul_i32 s21, s21, 1792
s_mul_i32 s22, s5, 896
s_add_u32 s28, s21, s22
s_add_u32 s29, s28, %d
s_sub_u32 s30, s22, s21
s_add_u32 s31, s30, %d
s_add_u32 s30, s30, %d
s_mov_b32 s27, 0xffff
''' % (OUTB, 256 * 1792, 1792 * 1792, 2048 * 1792))
    a('s_waitcnt vmcnt(0)\ns_barrier')
    DA = lambda ta, sub: 56 + 4 * (sub + 4 * ta)
    order = [(kap, ta, sub) for kap in range(2) for ta in range(2) for sub in range(4)]
    OPR = {o: 88 + 4 * i for i, o in enumerate(order)}
    def rd(o):
        kap, ta, sub = o
        for hh in range(2):
            a('ds_read_b64_tr_b16 %s, v%d offset:%d' % (vr(OPR[o] + 2 * hh, 2), 3 + ta, (4 * kap + 2 * hh) * 896 + sub * 56))
    def mf(o):
        kap, ta, sub = o
        a('v_mfma_f32_16x16x32_bf16 %s, %s, %s, %s' % (vr(DA(ta, sub)), vr(8 + 4 * kap), vr(OPR[o]), vr(DA(ta, sub)) if kap else '0'))
    A1 = lambda tl, ta: 88 + 4 * (tl + 2 * ta)
    def cv(ta, p):
        return ['v_cvt_pk_bf16_f32 v%d, v%d, v%d' % (A1(tl, ta) + p, DA(ta, p) + 2 * tl, DA(ta, p) + 2 * tl + 1) for tl in range(2)]
    after = {12: cv(0, 0), 13: cv(0, 1), 14: cv(0, 2), 15: cv(0, 3)}
    staged_reads(a, order, rd, mf, after)
    D1 = lambda tl, ta, c: 120 + 4 * (c + 2 * ta + 4 * tl)
    def b1(tl, ta, c):
        return 'v_mfma_f32_16x16x32_bf16 %s, %s, %s, 0' % (vr(D1(tl, ta, c)), vr(A1(tl, ta)), vr(16 + 4 * c))
    k = 0
    for tl in range(2):
        for c in range(2):
            a(b1(tl, 0, c))
            for t in cv(1, k): a(t)
            k += 1
    HT = lambda tl, ta: 56 + 8 * (ta + 2 * tl)
    HP = lambda tl, ta: 104 + 4 * (ta + 2 * tl)
    def tw(tl, ta):
        r, i, h, co, si = D1(tl, ta, 0), D1(tl, ta, 1), HT(tl, ta), 24 + 8 * ta, 28 + 8 * ta
        o = []
        if opt.get('pk'):
            for q in (0, 2):
                o.append('v_pk_mul_f32 %s, %s, %s' % (vr(h + q, 2), vr(co + q, 2), vr(r + q, 2)))
                o.append('v_pk_mul_f32 %s, %s, %s' % (vr(h + 4 + q, 2), vr(co + q, 2), vr(i + q, 2)))
            for q in (0, 2):
                o.append('v_pk_fma_f32 %s, %s, %s, %s' % (vr(h + q, 2), vr(si + q, 2), vr(i + q, 2), vr(h + q, 2)))
                o.append('v_pk_fma_f32 %s, %s, %s, %s neg_lo:[1,0,0] neg_hi:[1,0,0]' % (vr(h + 4 + q, 2), vr(si + q, 2), vr(r + q, 2), vr(h + 4 + q, 2)))
        else:
            for q in range(4):
                o.append('v_mul_f32 v%d, v%d, v%d' % (h + q, co + q, r + q))
                o.append('v_mul_f32 v%d, v%d, v%d' % (h + 4 + q, co + q, i + q))
            for q in range(4):
                o.append('v_fmac_f32 v%d, v%d, v%d' % (h + q, si + q, i + q))
                o.append('v_fma_f32 v%d, -v%d, v%d, v%d' % (h + 4 + q, si + q, r + q, h + 4 + q))
        for q in range(4):
            o.append('v_cvt_pk_bf16_f32 v%d, v%d, v%d' % (HP(tl, ta) + q, h + 2 * q, h + 2 * q + 1))
        return o
    D2 = lambda tl, mu: 88 + 4 * (mu + 2 * tl)
    def b2(tl, mu, ta):
        return 'v_mfma_f32_16x16x32_bf16 %s, %s, %s, %s' % (vr(D2(tl, mu)), vr(HP(tl, ta)), vr(40 + 4 * (2 * mu + ta)), vr(D2(tl, mu)) if ta else '0')
    F = lambda tl: 8 + 4 * tl
    M = lambda tl: 16 + 4 * tl
    def fin(tl):
        o = []
        for mu in range(2):
            for h in range(2):
                o.append('v_cvt_pk_bf16_f32 v%d, v%d, v%d' % (F(tl) + 2 * mu + h, D2(tl, mu) + 2 * h, D2(tl, mu) + 2 * h + 1))
        o.append('v_permlane16_swap_b32 v%d, v%d' % (F(tl), F(tl) + 2))
        o.append('v_permlane16_swap_b32 v%d, v%d' % (F(tl) + 1, F(tl) + 3))
        o.append('ds_bpermute_b32 v%d, v7, v%d' % (1 + tl, F(tl)))
        o.append('buffer_store_dwordx4 %s, v5, s[12:15], s%d offen %s' % (vr(F(tl)), 28 + tl, opt.get('k2st', '')))
        return o
    def mir(tl):
        o = []
        for q in (1, 2, 3):
            o.append('v_bfi_b32 v%d, s27, v%d, v%d' % (M(tl) + q, F(tl) + 4 - q, F(tl) + 3 - q))
        o.append('s_waitcnt lgkmcnt(%d)' % (1 - tl))
        o.append('v_bfi_b32 v%d, s27, v%d, v%d' % (M(tl), 1 + tl, F(tl) + 3))
        o.append('buffer_store_dwordx4 %s, v6, s[12:15], s%d offen %s' % (vr(M(tl)), 30 + tl, opt.get('k2st', '')))
        return o
    def weave(xs, ys, step):
        ys = list(ys)
        for n, x in enumerate(xs):
            if n % step == 0 and ys:
                a(ys.pop(0))
            a(x)
        for y in ys: a(y)
    weave(tw(0, 0), [b1(0, 1, 0), b1(0, 1, 1), b1(1, 1, 0), b1(1, 1, 1)], 3)
    weave(tw(0, 1), [], 3)
    t = tw(1, 0)
    weave(t, [b2(0, 0, 0), b2(0, 1, 0), b2(0, 0, 1), b2(0, 1, 1)], 3)
    t = tw(1, 1)
    weave(t, [b2(1, 0, 0), b2(1, 1, 0)], 3)
    f = fin(0)
    weave(f, [b2(1, 0, 1), b2(1, 1, 1)], 2)
    for x in fin(1): a(x)
    a('s_and_b32 s21, s3, 127\ns_cbranch_scc0 K2_END')
    for x in mir(0): a(x)
    for x in mir(1): a(x)
    a('K2_END:\ns_endpgm')
    return a.finish(opt.get('v'))

def kd(name, vgpr, sgpr):
    return '''.p2align 6
.amdhsa_kernel %s
  .amdhsa_next_free_vgpr %d
  .amdhsa_next_free_sgpr %d
  .amdhsa_accum_offset %d
  .amdhsa_group_segment_fixed_size 0
  .amdhsa_kernarg_size 104
  .amdhsa_user_sgpr_count 2
  .amdhsa_user_sgpr_kernarg_segment_ptr 1
  .amdhsa_system_sgpr_workgroup_id_x 1
.end_amdhsa_kernel
''' % (name, vgpr, sgpr, (vgpr + 3) // 4 * 4)

def build(opt):
    tabs = dz.build_tables()
    hdr = open('cdna_kernels/%s.s.ref' % NAME).read().split('; Override launch')[0]
    s = hdr
    s += '; @launch kernel=k1_kernel grid=(224,1,1) block=(256,1,1) lds=16384\n'
    s += '; @launch kernel=k2_kernel grid=(258,1,1) block=(256,1,1) lds=14336\n'
    for i in range(opt.get('extra', 0)):
        s += '; @launch kernel=k0_kernel grid=(256,1,1) block=(256,1,1) lds=0\n'
    s += '.amdgcn_target "amdgcn-amd-amdhsa--gfx950"\n.text\n'
    s += '.globl k1_kernel\n.p2align 8\n.type k1_kernel,@function\n' + gen_k1(opt)
    s += '.globl k2_kernel\n.p2align 8\n.type k2_kernel,@function\n' + gen_k2(opt)
    if opt.get('extra'):
        s += '.globl k0_kernel\n.p2align 8\n.type k0_kernel,@function\nk0_kernel:\n    s_endpgm\n'
    s += '.p2align 8\n.type K2_TAB,@object\nK2_TAB:\n' + emit_data(k2_tables(tabs))
    s += '.p2align 8\n.type K1_TAB,@object\nK1_TAB:\n' + emit_data(k1_tables(tabs))
    s += '.section .rodata,"a"\n' + kd('k1_kernel', 128, 40) + kd('k2_kernel', 152, 40)
    if opt.get('extra'):
        s += kd('k0_kernel', 8, 16)
    return s

if __name__ == '__main__':
    out = sys.argv[1]
    opt = {}
    for kv in sys.argv[2:]:
        k, _, v = kv.partition('=')
        opt[k] = int(v) if v.lstrip('-').isdigit() else (v.replace('+', ' ') if v else 1)
    s = build(opt)
    open(out, 'w').write(s)
    print(out, len(s), 'bytes')
```

```python
import sys, numpy as np
from asmlib import Asm
import design as dz

NAME = 'concat_heads__spectral_fnet__spectral_fnet__prompt'
CH = 14336
XB = 2048 * 896
WSB = 2 * 128 * CH
OUTB = 2048 * 1792

def vr(a, n=4):
    return 'v[%d:%d]' % (a, a + n - 1)

def op_bytes(T):
    return dz.bf16_bits(T).astype('<u2').tobytes()

def emit_data(b):
    q = np.frombuffer(b, dtype='<u8')
    lines = []
    for i in range(0, len(q), 8):
        lines.append('.quad ' + ','.join(('0x%x' % v) if v else '0' for v in q[i:i + 8]))
    return '\n'.join(lines) + '\n'

def k1_tables(tabs):
    b = b''
    for w in range(4):
        for k in range(2):
            b += op_bytes(tabs['k1s1'][w][k])
    for s2 in range(8):
        for sig in range(8):
            for nu in range(2):
                b += op_bytes(tabs['k1s2'][s2][sig][nu])
    return b

def k2_tables(tabs):
    b = b''
    for c in range(2):
        b += op_bytes(tabs['k2B1'][c])
    for ta in range(2):
        for x in tabs['k2tw'][ta]:
            b += x.astype('<f4').tobytes()
    for mu in range(2):
        for ta in range(2):
            b += op_bytes(tabs['k2B2'][mu][ta])
    for v in range(3):
        for w in range(4):
            for k in range(2):
                b += op_bytes(tabs['k2A'][v][w][k])
    return b

def staged_reads(a, order, rd, mf, after, depth=7):
    n = len(order)
    for i in range(min(depth, n)):
        rd(order[i])
    for i in range(n):
        issued = min(depth + i, n)
        a('s_waitcnt lgkmcnt(%d)' % (2 * (issued - i - 1)))
        mf(order[i])
        if depth + i < n:
            rd(order[depth + i])
        for t in after.get(i, []):
            a(t)

def stamp(a, opt, i):
    if opt.get('stamp'):
        a('s_memrealtime s[%d:%d]' % (40 + 2 * i, 41 + 2 * i))

def stamp_out(a, opt, kern, n):
    if not opt.get('stamp'):
        return
    stamp(a, opt, n - 2)
    a('s_waitcnt vmcnt(0)')
    stamp(a, opt, n - 1)
    a('s_load_dwordx2 s[60:61], s[0:1], 96')
    a('s_getreg_b32 s58, hwreg(HW_REG_XCC_ID)')
    a('s_getreg_b32 s59, hwreg(HW_REG_HW_ID)')
    a('s_lshl_b32 s62, s2, 2\ns_add_u32 s62, s62, s4\ns_lshl_b32 s62, s62, 6\ns_add_u32 s62, s62, %d' % ((16 + kern) << 20))
    a('s_waitcnt lgkmcnt(0)\ns_add_u32 s60, s60, s62\ns_addc_u32 s61, s61, 0')
    a('v_mov_b32 v0, 0')
    for i in range(n):
        a('v_mov_b32 v1, s%d\nglobal_store_dword v0, v1, s[60:61] offset:%d' % (40 + 2 * i, 4 * i))
    a('v_mov_b32 v1, s58\nglobal_store_dword v0, v1, s[60:61] offset:56')
    a('v_mov_b32 v1, s59\nglobal_store_dword v0, v1, s[60:61] offset:60')

def gen_k1(opt):
    a = Asm()
    a('''
k1_kernel:
s_cmp_ge_u32 s2, 224
s_cbranch_scc1 K1_END
''')
    stamp(a, opt, 0)
    a('''
s_bfe_u32 s5, s2, 0x10003
s_mul_i32 s7, s5, 40
s_load_dwordx2 s[8:9], s[0:1], s7
s_load_dwordx2 s[12:13], s[0:1], 96
v_lshrrev_b32 v6, 6, v0
v_and_b32 v0, 63, v0
v_readfirstlane_b32 s4, v6
s_getpc_b64 s[16:17]
K1_PC:
s_and_b32 s3, s2, 7
s_lshr_b32 s6, s2, 4
s_add_u32 s16, s16, K1_TAB-K1_PC
s_addc_u32 s17, s17, 0
s_lshl_b32 s20, s4, 11
s_lshl_b32 s21, s3, 14
s_lshl_b32 s22, s4, 12
s_add_u32 s21, s21, s22
s_add_u32 s21, s21, 8192
s_add_u32 s18, s16, s21
s_addc_u32 s19, s17, 0
s_add_u32 s16, s16, s20
s_addc_u32 s17, s17, 0
v_lshlrev_b32 v1, 4, v0
global_load_dwordx4 v[8:11], v1, s[16:17]
global_load_dwordx4 v[12:15], v1, s[16:17] offset:1024
global_load_dwordx4 v[16:19], v1, s[18:19]
global_load_dwordx4 v[20:23], v1, s[18:19] offset:1024
global_load_dwordx4 v[24:27], v1, s[18:19] offset:2048
global_load_dwordx4 v[28:31], v1, s[18:19] offset:3072
s_mov_b32 m0, s22
v_lshrrev_b32 v6, 4, v0
v_bfe_u32 v7, v0, 2, 2
v_mul_u32_u24 v2, 7168, v6
v_mul_u32_u24 v7, 114688, v7
v_lshrrev_b32 v3, 3, v0
v_and_b32 v3, 2, v3
v_xor_b32 v4, v3, v0
v_and_b32 v4, 3, v4
v_lshlrev_b32 v4, 4, v4
v_add3_u32 v2, v2, v7, v4
s_lshl_b32 s24, s4, 9
s_add_u32 s24, s24, s3
s_mul_i32 s24, s24, 896
s_lshl_b32 s25, s6, 6
s_add_u32 s24, s24, s25
s_add_u32 s25, s24, 27648
s_add_u32 s26, s24, 55296
s_add_u32 s27, s24, 82944
s_mov_b32 s10, %d
s_mov_b32 s11, 0x20000
s_waitcnt lgkmcnt(0)
''' % XB)
    stamp(a, opt, 1)
    a('''
buffer_load_dwordx4 v2, s[8:11], s24 offen lds
buffer_load_dwordx4 v2, s[8:11], s25 offen offset:1024 lds
buffer_load_dwordx4 v2, s[8:11], s26 offen offset:2048 lds
buffer_load_dwordx4 v2, s[8:11], s27 offen offset:3072 lds
''')
    a('''
v_lshlrev_b32 v3, 4, v3
v_and_b32 v4, 3, v0
v_lshl_add_u32 v3, v4, 3, v3
v_and_b32 v4, 0x3c0, v1
v_add_u32 v3, v3, v4
v_xor_b32 v4, 32, v3
v_bfe_u32 v5, v0, 1, 3
v_mul_u32_u24 v5, %d, v5
v_and_b32 v7, 1, v0
v_lshl_add_u32 v5, v7, 6, v5
v_bfe_u32 v7, v0, 4, 1
v_lshl_add_u32 v5, v7, 5, v5
v_lshrrev_b32 v7, 5, v0
v_lshl_add_u32 v5, v7, 4, v5
s_mov_b32 s14, %d
s_mov_b32 s15, 0x20000
s_mul_i32 s20, s5, %d
s_mul_i32 s21, s3, 896
s_add_u32 s20, s20, s21
s_lshl_b32 s21, s6, 7
s_add_u32 s20, s20, s21
s_cmp_ge_u32 s6, 7
s_cselect_b32 s21, 6272, 0
s_add_u32 s20, s20, s21
s_mul_i32 s21, s4, %d
s_add_u32 s28, s20, s21
s_add_u32 s30, s28, %d
s_sub_u32 s31, s20, s21
s_add_u32 s29, s31, %d
s_add_u32 s31, s31, %d
s_add_u32 s20, s20, %d
s_cmp_eq_u32 s4, 0
s_cselect_b32 s29, s20, s29
''' % (16 * CH, WSB, 128 * CH, 2 * CH, CH, 16 * CH, 15 * CH, 8 * CH))
    if opt.get('stamp'):
        a('s_waitcnt vmcnt(4)')
        stamp(a, opt, 2)
    a('s_waitcnt vmcnt(0)')
    stamp(a, opt, 3)
    if opt.get('stamp'): a('s_waitcnt lgkmcnt(0)')
    a('s_barrier')
    ACC = lambda bp, nt: 32 + 4 * (bp + 4 * nt)
    order = [(kap, nt, bp) for kap in range(2) for nt in range(2) for bp in range(4)]
    OPR = {o: 64 + 4 * i for i, o in enumerate(order)}
    def rd(o):
        kap, nt, bp = o
        for hh in range(2):
            a('ds_read_b64_tr_b16 %s, v%d offset:%d' % (vr(OPR[o] + 2 * hh, 2), 3 + nt, (2 * kap + hh) * 4096 + bp * 1024))
    def mf(o):
        kap, nt, bp = o
        a('v_mfma_f32_16x16x32_bf16 %s, %s, %s, %s' % (vr(ACC(bp, nt)), vr(8 + 4 * kap), vr(OPR[o]), vr(ACC(bp, nt)) if kap else '0'))
    A2 = lambda al, nt: 64 + 4 * (al + 2 * nt)
    def cv(nt, p):
        return ['v_cvt_pk_bf16_f32 v%d, v%d, v%d' % (A2(al, nt) + p, ACC(p, nt) + 2 * al, ACC(p, nt) + 2 * al + 1) for al in range(2)]
    after = {12: cv(0, 0), 13: cv(0, 1), 14: cv(0, 2), 15: cv(0, 3)}
    staged_reads(a, order, rd, mf, after)
    D2 = lambda al, nu, nt: 96 + 4 * (nt + 2 * nu + 4 * al)
    def m2(al, nu, nt):
        a('v_mfma_f32_16x16x32_bf16 %s, %s, %s, 0' % (vr(D2(al, nu, nt)), vr(A2(al, nt)), vr(16 + 4 * (2 * al + nu))))
    k = 0
    for al in range(2):
        for nu in range(2):
            m2(al, nu, 0)
            for t in cv(1, k): a(t)
            k += 1
    for al in range(2):
        for nu in range(2):
            m2(al, nu, 1)
    SO = {(0, 0): 's28', (0, 1): 's29', (1, 0): 's30', (1, 1): 's31'}
    for al in range(2):
        for nu in range(2):
            P = 32 + 4 * (2 * al + nu)
            for nt in range(2):
                for h in range(2):
                    a('v_cvt_pk_bf16_f32 v%d, v%d, v%d' % (P + 2 * nt + h, D2(al, nu, nt) + 2 * h, D2(al, nu, nt) + 2 * h + 1))
    for al in range(2):
        for nu in range(2):
            P = 32 + 4 * (2 * al + nu)
            a('v_permlane16_swap_b32 v%d, v%d' % (P, P + 2))
            a('v_permlane16_swap_b32 v%d, v%d' % (P + 1, P + 3))
            a('buffer_store_dwordx4 %s, v5, s[12:15], %s offen %s' % (vr(P), SO[al, nu], opt.get('k1st', '')))
    stamp_out(a, opt, 0, 6)
    a('K1_END:\ns_endpgm')
    return a.finish(opt.get('v'))

def gen_k2(opt):
    a = Asm()
    a('''
k2_kernel:
s_cmp_ge_u32 s2, 258
s_cbranch_scc1 K2_END
''')
    stamp(a, opt, 0)
    a('''
s_load_dwordx2 s[8:9], s[0:1], 96
s_load_dwordx2 s[12:13], s[0:1], 80
v_lshrrev_b32 v6, 6, v0
v_and_b32 v0, 63, v0
v_readfirstlane_b32 s4, v6
s_getpc_b64 s[16:17]
K2_PC:
s_and_b32 s5, s2, 1
s_lshr_b32 s3, s2, 1
s_add_u32 s16, s16, K2_TAB-K2_PC+4096
s_addc_u32 s17, s17, 0
s_cmp_eq_u32 s3, 0
s_cselect_b32 s20, 8192, 0
s_cmp_eq_u32 s3, 128
s_cselect_b32 s20, 16384, s20
s_lshl_b32 s21, s4, 11
s_add_u32 s21, s21, s20
s_add_u32 s21, s21, 6144
s_add_u32 s18, s16, s21
s_addc_u32 s19, s17, 0
s_add_u32 s22, s16, 4096
s_addc_u32 s23, s17, 0
v_lshlrev_b32 v1, 4, v0
global_load_dwordx4 v[8:11], v1, s[18:19]
global_load_dwordx4 v[12:15], v1, s[18:19] offset:1024
global_load_dwordx4 v[16:19], v1, s[16:17] offset:-4096
global_load_dwordx4 v[20:23], v1, s[16:17] offset:-3072
global_load_dwordx4 v[24:27], v1, s[16:17] offset:-2048
global_load_dwordx4 v[28:31], v1, s[16:17] offset:-1024
global_load_dwordx4 v[32:35], v1, s[16:17]
global_load_dwordx4 v[36:39], v1, s[16:17] offset:1024
global_load_dwordx4 v[40:43], v1, s[16:17] offset:2048
global_load_dwordx4 v[44:47], v1, s[16:17] offset:3072
global_load_dwordx4 v[48:51], v1, s[22:23]
global_load_dwordx4 v[52:55], v1, s[22:23] offset:1024
s_mul_i32 s24, s4, 3584
s_mov_b32 m0, s24
v_cmp_le_u32 vcc, 28, v0
v_subrev_u32 v6, 28, v0
v_cndmask_b32 v6, v0, v6, vcc
v_cndmask_b32 v7, 0, 64, vcc
v_lshrrev_b32 v2, 2, v6
v_lshl_add_u32 v2, v2, 7, v7
v_and_b32 v6, 3, v6
v_lshl_add_u32 v2, v6, 4, v2
s_and_b32 s25, s3, 127
s_lshl_b32 s26, s5, 7
s_add_u32 s25, s25, s26
s_mul_i32 s25, s25, %d
s_add_u32 s24, s24, s25
s_mov_b32 s10, %d
s_mov_b32 s11, 0x20000
s_bfm_b64 exec, 56, 0
s_waitcnt lgkmcnt(0)
''' % (CH, WSB))
    stamp(a, opt, 1)
    a('''
buffer_load_dwordx4 v2, s[8:11], s24 offen lds
buffer_load_dwordx4 v2, s[8:11], s24 offen offset:896 lds
buffer_load_dwordx4 v2, s[8:11], s24 offen offset:1792 lds
buffer_load_dwordx4 v2, s[8:11], s24 offen offset:2688 lds
s_mov_b64 exec, -1
''')
    a('''
v_lshrrev_b32 v3, 5, v0
v_mul_u32_u24 v3, 7168, v3
v_bfe_u32 v6, v0, 4, 1
v_mul_u32_u24 v4, 224, v6
v_bfe_u32 v7, v0, 3, 1
v_mul_u32_u24 v7, 896, v7
v_add3_u32 v3, v3, v4, v7
v_bfe_u32 v7, v0, 2, 1
v_mul_u32_u24 v7, 448, v7
v_and_b32 v5, 3, v0
v_min_u32 v4, 2, v5
v_lshlrev_b32 v4, 3, v4
v_add3_u32 v4, v3, v4, v7
v_add_u32 v4, 32, v4
v_lshlrev_b32 v5, 3, v5
v_add3_u32 v3, v3, v5, v7
v_and_b32 v5, 31, v0
v_lshrrev_b32 v6, 5, v0
v_lshl_add_u32 v2, v5, 1, v6
v_add_u32 v7, 1, v2
v_cmp_ne_u32 vcc, 56, v7
v_mov_b32 v1, 0x40000000
v_cndmask_b32 v7, 0, v7, vcc
v_cmp_gt_u32 vcc, 28, v5
v_lshlrev_b32 v5, 4, v2
v_sub_u32 v6, 880, v5
v_cndmask_b32 v5, v1, v5, vcc
v_cndmask_b32 v6, v1, v6, vcc
v_and_b32 v1, 1, v7
v_lshlrev_b32 v7, 1, v7
v_and_b32 v7, 0x7c, v7
v_lshl_add_u32 v7, v1, 7, v7
s_mov_b32 s14, %d
s_mov_b32 s15, 0x20000
s_lshl_b32 s21, s4, 9
s_add_u32 s21, s21, s3
s_mul_i32 s21, s21, 1792
s_mul_i32 s22, s5, 896
s_add_u32 s28, s21, s22
s_add_u32 s29, s28, %d
s_sub_u32 s30, s22, s21
s_add_u32 s31, s30, %d
s_add_u32 s30, s30, %d
s_mov_b32 s27, 0xffff
''' % (OUTB, 256 * 1792, 1792 * 1792, 2048 * 1792))
    if opt.get('stamp'):
        a('s_waitcnt vmcnt(4)')
        stamp(a, opt, 2)
    a('s_waitcnt vmcnt(0)')
    stamp(a, opt, 3)
    if opt.get('stamp'): a('s_waitcnt lgkmcnt(0)')
    a('s_barrier')
    DA = lambda ta, sub: 56 + 4 * (sub + 4 * ta)
    order = [(kap, ta, sub) for kap in range(2) for ta in range(2) for sub in range(4)]
    OPR = {o: 88 + 4 * i for i, o in enumerate(order)}
    def rd(o):
        kap, ta, sub = o
        for hh in range(2):
            a('ds_read_b64_tr_b16 %s, v%d offset:%d' % (vr(OPR[o] + 2 * hh, 2), 3 + ta, (4 * kap + 2 * hh) * 896 + sub * 56))
    def mf(o):
        kap, ta, sub = o
        a('v_mfma_f32_16x16x32_bf16 %s, %s, %s, %s' % (vr(DA(ta, sub)), vr(8 + 4 * kap), vr(OPR[o]), vr(DA(ta, sub)) if kap else '0'))
    A1 = lambda tl, ta: 88 + 4 * (tl + 2 * ta)
    def cv(ta, p):
        return ['v_cvt_pk_bf16_f32 v%d, v%d, v%d' % (A1(tl, ta) + p, DA(ta, p) + 2 * tl, DA(ta, p) + 2 * tl + 1) for tl in range(2)]
    after = {12: cv(0, 0), 13: cv(0, 1), 14: cv(0, 2), 15: cv(0, 3)}
    staged_reads(a, order, rd, mf, after)
    D1 = lambda tl, ta, c: 120 + 4 * (c + 2 * ta + 4 * tl)
    def b1(tl, ta, c):
        return 'v_mfma_f32_16x16x32_bf16 %s, %s, %s, 0' % (vr(D1(tl, ta, c)), vr(A1(tl, ta)), vr(16 + 4 * c))
    k = 0
    for tl in range(2):
        for c in range(2):
            a(b1(tl, 0, c))
            for t in cv(1, k): a(t)
            k += 1
    HT = lambda tl, ta: 56 + 8 * (ta + 2 * tl)
    HP = lambda tl, ta: 104 + 4 * (ta + 2 * tl)
    def tw(tl, ta):
        r, i, h, co, si = D1(tl, ta, 0), D1(tl, ta, 1), HT(tl, ta), 24 + 8 * ta, 28 + 8 * ta
        o = []
        if opt.get('pk'):
            for q in (0, 2):
                o.append('v_pk_mul_f32 %s, %s, %s' % (vr(h + q, 2), vr(co + q, 2), vr(r + q, 2)))
                o.append('v_pk_mul_f32 %s, %s, %s' % (vr(h + 4 + q, 2), vr(co + q, 2), vr(i + q, 2)))
            for q in (0, 2):
                o.append('v_pk_fma_f32 %s, %s, %s, %s' % (vr(h + q, 2), vr(si + q, 2), vr(i + q, 2), vr(h + q, 2)))
                o.append('v_pk_fma_f32 %s, %s, %s, %s neg_lo:[1,0,0] neg_hi:[1,0,0]' % (vr(h + 4 + q, 2), vr(si + q, 2), vr(r + q, 2), vr(h + 4 + q, 2)))
        else:
            for q in range(4):
                o.append('v_mul_f32 v%d, v%d, v%d' % (h + q, co + q, r + q))
                o.append('v_mul_f32 v%d, v%d, v%d' % (h + 4 + q, co + q, i + q))
            for q in range(4):
                o.append('v_fmac_f32 v%d, v%d, v%d' % (h + q, si + q, i + q))
                o.append('v_fma_f32 v%d, -v%d, v%d, v%d' % (h + 4 + q, si + q, r + q, h + 4 + q))
        for q in range(4):
            o.append('v_cvt_pk_bf16_f32 v%d, v%d, v%d' % (HP(tl, ta) + q, h + 2 * q, h + 2 * q + 1))
        return o
    D2 = lambda tl, mu: 88 + 4 * (mu + 2 * tl)
    def b2(tl, mu, ta):
        return 'v_mfma_f32_16x16x32_bf16 %s, %s, %s, %s' % (vr(D2(tl, mu)), vr(HP(tl, ta)), vr(40 + 4 * (2 * mu + ta)), vr(D2(tl, mu)) if ta else '0')
    F = lambda tl: 8 + 4 * tl
    M = lambda tl: 16 + 4 * tl
    def fin(tl):
        o = []
        for mu in range(2):
            for h in range(2):
                o.append('v_cvt_pk_bf16_f32 v%d, v%d, v%d' % (F(tl) + 2 * mu + h, D2(tl, mu) + 2 * h, D2(tl, mu) + 2 * h + 1))
        o.append('v_permlane16_swap_b32 v%d, v%d' % (F(tl), F(tl) + 2))
        o.append('v_permlane16_swap_b32 v%d, v%d' % (F(tl) + 1, F(tl) + 3))
        o.append('ds_bpermute_b32 v%d, v7, v%d' % (1 + tl, F(tl)))
        o.append('buffer_store_dwordx4 %s, v5, s[12:15], s%d offen %s' % (vr(F(tl)), 28 + tl, opt.get('k2st', '')))
        return o
    def mir(tl):
        o = []
        for q in (1, 2, 3):
            o.append('v_bfi_b32 v%d, s27, v%d, v%d' % (M(tl) + q, F(tl) + 4 - q, F(tl) + 3 - q))
        o.append('s_waitcnt lgkmcnt(%d)' % (1 - tl))
        o.append('v_bfi_b32 v%d, s27, v%d, v%d' % (M(tl), 1 + tl, F(tl) + 3))
        o.append('buffer_store_dwordx4 %s, v6, s[12:15], s%d offen %s' % (vr(M(tl)), 30 + tl, opt.get('k2st', '')))
        return o
    def weave(xs, ys, step):
        ys = list(ys)
        for n, x in enumerate(xs):
            if n % step == 0 and ys:
                a(ys.pop(0))
            a(x)
        for y in ys: a(y)
    weave(tw(0, 0), [b1(0, 1, 0), b1(0, 1, 1), b1(1, 1, 0), b1(1, 1, 1)], 3)
    weave(tw(0, 1), [], 3)
    t = tw(1, 0)
    weave(t, [b2(0, 0, 0), b2(0, 1, 0), b2(0, 0, 1), b2(0, 1, 1)], 3)
    t = tw(1, 1)
    weave(t, [b2(1, 0, 0), b2(1, 1, 0)], 3)
    f = fin(0)
    weave(f, [b2(1, 0, 1), b2(1, 1, 1)], 2)
    for x in fin(1): a(x)
    a('s_and_b32 s21, s3, 127\ns_cbranch_scc0 K2_FIN')
    for x in mir(0): a(x)
    for x in mir(1): a(x)
    a('K2_FIN:')
    stamp_out(a, opt, 1, 6)
    a('K2_END:\ns_endpgm')
    return a.finish(opt.get('v'))

def gen_k3(opt, nw):
    ka, fa, oa, kb, fb, ob = opt['diag'].split(',')
    amp = opt.get('amp', 20)
    a = Asm()
    a("""
k3_kernel:
s_cmp_ge_u32 s2, 1
s_cbranch_scc1 K3_END
s_load_dwordx2 s[8:9], s[0:1], 96
s_mov_b32 s10, -1
s_mov_b32 s11, 0x20000
s_waitcnt lgkmcnt(0)
""")
    for idx, (k, f, o) in enumerate(((ka, fa, oa), (kb, fb, ob))):
        k = int(k); f = int(f)
        a('v_mov_b32 v2, %s' % ('-1' if o == 'min' else '0'))
        a('v_mov_b32 v3, v0')
        a('K3_L%d:' % idx)
        a('v_min_u32 v4, %d, v3' % (nw[k] - 1))
        a('v_lshlrev_b32 v4, 6, v4')
        a('v_add_u32 v4, %d, v4' % (((16 + k) << 20) + 4 * f))
        a('buffer_load_dword v5, v4, s[8:11], 0 offen')
        a('s_waitcnt vmcnt(0)')
        a('v_%s_u32 v2, v2, v5' % o)
        a('v_add_u32 v3, 64, v3')
        a('s_nop 1\nv_readfirstlane_b32 s12, v3\ns_nop 1')
        a('s_cmp_lt_u32 s12, %d' % nw[k])
        a('s_cbranch_scc1 K3_L%d' % idx)
        a('s_mov_b32 s13, 0\nv_readfirstlane_b32 s%d, v2' % (20 + idx))
        a('K3_R%d:' % idx)
        a('s_nop 4\nv_readlane_b32 s14, v2, s13\ns_nop 4')
        a('s_%s_u32 s%d, s%d, s14' % (o, 20 + idx, 20 + idx))
        a('s_add_u32 s13, s13, 1\ns_cmp_lt_u32 s13, 64\ns_cbranch_scc1 K3_R%d' % idx)
    a("""
s_sub_u32 s20, s20, s21
s_min_u32 s20, s20, 5000
s_mul_i32 s20, s20, %d
s_memrealtime s[22:23]
s_waitcnt lgkmcnt(0)
K3_S:
s_memrealtime s[24:25]
s_waitcnt lgkmcnt(0)
s_sub_u32 s24, s24, s22
s_cmp_lt_u32 s24, s20
s_cbranch_scc1 K3_S
K3_END:
s_endpgm
""" % amp)
    return a.finish()

def kd(name, vgpr, sgpr):
    return '''.p2align 6
.amdhsa_kernel %s
  .amdhsa_next_free_vgpr %d
  .amdhsa_next_free_sgpr %d
  .amdhsa_accum_offset %d
  .amdhsa_group_segment_fixed_size 0
  .amdhsa_kernarg_size 104
  .amdhsa_user_sgpr_count 2
  .amdhsa_user_sgpr_kernarg_segment_ptr 1
  .amdhsa_system_sgpr_workgroup_id_x 1
.end_amdhsa_kernel
''' % (name, vgpr, sgpr, (vgpr + 3) // 4 * 4)

def build(opt):
    tabs = dz.build_tables()
    hdr = open('cdna_kernels/%s.s.ref' % NAME).read().split('; Override launch')[0]
    s = hdr
    s += '; @launch kernel=k1_kernel grid=(224,1,1) block=(256,1,1) lds=16384\n'
    s += '; @launch kernel=k2_kernel grid=(258,1,1) block=(256,1,1) lds=14336\n'
    for i in range(opt.get('extra', 0)):
        s += '; @launch kernel=k0_kernel grid=(256,1,1) block=(256,1,1) lds=0\n'
    if opt.get('diag'):
        s += '; @launch kernel=k3_kernel grid=(1,1,1) block=(64,1,1) lds=0\n'
    s += '.amdgcn_target "amdgcn-amd-amdhsa--gfx950"\n.text\n'
    s += '.globl k1_kernel\n.p2align 8\n.type k1_kernel,@function\n' + gen_k1(opt)
    s += '.globl k2_kernel\n.p2align 8\n.type k2_kernel,@function\n' + gen_k2(opt)
    if opt.get('extra'):
        s += '.globl k0_kernel\n.p2align 8\n.type k0_kernel,@function\nk0_kernel:\n    s_endpgm\n'
    if opt.get('diag'):
        s += '.globl k3_kernel\n.p2align 8\n.type k3_kernel,@function\n' + gen_k3(opt, [224 * 4, 258 * 4])
    s += '.p2align 8\n.type K2_TAB,@object\nK2_TAB:\n' + emit_data(k2_tables(tabs))
    s += '.p2align 8\n.type K1_TAB,@object\nK1_TAB:\n' + emit_data(k1_tables(tabs))
    s += '.section .rodata,"a"\n' + kd('k1_kernel', 128, 64) + kd('k2_kernel', 152, 64)
    if opt.get('extra'):
        s += kd('k0_kernel', 8, 16)
    if opt.get('diag'):
        s += kd('k3_kernel', 8, 32)
    return s

if __name__ == '__main__':
    out = sys.argv[1]
    opt = {}
    for kv in sys.argv[2:]:
        k, _, v = kv.partition('=')
        opt[k] = int(v) if v.lstrip('-').isdigit() else (v.replace('+', ' ') if v else 1)
    s = build(opt)
    open(out, 'w').write(s)
    print(out, len(s), 'bytes')
```

```python
import sys, numpy as np
from asmlib import Asm
import design as dz

NAME = 'concat_heads__spectral_fnet__spectral_fnet__prompt'
CH = 14336
XB = 2048 * 896
WSB = 2 * 128 * CH
OUTB = 2048 * 1792

def vr(a, n=4):
    return 'v[%d:%d]' % (a, a + n - 1)

def op_bytes(T):
    return dz.bf16_bits(T).astype('<u2').tobytes()

def emit_data(b):
    q = np.frombuffer(b, dtype='<u8')
    lines = []
    for i in range(0, len(q), 8):
        lines.append('.quad ' + ','.join(('0x%x' % v) if v else '0' for v in q[i:i + 8]))
    return '\n'.join(lines) + '\n'

def k1_tables(tabs):
    b = b''
    for w in range(4):
        for k in range(2):
            b += op_bytes(tabs['k1s1'][w][k])
    for s2 in range(8):
        for sig in range(8):
            for nu in range(2):
                b += op_bytes(tabs['k1s2'][s2][sig][nu])
    return b

def k2_tables(tabs):
    b = b''
    for c in range(2):
        b += op_bytes(tabs['k2B1'][c])
    for ta in range(2):
        for x in tabs['k2tw'][ta]:
            b += x.astype('<f4').tobytes()
    for mu in range(2):
        for ta in range(2):
            b += op_bytes(tabs['k2B2'][mu][ta])
    for v in range(3):
        for w in range(4):
            for k in range(2):
                b += op_bytes(tabs['k2A'][v][w][k])
    return b

def staged_reads(a, order, rd, mf, after, depth=7):
    n = len(order)
    for i in range(min(depth, n)):
        rd(order[i])
    for i in range(n):
        issued = min(depth + i, n)
        a('s_waitcnt lgkmcnt(%d)' % (2 * (issued - i - 1)))
        mf(order[i])
        if depth + i < n:
            rd(order[depth + i])
        for t in after.get(i, []):
            a(t)

def stamp(a, opt, i):
    if opt.get('stamp'):
        a('%s s[%d:%d]' % ('s_memtime' if opt.get('cyc') else 's_memrealtime', 40 + 2 * i, 41 + 2 * i))

def stamp_out(a, opt, kern, n):
    if not opt.get('stamp'):
        return
    stamp(a, opt, n - 2)
    a('s_waitcnt vmcnt(0)')
    stamp(a, opt, n - 1)
    a('s_load_dwordx2 s[60:61], s[0:1], 96')
    a('s_getreg_b32 s58, hwreg(HW_REG_XCC_ID)')
    a('s_getreg_b32 s59, hwreg(HW_REG_HW_ID)')
    a('s_lshl_b32 s62, s2, 2\ns_add_u32 s62, s62, s4\ns_lshl_b32 s62, s62, 6\ns_add_u32 s62, s62, %d' % ((16 + kern) << 20))
    a('s_waitcnt lgkmcnt(0)\ns_add_u32 s60, s60, s62\ns_addc_u32 s61, s61, 0')
    a('v_mov_b32 v0, 0')
    for i in range(n):
        a('v_mov_b32 v1, s%d\nglobal_store_dword v0, v1, s[60:61] offset:%d' % (40 + 2 * i, 4 * i))
    a('v_mov_b32 v1, s58\nglobal_store_dword v0, v1, s[60:61] offset:56')
    a('v_mov_b32 v1, s59\nglobal_store_dword v0, v1, s[60:61] offset:60')

def gen_k1(opt):
    a = Asm()
    a('''
k1_kernel:
s_cmp_ge_u32 s2, 224
s_cbranch_scc1 K1_END
''')
    stamp(a, opt, 0)
    a('''
s_bfe_u32 s5, s2, 0x10003
s_mul_i32 s7, s5, 40
s_load_dwordx2 s[8:9], s[0:1], s7
s_load_dwordx2 s[12:13], s[0:1], 96
v_lshrrev_b32 v6, 6, v0
v_and_b32 v0, 63, v0
v_readfirstlane_b32 s4, v6
s_getpc_b64 s[16:17]
K1_PC:
s_and_b32 s3, s2, 7
s_lshr_b32 s6, s2, 4
s_add_u32 s16, s16, K1_TAB-K1_PC
s_addc_u32 s17, s17, 0
s_lshl_b32 s20, s4, 11
s_lshl_b32 s21, s3, 14
s_lshl_b32 s22, s4, 12
s_add_u32 s21, s21, s22
s_add_u32 s21, s21, 8192
s_add_u32 s18, s16, s21
s_addc_u32 s19, s17, 0
s_add_u32 s16, s16, s20
s_addc_u32 s17, s17, 0
v_lshlrev_b32 v1, 4, v0
global_load_dwordx4 v[8:11], v1, s[16:17]
global_load_dwordx4 v[12:15], v1, s[16:17] offset:1024
''')
    K1C = '''global_load_dwordx4 v[16:19], v1, s[18:19]
global_load_dwordx4 v[20:23], v1, s[18:19] offset:1024
global_load_dwordx4 v[24:27], v1, s[18:19] offset:2048
global_load_dwordx4 v[28:31], v1, s[18:19] offset:3072
'''
    if not opt.get('late'): a(K1C)
    a('''
s_mov_b32 m0, s22
v_lshrrev_b32 v6, 4, v0
v_bfe_u32 v7, v0, 2, 2
v_mul_u32_u24 v2, 7168, v6
v_mul_u32_u24 v7, 114688, v7
v_lshrrev_b32 v3, 3, v0
v_and_b32 v3, 2, v3
v_xor_b32 v4, v3, v0
v_and_b32 v4, 3, v4
v_lshlrev_b32 v4, 4, v4
v_add3_u32 v2, v2, v7, v4
s_lshl_b32 s24, s4, 9
s_add_u32 s24, s24, s3
s_mul_i32 s24, s24, 896
s_lshl_b32 s25, s6, 6
s_add_u32 s24, s24, s25
s_add_u32 s25, s24, 27648
s_add_u32 s26, s24, 55296
s_add_u32 s27, s24, 82944
s_mov_b32 s10, %d
s_mov_b32 s11, 0x20000
s_waitcnt lgkmcnt(0)
''' % XB)
    stamp(a, opt, 1)
    a('''
buffer_load_dwordx4 v2, s[8:11], s24 offen lds
buffer_load_dwordx4 v2, s[8:11], s25 offen offset:1024 lds
buffer_load_dwordx4 v2, s[8:11], s26 offen offset:2048 lds
buffer_load_dwordx4 v2, s[8:11], s27 offen offset:3072 lds
''')
    if opt.get('late'): a(K1C)
    a('''
v_lshlrev_b32 v3, 4, v3
v_and_b32 v4, 3, v0
v_lshl_add_u32 v3, v4, 3, v3
v_and_b32 v4, 0x3c0, v1
v_add_u32 v3, v3, v4
v_xor_b32 v4, 32, v3
v_bfe_u32 v5, v0, 1, 3
v_mul_u32_u24 v5, %d, v5
v_and_b32 v7, 1, v0
v_lshl_add_u32 v5, v7, 6, v5
v_bfe_u32 v7, v0, 4, 1
v_lshl_add_u32 v5, v7, 5, v5
v_lshrrev_b32 v7, 5, v0
v_lshl_add_u32 v5, v7, 4, v5
s_mov_b32 s14, %d
s_mov_b32 s15, 0x20000
s_mul_i32 s20, s5, %d
s_mul_i32 s21, s3, 896
s_add_u32 s20, s20, s21
s_lshl_b32 s21, s6, 7
s_add_u32 s20, s20, s21
s_cmp_ge_u32 s6, 7
s_cselect_b32 s21, 6272, 0
s_add_u32 s20, s20, s21
s_mul_i32 s21, s4, %d
s_add_u32 s28, s20, s21
s_add_u32 s30, s28, %d
s_sub_u32 s31, s20, s21
s_add_u32 s29, s31, %d
s_add_u32 s31, s31, %d
s_add_u32 s20, s20, %d
s_cmp_eq_u32 s4, 0
s_cselect_b32 s29, s20, s29
''' % (16 * CH, WSB, 128 * CH, 2 * CH, CH, 16 * CH, 15 * CH, 8 * CH))
    if opt.get('stamp'):
        a('s_waitcnt vmcnt(%d)' % (8 if opt.get('late') else 4))
        stamp(a, opt, 2)
    a('s_waitcnt vmcnt(%d)' % (4 if opt.get('late') else 0))
    stamp(a, opt, 3)
    if opt.get('stamp'): a('s_waitcnt lgkmcnt(0)')
    a('s_barrier')
    ACC = lambda bp, nt: 32 + 4 * (bp + 4 * nt)
    order = [(kap, nt, bp) for kap in range(2) for nt in range(2) for bp in range(4)]
    OPR = {o: 64 + 4 * i for i, o in enumerate(order)}
    def rd(o):
        kap, nt, bp = o
        for hh in range(2):
            a('ds_read_b64_tr_b16 %s, v%d offset:%d' % (vr(OPR[o] + 2 * hh, 2), 3 + nt, (2 * kap + hh) * 4096 + bp * 1024))
    def mf(o):
        kap, nt, bp = o
        a('v_mfma_f32_16x16x32_bf16 %s, %s, %s, %s' % (vr(ACC(bp, nt)), vr(8 + 4 * kap), vr(OPR[o]), vr(ACC(bp, nt)) if kap else '0'))
    A2 = lambda al, nt: 64 + 4 * (al + 2 * nt)
    def cv(nt, p):
        return ['v_cvt_pk_bf16_f32 v%d, v%d, v%d' % (A2(al, nt) + p, ACC(p, nt) + 2 * al, ACC(p, nt) + 2 * al + 1) for al in range(2)]
    after = {12: cv(0, 0), 13: cv(0, 1), 14: cv(0, 2), 15: cv(0, 3)}
    staged_reads(a, order, rd, mf, after)
    if opt.get('late'): a('s_waitcnt vmcnt(0)')
    D2 = lambda al, nu, nt: 96 + 4 * (nt + 2 * nu + 4 * al)
    def m2(al, nu, nt):
        a('v_mfma_f32_16x16x32_bf16 %s, %s, %s, 0' % (vr(D2(al, nu, nt)), vr(A2(al, nt)), vr(16 + 4 * (2 * al + nu))))
    k = 0
    for al in range(2):
        for nu in range(2):
            m2(al, nu, 0)
            for t in cv(1, k): a(t)
            k += 1
    for al in range(2):
        for nu in range(2):
            m2(al, nu, 1)
    SO = {(0, 0): 's28', (0, 1): 's29', (1, 0): 's30', (1, 1): 's31'}
    for al in range(2):
        for nu in range(2):
            P = 32 + 4 * (2 * al + nu)
            for nt in range(2):
                for h in range(2):
                    a('v_cvt_pk_bf16_f32 v%d, v%d, v%d' % (P + 2 * nt + h, D2(al, nu, nt) + 2 * h, D2(al, nu, nt) + 2 * h + 1))
    for al in range(2):
        for nu in range(2):
            P = 32 + 4 * (2 * al + nu)
            a('v_permlane16_swap_b32 v%d, v%d' % (P, P + 2))
            a('v_permlane16_swap_b32 v%d, v%d' % (P + 1, P + 3))
            a('buffer_store_dwordx4 %s, v5, s[12:15], %s offen %s' % (vr(P), SO[al, nu], opt.get('k1st', '')))
    stamp_out(a, opt, 0, 6)
    a('K1_END:\ns_endpgm')
    return a.finish(opt.get('v'))

def gen_k2(opt):
    a = Asm()
    a('''
k2_kernel:
s_cmp_ge_u32 s2, 258
s_cbranch_scc1 K2_END
''')
    stamp(a, opt, 0)
    a('''
s_load_dwordx2 s[8:9], s[0:1], 96
s_load_dwordx2 s[12:13], s[0:1], 80
v_lshrrev_b32 v6, 6, v0
v_and_b32 v0, 63, v0
v_readfirstlane_b32 s4, v6
s_getpc_b64 s[16:17]
K2_PC:
s_and_b32 s5, s2, 1
s_lshr_b32 s3, s2, 1
s_add_u32 s16, s16, K2_TAB-K2_PC+4096
s_addc_u32 s17, s17, 0
s_cmp_eq_u32 s3, 0
s_cselect_b32 s20, 8192, 0
s_cmp_eq_u32 s3, 128
s_cselect_b32 s20, 16384, s20
s_lshl_b32 s21, s4, 11
s_add_u32 s21, s21, s20
s_add_u32 s21, s21, 6144
s_add_u32 s18, s16, s21
s_addc_u32 s19, s17, 0
s_add_u32 s22, s16, 4096
s_addc_u32 s23, s17, 0
v_lshlrev_b32 v1, 4, v0
global_load_dwordx4 v[8:11], v1, s[18:19]
global_load_dwordx4 v[12:15], v1, s[18:19] offset:1024
''')
    K2C = '''global_load_dwordx4 v[16:19], v1, s[16:17] offset:-4096
global_load_dwordx4 v[20:23], v1, s[16:17] offset:-3072
global_load_dwordx4 v[24:27], v1, s[16:17] offset:-2048
global_load_dwordx4 v[28:31], v1, s[16:17] offset:-1024
global_load_dwordx4 v[32:35], v1, s[16:17]
global_load_dwordx4 v[36:39], v1, s[16:17] offset:1024
global_load_dwordx4 v[40:43], v1, s[16:17] offset:2048
global_load_dwordx4 v[44:47], v1, s[16:17] offset:3072
global_load_dwordx4 v[48:51], v1, s[22:23]
global_load_dwordx4 v[52:55], v1, s[22:23] offset:1024
'''
    if not opt.get('late'): a(K2C)
    a('''
s_mul_i32 s24, s4, 3584
s_mov_b32 m0, s24
v_cmp_le_u32 vcc, 28, v0
v_subrev_u32 v6, 28, v0
v_cndmask_b32 v6, v0, v6, vcc
v_cndmask_b32 v7, 0, 64, vcc
v_lshrrev_b32 v2, 2, v6
v_lshl_add_u32 v2, v2, 7, v7
v_and_b32 v6, 3, v6
v_lshl_add_u32 v2, v6, 4, v2
s_and_b32 s25, s3, 127
s_lshl_b32 s26, s5, 7
s_add_u32 s25, s25, s26
s_mul_i32 s25, s25, %d
s_add_u32 s24, s24, s25
s_mov_b32 s10, %d
s_mov_b32 s11, 0x20000
s_bfm_b64 exec, 56, 0
s_waitcnt lgkmcnt(0)
''' % (CH, WSB))
    stamp(a, opt, 1)
    a('''
buffer_load_dwordx4 v2, s[8:11], s24 offen lds
buffer_load_dwordx4 v2, s[8:11], s24 offen offset:896 lds
buffer_load_dwordx4 v2, s[8:11], s24 offen offset:1792 lds
buffer_load_dwordx4 v2, s[8:11], s24 offen offset:2688 lds
s_mov_b64 exec, -1
''')
    if opt.get('late'): a(K2C)
    a('''
v_lshrrev_b32 v3, 5, v0
v_mul_u32_u24 v3, 7168, v3
v_bfe_u32 v6, v0, 4, 1
v_mul_u32_u24 v4, 224, v6
v_bfe_u32 v7, v0, 3, 1
v_mul_u32_u24 v7, 896, v7
v_add3_u32 v3, v3, v4, v7
v_bfe_u32 v7, v0, 2, 1
v_mul_u32_u24 v7, 448, v7
v_and_b32 v5, 3, v0
v_min_u32 v4, 2, v5
v_lshlrev_b32 v4, 3, v4
v_add3_u32 v4, v3, v4, v7
v_add_u32 v4, 32, v4
v_lshlrev_b32 v5, 3, v5
v_add3_u32 v3, v3, v5, v7
v_and_b32 v5, 31, v0
v_lshrrev_b32 v6, 5, v0
v_lshl_add_u32 v2, v5, 1, v6
v_add_u32 v7, 1, v2
v_cmp_ne_u32 vcc, 56, v7
v_mov_b32 v57, 0x40000000
v_cndmask_b32 v7, 0, v7, vcc
v_cmp_gt_u32 vcc, 28, v5
v_lshlrev_b32 v5, 4, v2
v_sub_u32 v6, 880, v5
v_cndmask_b32 v5, v57, v5, vcc
v_cndmask_b32 v6, v57, v6, vcc
v_and_b32 v1, 1, v7
v_lshlrev_b32 v7, 1, v7
v_and_b32 v7, 0x7c, v7
v_lshl_add_u32 v7, v1, 7, v7
s_mov_b32 s14, %d
s_mov_b32 s15, 0x20000
s_lshl_b32 s21, s4, 9
s_add_u32 s21, s21, s3
s_mul_i32 s21, s21, 1792
s_mul_i32 s22, s5, 896
s_add_u32 s28, s21, s22
s_add_u32 s29, s28, %d
s_sub_u32 s30, s22, s21
s_add_u32 s31, s30, %d
s_add_u32 s30, s30, %d
s_mov_b32 s27, 0xffff
''' % (OUTB, 256 * 1792, 1792 * 1792, 2048 * 1792))
    if opt.get('stamp'):
        a('s_waitcnt vmcnt(%d)' % (14 if opt.get('late') else 4))
        stamp(a, opt, 2)
    a('s_waitcnt vmcnt(%d)' % (10 if opt.get('late') else 0))
    stamp(a, opt, 3)
    if opt.get('stamp'): a('s_waitcnt lgkmcnt(0)')
    a('s_barrier')
    DA = lambda ta, sub: 56 + 4 * (sub + 4 * ta)
    order = [(kap, ta, sub) for kap in range(2) for ta in range(2) for sub in range(4)]
    OPR = {o: 88 + 4 * i for i, o in enumerate(order)}
    def rd(o):
        kap, ta, sub = o
        for hh in range(2):
            a('ds_read_b64_tr_b16 %s, v%d offset:%d' % (vr(OPR[o] + 2 * hh, 2), 3 + ta, (4 * kap + 2 * hh) * 896 + sub * 56))
    def mf(o):
        kap, ta, sub = o
        a('v_mfma_f32_16x16x32_bf16 %s, %s, %s, %s' % (vr(DA(ta, sub)), vr(8 + 4 * kap), vr(OPR[o]), vr(DA(ta, sub)) if kap else '0'))
    A1 = lambda tl, ta: 88 + 4 * (tl + 2 * ta)
    def cv(ta, p):
        return ['v_cvt_pk_bf16_f32 v%d, v%d, v%d' % (A1(tl, ta) + p, DA(ta, p) + 2 * tl, DA(ta, p) + 2 * tl + 1) for tl in range(2)]
    after = {12: cv(0, 0), 13: cv(0, 1), 14: cv(0, 2), 15: cv(0, 3)}
    staged_reads(a, order, rd, mf, after)
    if opt.get('late'): a('s_waitcnt vmcnt(0)')
    D1 = lambda tl, ta, c: 120 + 4 * (c + 2 * ta + 4 * tl)
    def b1(tl, ta, c):
        return 'v_mfma_f32_16x16x32_bf16 %s, %s, %s, 0' % (vr(D1(tl, ta, c)), vr(A1(tl, ta)), vr(16 + 4 * c))
    k = 0
    for tl in range(2):
        for c in range(2):
            a(b1(tl, 0, c))
            for t in cv(1, k): a(t)
            k += 1
    HT = lambda tl, ta: 56 + 8 * (ta + 2 * tl)
    HP = lambda tl, ta: 104 + 4 * (ta + 2 * tl)
    def tw(tl, ta):
        r, i, h, co, si = D1(tl, ta, 0), D1(tl, ta, 1), HT(tl, ta), 24 + 8 * ta, 28 + 8 * ta
        o = []
        if opt.get('pk'):
            for q in (0, 2):
                o.append('v_pk_mul_f32 %s, %s, %s' % (vr(h + q, 2), vr(co + q, 2), vr(r + q, 2)))
                o.append('v_pk_mul_f32 %s, %s, %s' % (vr(h + 4 + q, 2), vr(co + q, 2), vr(i + q, 2)))
            for q in (0, 2):
                o.append('v_pk_fma_f32 %s, %s, %s, %s' % (vr(h + q, 2), vr(si + q, 2), vr(i + q, 2), vr(h + q, 2)))
                o.append('v_pk_fma_f32 %s, %s, %s, %s neg_lo:[1,0,0] neg_hi:[1,0,0]' % (vr(h + 4 + q, 2), vr(si + q, 2), vr(r + q, 2), vr(h + 4 + q, 2)))
        else:
            for q in range(4):
                o.append('v_mul_f32 v%d, v%d, v%d' % (h + q, co + q, r + q))
                o.append('v_mul_f32 v%d, v%d, v%d' % (h + 4 + q, co + q, i + q))
            for q in range(4):
                o.append('v_fmac_f32 v%d, v%d, v%d' % (h + q, si + q, i + q))
                o.append('v_fma_f32 v%d, -v%d, v%d, v%d' % (h + 4 + q, si + q, r + q, h + 4 + q))
        for q in range(4):
            o.append('v_cvt_pk_bf16_f32 v%d, v%d, v%d' % (HP(tl, ta) + q, h + 2 * q, h + 2 * q + 1))
        return o
    D2 = lambda tl, mu: 88 + 4 * (mu + 2 * tl)
    def b2(tl, mu, ta):
        return 'v_mfma_f32_16x16x32_bf16 %s, %s, %s, %s' % (vr(D2(tl, mu)), vr(HP(tl, ta)), vr(40 + 4 * (2 * mu + ta)), vr(D2(tl, mu)) if ta else '0')
    F = lambda tl: 8 + 4 * tl
    M = lambda tl: 16 + 4 * tl
    def fin(tl):
        o = []
        for mu in range(2):
            for h in range(2):
                o.append('v_cvt_pk_bf16_f32 v%d, v%d, v%d' % (F(tl) + 2 * mu + h, D2(tl, mu) + 2 * h, D2(tl, mu) + 2 * h + 1))
        o.append('v_permlane16_swap_b32 v%d, v%d' % (F(tl), F(tl) + 2))
        o.append('v_permlane16_swap_b32 v%d, v%d' % (F(tl) + 1, F(tl) + 3))
        o.append('ds_bpermute_b32 v%d, v7, v%d' % (1 + tl, F(tl)))
        o.append('buffer_store_dwordx4 %s, v5, s[12:15], s%d offen %s' % (vr(F(tl)), 28 + tl, opt.get('k2st', '')))
        return o
    def mir(tl):
        o = []
        for q in (1, 2, 3):
            o.append('v_bfi_b32 v%d, s27, v%d, v%d' % (M(tl) + q, F(tl) + 4 - q, F(tl) + 3 - q))
        o.append('s_waitcnt lgkmcnt(%d)' % (1 - tl))
        o.append('v_bfi_b32 v%d, s27, v%d, v%d' % (M(tl), 1 + tl, F(tl) + 3))
        o.append('buffer_store_dwordx4 %s, v6, s[12:15], s%d offen %s' % (vr(M(tl)), 30 + tl, opt.get('k2st', '')))
        return o
    def weave(xs, ys, step):
        ys = list(ys)
        for n, x in enumerate(xs):
            if n % step == 0 and ys:
                a(ys.pop(0))
            a(x)
        for y in ys: a(y)
    weave(tw(0, 0), [b1(0, 1, 0), b1(0, 1, 1), b1(1, 1, 0), b1(1, 1, 1)], 3)
    weave(tw(0, 1), [], 3)
    t = tw(1, 0)
    weave(t, [b2(0, 0, 0), b2(0, 1, 0), b2(0, 0, 1), b2(0, 1, 1)], 3)
    t = tw(1, 1)
    weave(t, [b2(1, 0, 0), b2(1, 1, 0)], 3)
    f = fin(0)
    weave(f, [b2(1, 0, 1), b2(1, 1, 1)], 2)
    for x in fin(1): a(x)
    a('s_and_b32 s21, s3, 127\ns_cbranch_scc0 K2_FIN')
    for x in mir(0): a(x)
    for x in mir(1): a(x)
    a('K2_FIN:')
    stamp_out(a, opt, 1, 6)
    a('K2_END:\ns_endpgm')
    return a.finish(opt.get('v'))

def gen_k3(opt, nw):
    ka, fa, oa, kb, fb, ob = opt['diag'].split(',')
    amp = opt.get('amp', 20)
    a = Asm()
    a("""
k3_kernel:
s_cmp_ge_u32 s2, 1
s_cbranch_scc1 K3_END
s_load_dwordx2 s[8:9], s[0:1], 96
s_mov_b32 s10, -1
s_mov_b32 s11, 0x20000
s_waitcnt lgkmcnt(0)
""")
    for idx, (k, f, o) in enumerate(((ka, fa, oa), (kb, fb, ob))):
        k = int(k); f = int(f)
        a('v_mov_b32 v2, %s' % ('-1' if o == 'min' else '0'))
        a('v_mov_b32 v3, v0')
        a('K3_L%d:' % idx)
        a('v_min_u32 v4, %d, v3' % (nw[k] - 1))
        a('v_lshlrev_b32 v4, 6, v4')
        a('v_add_u32 v4, %d, v4' % (((16 + k) << 20) + 4 * f))
        a('buffer_load_dword v5, v4, s[8:11], 0 offen')
        a('s_waitcnt vmcnt(0)')
        a('v_%s_u32 v2, v2, v5' % o)
        a('v_add_u32 v3, 64, v3')
        a('s_nop 1\nv_readfirstlane_b32 s12, v3\ns_nop 1')
        a('s_cmp_lt_u32 s12, %d' % nw[k])
        a('s_cbranch_scc1 K3_L%d' % idx)
        a('s_mov_b32 s13, 0\nv_readfirstlane_b32 s%d, v2' % (20 + idx))
        a('K3_R%d:' % idx)
        a('s_nop 4\nv_readlane_b32 s14, v2, s13\ns_nop 4')
        a('s_%s_u32 s%d, s%d, s14' % (o, 20 + idx, 20 + idx))
        a('s_add_u32 s13, s13, 1\ns_cmp_lt_u32 s13, 64\ns_cbranch_scc1 K3_R%d' % idx)
    a("""
s_sub_u32 s20, s20, s21
s_min_u32 s20, s20, 5000
s_mul_i32 s20, s20, %d
s_memrealtime s[22:23]
s_waitcnt lgkmcnt(0)
K3_S:
s_memrealtime s[24:25]
s_waitcnt lgkmcnt(0)
s_sub_u32 s24, s24, s22
s_cmp_lt_u32 s24, s20
s_cbranch_scc1 K3_S
K3_END:
s_endpgm
""" % amp)
    return a.finish()

def kd(name, vgpr, sgpr):
    return '''.p2align 6
.amdhsa_kernel %s
  .amdhsa_next_free_vgpr %d
  .amdhsa_next_free_sgpr %d
  .amdhsa_accum_offset %d
  .amdhsa_group_segment_fixed_size 0
  .amdhsa_kernarg_size 104
  .amdhsa_user_sgpr_count 2
  .amdhsa_user_sgpr_kernarg_segment_ptr 1
  .amdhsa_system_sgpr_workgroup_id_x 1
.end_amdhsa_kernel
''' % (name, vgpr, sgpr, (vgpr + 3) // 4 * 4)

def build(opt):
    tabs = dz.build_tables()
    hdr = open('cdna_kernels/%s.s.ref' % NAME).read().split('; Override launch')[0]
    s = hdr
    s += '; @launch kernel=k1_kernel grid=(224,1,1) block=(256,1,1) lds=16384\n'
    s += '; @launch kernel=k2_kernel grid=(258,1,1) block=(256,1,1) lds=14336\n'
    for i in range(opt.get('extra', 0)):
        s += '; @launch kernel=k0_kernel grid=(256,1,1) block=(256,1,1) lds=0\n'
    if opt.get('diag'):
        s += '; @launch kernel=k3_kernel grid=(1,1,1) block=(64,1,1) lds=0\n'
    s += '.amdgcn_target "amdgcn-amd-amdhsa--gfx950"\n.text\n'
    s += '.globl k1_kernel\n.p2align 8\n.type k1_kernel,@function\n' + gen_k1(opt)
    s += '.globl k2_kernel\n.p2align 8\n.type k2_kernel,@function\n' + gen_k2(opt)
    if opt.get('extra'):
        s += '.globl k0_kernel\n.p2align 8\n.type k0_kernel,@function\nk0_kernel:\n    s_endpgm\n'
    if opt.get('diag'):
        s += '.globl k3_kernel\n.p2align 8\n.type k3_kernel,@function\n' + gen_k3(opt, [224 * 4, 258 * 4])
    s += '.p2align 8\n.type K2_TAB,@object\nK2_TAB:\n' + emit_data(k2_tables(tabs))
    s += '.p2align 8\n.type K1_TAB,@object\nK1_TAB:\n' + emit_data(k1_tables(tabs))
    s += '.section .rodata,"a"\n' + kd('k1_kernel', 128, 64) + kd('k2_kernel', 152, 64)
    if opt.get('extra'):
        s += kd('k0_kernel', 8, 16)
    if opt.get('diag'):
        s += kd('k3_kernel', 8, 32)
    return s

if __name__ == '__main__':
    out = sys.argv[1]
    opt = {}
    for kv in sys.argv[2:]:
        k, _, v = kv.partition('=')
        opt[k] = int(v) if v.lstrip('-').isdigit() else (v.replace('+', ' ') if v else 1)
    s = build(opt)
    open(out, 'w').write(s)
    print(out, len(s), 'bytes')
```

```python
import sys, numpy as np
from asmlib import Asm
import design as dz
from gen import NAME, XB, OUTB, vr, op_bytes, emit_data, staged_reads, kd

KN = NAME + '_kernel'
NWG = 258
CH = 16384
WSB = 2 * 128 * CH
CELL = WSB
L_CONST = 16384
L_STG = 28672
LDS = L_STG + 4 * 4608
SB = 72
EM_LO, EM_HI = 0x00F0000F, 0xF0000F00

def stamp(a, opt, i):
    if opt.get('stamp'):
        a('%s s[%d:%d]' % ('s_memtime' if opt.get('cyc') else 's_memrealtime', SB + 2 * i, SB + 1 + 2 * i))

def stamp_out(a, opt, n):
    if not opt.get('stamp'):
        return
    stamp(a, opt, n - 2)
    a('s_waitcnt vmcnt(0)')
    stamp(a, opt, n - 1)
    a('s_getreg_b32 s58, hwreg(HW_REG_XCC_ID)')
    a('s_getreg_b32 s59, hwreg(HW_REG_HW_ID)')
    a('s_lshl_b32 s62, s2, 2\ns_add_u32 s62, s62, s4\ns_lshl_b32 s62, s62, 6\ns_add_u32 s62, s62, %d' % (16 << 20))
    a('s_waitcnt lgkmcnt(0)\ns_add_u32 s60, s12, s62\ns_addc_u32 s61, s13, 0')
    a('v_mov_b32 v0, 0')
    for i in range(n):
        a('v_mov_b32 v1, s%d\nglobal_store_dword v0, v1, s[60:61] offset:%d' % (SB + 2 * i, 4 * i))
    a('v_mov_b32 v1, s55\nglobal_store_dword v0, v1, s[60:61] offset:52')
    a('v_mov_b32 v1, s58\nglobal_store_dword v0, v1, s[60:61] offset:56')
    a('v_mov_b32 v1, s59\nglobal_store_dword v0, v1, s[60:61] offset:60')

def k2_table(tabs):
    b = b''
    for c in range(2):
        b += op_bytes(tabs['k2B1'][c])
    for ta in range(2):
        for x in tabs['k2tw'][ta]:
            b += x.astype('<f4').tobytes()
    for mu in range(2):
        for ta in range(2):
            b += op_bytes(tabs['k2B2'][mu][ta])
    act = [l for l in range(64) if ((l & 15) >> 2) == (l >> 4)]
    for v in range(3):
        for w in range(4):
            for k in range(2):
                b += op_bytes(tabs['k2A'][v][w][k][act])
    return b

C2 = 128
VA = 176

def gen(opt):
    a = Asm()
    V = dict(b0=VA, b1=VA + 1, f=VA + 2, m=VA + 3, p=VA + 4, tg=VA + 5, t=VA + 6, u=VA + 7)
    a('''
%s:
s_cmp_ge_u32 s2, %d
s_cbranch_scc1 L_END
''' % (KN, NWG))
    stamp(a, opt, 0)
    a('''
s_bfe_u32 s5, s2, 0x10003
s_and_b32 s3, s2, 1
s_cmp_ge_u32 s2, 256
s_cselect_b32 s5, s3, s5
s_mul_i32 s7, s5, 40
s_load_dwordx2 s[8:9], s[0:1], s7
s_load_dwordx2 s[12:13], s[0:1], 96
s_load_dwordx2 s[44:45], s[0:1], 80
v_lshrrev_b32 v6, 6, v0
v_and_b32 v0, 63, v0
v_readfirstlane_b32 s4, v6
s_and_b32 s3, s2, 7
s_lshr_b32 s6, s2, 4
v_lshrrev_b32 v6, 4, v0
v_bfe_u32 v7, v0, 2, 2
v_mul_u32_u24 v2, 7168, v6
v_mul_u32_u24 v7, 114688, v7
v_lshrrev_b32 v3, 3, v0
v_and_b32 v3, 2, v3
v_xor_b32 v4, v3, v0
v_and_b32 v4, 3, v4
v_lshlrev_b32 v4, 4, v4
v_add3_u32 v2, v2, v7, v4
s_lshl_b32 s22, s4, 12
s_mov_b32 m0, s22
s_lshl_b32 s24, s4, 9
s_add_u32 s24, s24, s3
s_mul_i32 s24, s24, 896
s_mul_i32 s25, s6, 56
s_add_u32 s24, s24, s25
s_add_u32 s25, s24, 27648
s_add_u32 s26, s24, 55296
s_add_u32 s27, s24, 82944
s_mov_b32 s10, %d
s_mov_b32 s11, 0x20000
s_mov_b32 s14, %d
s_mov_b32 s15, 0x20000
s_lshl_b32 s20, s5, 7
s_add_u32 s20, s20, %d
v_lshlrev_b32 v1, 4, v0
s_cmp_ge_u32 s2, 256
s_waitcnt lgkmcnt(0)
''' % (XB, WSB, CELL))
    stamp(a, opt, 1)
    a('''
s_cbranch_scc1 L_SKIP1
buffer_load_dwordx4 v2, s[8:11], s24 offen lds
buffer_load_dwordx4 v2, s[8:11], s25 offen offset:1024 lds
buffer_load_dwordx4 v2, s[8:11], s26 offen offset:2048 lds
buffer_load_dwordx4 v2, s[8:11], s27 offen offset:3072 lds
L_SKIP1:
s_load_dwordx2 s[34:35], s[12:13], s20
''')
    a('''
s_getpc_b64 s[16:17]
L_PC:
s_lshl_b32 s33, s6, 3
s_add_u32 s33, s33, s3
s_cmp_ge_u32 s2, 256
s_cselect_b32 s33, 128, s33
s_mul_i32 s53, s4, 3072
s_add_u32 s21, s53, K2_TAB-L_PC
s_add_u32 s16, s16, s21
s_addc_u32 s17, s17, 0
s_cmp_eq_u32 s33, 0
s_cselect_b32 s20, 2048, 0
s_cmp_eq_u32 s33, 128
s_cselect_b32 s20, 4096, s20
s_cmp_eq_u32 s4, 3
s_cselect_b32 s20, s20, 0
s_add_u32 s18, s16, s20
s_addc_u32 s19, s17, 0
s_add_u32 s53, s53, %d
s_cmp_ge_u32 s2, 256
s_cbranch_scc1 L_CONS
''' % L_CONST)
    a('''
s_lshl_b32 s20, s4, 1
v_bfe_u32 v32, v0, 1, 1
v_add_u32 v32, s20, v32
v_and_b32 v33, 1, v0
v_cmp_eq_u32 vcc, 0, v32
v_lshlrev_b32 v34, 3, v33
v_lshlrev_b32 v35, 2, v33
v_cndmask_b32 v32, v32, v34, vcc
v_cndmask_b32 v35, v35, 0, vcc
v_and_b32 v34, 1, v32
v_cvt_f32_u32 v32, v32
v_cvt_f32_u32 v35, v35
v_mul_u32_u24 v34, 0x8000, v34
v_mul_f32 v32, 0x3d800000, v32
v_mul_f32 v35, 0x3d800000, v35
v_lshl_or_b32 v34, v34, 16, v34
''')
    for i in range(8, 12): a('v_mov_b32 v%d, 0' % i)
    a('s_mov_b32 exec_lo, 0x%x\ns_mov_b32 exec_hi, 0x%x' % (EM_LO, EM_HI))
    for p in range(4):
        a('v_cos_f32 v36, v35\nv_add_f32 v35, v35, v32\nv_cos_f32 v37, v35')
        a('v_add_f32 v35, v35, v32' if p < 3 else 's_nop 0')
        a('v_cvt_pk_bf16_f32 v%d, v36, v37' % (8 + p))
    a('s_mov_b64 exec, -1')
    for p in range(4): a('v_xor_b32 v%d, v34, v%d' % (12 + p, 8 + p))
    a('''
v_lshlrev_b32 v38, 3, v0
v_and_b32 v38, 0x70, v38
v_lshrrev_b32 v39, 1, v0
v_and_b32 v39, 24, v39
v_add_u32 v39, s3, v39
v_cvt_f32_u32 v39, v39
v_cvt_f32_u32 v44, v33
v_mul_f32 v39, 0x3a000000, v39
v_mul_f32 v40, 0x3e800000, v44
v_mul_f32 v41, 0x3f400000, v44
v_add_u32 v45, s20, v38
s_sub_u32 s21, s20, 16
v_sub_u32 v46, s21, v38
v_add_u32 v47, 1, v45
v_add_u32 v48, 1, v46
v_mov_b32 v42, v40
v_mov_b32 v43, v41
s_cmp_lg_u32 s4, 0
s_cbranch_scc1 L_REG
v_cvt_f32_u32 v49, v6
v_cmp_eq_u32 vcc, 0, v38
v_mul_f32 v49, 0.5, v49
v_add_u32 v46, 8, v38
v_mul_f32 v49, v49, v44
v_add_f32 v43, 0x3e800000, v40
v_cndmask_b32 v42, v40, v49, vcc
L_REG:
''')
    for grp, (tv, pv) in enumerate(((45, 42), (46, 43), (47, 40), (48, 41))):
        a('v_cvt_f32_i32 v%d, v%d' % (tv, tv))
        a('v_fma_f32 v50, v%d, v39, v%d' % (tv, pv))
        a('v_mul_f32 v%d, 0x3c800000, v%d' % (tv, tv))
        for p in range(4):
            a('v_cos_f32 v36, v50\nv_sin_f32 v37, v50')
            a('v_add_f32 v50, v50, v%d' % tv if p < 3 else 's_nop 0')
            a('v_cvt_pk_bf16_f32 v%d, v36, v37' % (16 + 4 * grp + p))
    a('s_cmp_lg_u32 s4, 0\ns_cbranch_scc1 L_REG2')
    for p in range(4): a('v_and_b32 v%d, 0xffff, v%d' % (16 + p, 16 + p))
    for p in range(4): a('v_and_b32 v%d, 0xffff0000, v%d' % (20 + p, 20 + p))
    a('L_REG2:')
    a('''
v_lshlrev_b32 v3, 4, v3
v_and_b32 v4, 3, v0
v_lshl_add_u32 v3, v4, 3, v3
v_and_b32 v7, 0x3c0, v1
v_add_u32 v3, v3, v7
v_lshrrev_b32 v5, 3, v0
v_mul_u32_u24 v5, %d, v5
v_and_b32 v7, 0x70, v1
v_add_u32 v5, v5, v7
s_mul_i32 s20, s4, 4608
s_add_u32 s20, s20, %d
v_lshrrev_b32 v2, 2, v0
v_mul_u32_u24 v2, 72, v2
v_lshl_add_u32 v2, v4, 4, v2
v_add_u32 v2, s20, v2
v_xor_b32 v4, 32, v3
s_lshl_b32 s21, s6, 3
s_and_b32 s21, s21, 32
s_add_u32 s22, s20, s21
s_xor_b32 s21, s21, 32
s_add_u32 s23, s20, s21
v_and_b32 v7, 15, v0
v_mul_u32_u24 v7, 72, v7
v_lshl_add_u32 v7, v6, 3, v7
v_add_u32 v6, s22, v7
v_add_u32 v7, s23, v7
s_mul_i32 s20, s5, %d
s_lshl_b32 s21, s3, 7
s_add_u32 s20, s20, s21
s_lshl_b32 s21, s6, 10
s_add_u32 s20, s20, s21
s_mul_i32 s21, s4, %d
s_add_u32 s28, s20, s21
s_add_u32 s30, s28, %d
s_sub_u32 s31, s20, s21
s_add_u32 s29, s31, %d
s_add_u32 s31, s31, %d
s_add_u32 s20, s20, %d
s_cmp_eq_u32 s4, 0
s_cselect_b32 s29, s20, s29
s_waitcnt lgkmcnt(0)
s_add_u32 s34, s34, 0x9e3779b9
s_addc_u32 s35, s35, 0x7f4a7c15
v_mov_b32 v32, s34
v_mov_b32 v33, s35
s_mov_b32 exec_lo, 0
s_mov_b32 exec_hi, 0xffff0000
ds_write_b64 v7, v[32:33]
ds_write_b64 v7, v[32:33] offset:1152
ds_write_b64 v7, v[32:33] offset:2304
ds_write_b64 v7, v[32:33] offset:3456
s_mov_b64 exec, -1
s_waitcnt vmcnt(0) lgkmcnt(0)
''' % (16 * CH, L_STG, 128 * CH, 2 * CH, CH, 16 * CH, 15 * CH, 8 * CH))
    stamp(a, opt, 2)
    if opt.get('stamp'): a('s_waitcnt lgkmcnt(0)')
    a('s_barrier')
    CD = ['s_mov_b32 m0, s53',
          'global_load_lds_dwordx4 v1, s[16:17]',
          'global_load_lds_dwordx4 v1, s[18:19] offset:1024',
          'global_load_lds_dwordx4 v1, s[18:19] offset:2048']
    ACC = lambda bp, nt: 32 + 4 * (bp + 4 * nt)
    order = [(kap, nt, bp) for kap in range(2) for nt in range(2) for bp in range(4)]
    OPR = {o: 64 + 4 * i for i, o in enumerate(order)}
    cnt = [0]
    def rd(o):
        kap, nt, bp = o
        for hh in range(2):
            a('ds_read_b64_tr_b16 %s, v%d offset:%d' % (vr(OPR[o] + 2 * hh, 2), 3 + nt, (2 * kap + hh) * 4096 + bp * 1024))
        cnt[0] += 1
        if cnt[0] == 7:
            for t in CD: a(t)
    def mf(o):
        kap, nt, bp = o
        a('v_mfma_f32_16x16x32_bf16 %s, %s, %s, %s' % (vr(ACC(bp, nt)), vr(8 + 4 * kap), vr(OPR[o]), vr(ACC(bp, nt)) if kap else '0'))
    A2 = lambda al, nt: 64 + 4 * (al + 2 * nt)
    def cv(nt, p):
        return ['v_cvt_pk_bf16_f32 v%d, v%d, v%d' % (A2(al, nt) + p, ACC(p, nt) + 2 * al, ACC(p, nt) + 2 * al + 1) for al in range(2)]
    after = {12: cv(0, 0), 13: cv(0, 1), 14: cv(0, 2), 15: cv(0, 3)}
    staged_reads(a, order, rd, mf, after)
    D2 = lambda al, nu, nt: 96 + 4 * (nt + 2 * nu + 4 * al)
    def m2(al, nu, nt):
        a('v_mfma_f32_16x16x32_bf16 %s, %s, %s, 0' % (vr(D2(al, nu, nt)), vr(A2(al, nt)), vr(16 + 4 * (2 * al + nu))))
    groups = [(al, nu) for al in range(2) for nu in range(2)]
    def pack(g, nt):
        al, nu = groups[g]
        P = 32 + 4 * g + 2 * nt
        return ['v_cvt_pk_bf16_f32 v%d, v%d, v%d' % (P + h, D2(al, nu, nt) + 2 * h, D2(al, nu, nt) + 2 * h + 1) for h in range(2)]
    def wr(g, nt):
        return 'ds_write_b64 v%d, %s offset:%d' % (6 + nt, vr(32 + 4 * g + 2 * nt, 2), 1152 * g)
    for g in range(4):
        m2(*groups[g], 0)
        for t in cv(1, g): a(t)
    for g in range(4):
        m2(*groups[g], 1)
        for t in pack(g, 0): a(t)
        a(wr(g, 0))
    a('v_add_u32 v8, 2304, v2\ns_bfm_b64 exec, 48, 0')
    for g in range(4):
        for t in pack(g, 1): a(t)
        a(wr(g, 1))
    a('s_mov_b64 exec, -1')
    for g in range(4):
        a('ds_read2_b64 %s, v%d offset0:%d offset1:%d' % (vr(48 + 4 * g), 8 if g >= 2 else 2, 144 * (g & 1), 144 * (g & 1) + 1))
    for g in range(4):
        a('s_waitcnt lgkmcnt(%d)' % (3 - g))
        a('buffer_store_dwordx4 %s, v5, s[12:15], s%d offen %s' % (vr(48 + 4 * g), 28 + [0, 1, 2, 3][g], opt.get('k1st', 'sc1')))
    stamp(a, opt, 3)
    a('s_branch L_P2\nL_CONS:\ns_waitcnt lgkmcnt(0)\ns_add_u32 s34, s34, 0x9e3779b9\ns_addc_u32 s35, s35, 0x7f4a7c15')
    for t in CD: a(t)
    a('s_waitcnt vmcnt(0)\nL_P2:')
    a('''
v_lshrrev_b32 v6, 4, v0
v_lshlrev_b32 v{b0}, 12, v6
v_and_b32 v7, 0xc0, v1
v_add_u32 v{b0}, v{b0}, v7
v_and_b32 v6, 1, v6
v_lshl_add_u32 v{b0}, v6, 5, v{b0}
v_and_b32 v6, 3, v0
v_min_u32 v7, 2, v6
v_xor_b32 v{b1}, 32, v{b0}
v_lshl_add_u32 v{b0}, v6, 3, v{b0}
v_lshl_add_u32 v{b1}, v7, 3, v{b1}
v_and_b32 v{f}, 31, v0
v_lshrrev_b32 v6, 5, v0
v_lshl_add_u32 v6, v{f}, 1, v6
v_add_u32 v7, 1, v6
v_cmp_ne_u32 vcc, 56, v7
v_mov_b32 v{t}, 0x40000000
v_lshlrev_b32 v6, 4, v6
v_cndmask_b32 v7, 0, v7, vcc
v_cmp_gt_u32 vcc, 28, v{f}
v_sub_u32 v{m}, 880, v6
v_and_b32 v{u}, 1, v7
v_cndmask_b32 v{f}, v{t}, v6, vcc
v_cndmask_b32 v{m}, v{t}, v{m}, vcc
v_lshlrev_b32 v7, 1, v7
v_and_b32 v7, 0x7c, v7
v_lshl_add_u32 v{p}, v{u}, 7, v7
s_lshl_b32 s22, s4, 12
s_and_b32 s20, s4, 1
s_lshl_b32 s20, s20, 5
s_sub_u32 s20, 56, s20
s_add_u32 s20, s20, s22
v_and_b32 v{tg}, 0x3c0, v1
v_add_u32 v{tg}, s20, v{tg}
s_lshl_b32 s20, s4, 9
s_add_u32 s20, s20, {ca}
v_and_b32 v6, 0xf0, v1
v_add_u32 v6, s20, v6
v_add_u32 v7, {cc}, v1
'''.format(ca=L_CONST + 10240, cc=L_CONST, **V))
    for i in range(8): a('v_mov_b32 v%d, 0' % (C2 + i))
    a('''
s_mov_b32 s46, %d
s_mov_b32 s47, 0x20000
s_lshl_b32 s21, s4, 9
s_add_u32 s21, s21, s33
s_mul_i32 s21, s21, 1792
s_mul_i32 s20, s5, 896
s_add_u32 s48, s21, s20
s_add_u32 s49, s48, %d
s_sub_u32 s50, s20, s21
s_add_u32 s51, s50, %d
s_add_u32 s50, s50, %d
s_mov_b32 s52, 0xffff
s_and_b32 s21, s33, 127
s_lshl_b32 s20, s5, 7
s_add_u32 s21, s21, s20
s_lshl_b32 s21, s21, 14
s_add_u32 s54, s22, s21
s_mov_b32 s55, 0x40000
s_waitcnt vmcnt(4)
s_barrier
s_mov_b32 m0, s22
s_mov_b32 exec_lo, 0x%x
s_mov_b32 exec_hi, 0x%x
ds_read_b128 %s, v6
ds_read_b128 %s, v6 offset:256
s_mov_b64 exec, -1
''' % (OUTB, 256 * 1792, 1792 * 1792, 2048 * 1792, EM_LO, EM_HI, vr(C2), vr(C2 + 4)))
    for i in range(10): a('ds_read_b128 %s, v7 offset:%d' % (vr(C2 + 8 + 4 * i), 1024 * i))
    ld = opt.get('k2ld', 'sc1')
    if not opt.get('early'): a('s_waitcnt vmcnt(0)')
    stamp(a, opt, 4)
    a('''
s_cmp_lt_u32 s2, 256
s_cbranch_scc1 L_POLL0
s_mov_b64 exec, 15
L_SENT:
buffer_load_dwordx4 v1, s[12:15], s54 offen {ld} lds
s_waitcnt vmcnt(0)
ds_read_b64 v[8:9], v{tg}
s_waitcnt lgkmcnt(0)
v_cmp_ne_u64 vcc, s[34:35], v[8:9]
s_cbranch_vccz L_POLL0
s_sub_u32 s55, s55, 1
s_cbranch_scc0 L_SENT
L_POLL0:
s_mov_b64 s[56:57], -1
s_mov_b64 s[58:59], -1
s_mov_b64 s[60:61], -1
s_mov_b64 s[62:63], -1
L_POLL:
'''.format(ld=ld, **V))
    for k in range(4):
        a('s_mov_b64 exec, s[%d:%d]\ns_cbranch_execz L_NO%d' % (56 + 2 * k, 57 + 2 * k, k))
        a('buffer_load_dwordx4 v1, s[12:15], s54 offen offset:%d %s lds' % (1024 * k, ld))
        a('L_NO%d:' % k)
    a('s_mov_b64 exec, -1\ns_waitcnt vmcnt(0)')
    for k in range(4): a('ds_read_b64 %s, v%d offset:%d' % (vr(8 + 2 * k, 2), V['tg'], 1024 * k))
    for k in range(4):
        a('s_waitcnt lgkmcnt(%d)' % (3 - k))
        a('v_cmp_ne_u64 s[%d:%d], s[34:35], %s' % (56 + 2 * k, 57 + 2 * k, vr(8 + 2 * k, 2)))
    a('''
s_or_b64 s[64:65], s[56:57], s[58:59]
s_or_b64 s[66:67], s[60:61], s[62:63]
s_or_b64 s[64:65], s[64:65], s[66:67]
s_cbranch_scc0 L_GO
s_sub_u32 s55, s55, 1
s_cbranch_scc0 L_POLL
L_GO:
''')
    stamp(a, opt, 5)
    if opt.get('stamp'): a('s_waitcnt lgkmcnt(0)')
    a('s_barrier')
    DA = lambda ta, sub: 8 + 4 * (sub + 4 * ta)
    order = [(kap, ta, sub) for kap in range(2) for ta in range(2) for sub in range(4)]
    OPR = {o: 40 + 4 * i for i, o in enumerate(order)}
    def rd(o):
        kap, ta, sub = o
        for hh in range(2):
            a('ds_read_b64_tr_b16 %s, v%d offset:%d' % (vr(OPR[o] + 2 * hh, 2), V['b0'] + ta, (4 * kap + 2 * hh) * 128 + sub * 1024))
    def mf(o):
        kap, ta, sub = o
        a('v_mfma_f32_16x16x32_bf16 %s, %s, %s, %s' % (vr(DA(ta, sub)), vr(C2 + 4 * kap), vr(OPR[o]), vr(DA(ta, sub)) if kap else '0'))
    A1 = lambda tl, ta: 40 + 4 * (tl + 2 * ta)
    def cv(ta, p):
        return ['v_cvt_pk_bf16_f32 v%d, v%d, v%d' % (A1(tl, ta) + p, DA(ta, p) + 2 * tl, DA(ta, p) + 2 * tl + 1) for tl in range(2)]
    after = {12: cv(0, 0), 13: cv(0, 1), 14: cv(0, 2), 15: cv(0, 3)}
    staged_reads(a, order, rd, mf, after)
    D1 = lambda tl, ta, c: 72 + 4 * (c + 2 * ta + 4 * tl)
    def b1(tl, ta, c):
        return 'v_mfma_f32_16x16x32_bf16 %s, %s, %s, 0' % (vr(D1(tl, ta, c)), vr(A1(tl, ta)), vr(C2 + 8 + 4 * c))
    k = 0
    for tl in range(2):
        for c in range(2):
            a(b1(tl, 0, c))
            for t in cv(1, k): a(t)
            k += 1
    HT = lambda tl, ta: 8 + 8 * (ta + 2 * tl)
    HP = lambda tl, ta: 56 + 4 * (ta + 2 * tl)
    def tw(tl, ta):
        r, i, h, co, si = D1(tl, ta, 0), D1(tl, ta, 1), HT(tl, ta), C2 + 16 + 8 * ta, C2 + 20 + 8 * ta
        o = []
        if opt.get('pk'):
            for q in (0, 2):
                o.append('v_pk_mul_f32 %s, %s, %s' % (vr(h + q, 2), vr(co + q, 2), vr(r + q, 2)))
                o.append('v_pk_mul_f32 %s, %s, %s' % (vr(h + 4 + q, 2), vr(co + q, 2), vr(i + q, 2)))
            for q in (0, 2):
                o.append('v_pk_fma_f32 %s, %s, %s, %s' % (vr(h + q, 2), vr(si + q, 2), vr(i + q, 2), vr(h + q, 2)))
                o.append('v_pk_fma_f32 %s, %s, %s, %s neg_lo:[1,0,0] neg_hi:[1,0,0]' % (vr(h + 4 + q, 2), vr(si + q, 2), vr(r + q, 2), vr(h + 4 + q, 2)))
        else:
            for q in range(4):
                o.append('v_mul_f32 v%d, v%d, v%d' % (h + q, co + q, r + q))
                o.append('v_mul_f32 v%d, v%d, v%d' % (h + 4 + q, co + q, i + q))
            for q in range(4):
                o.append('v_fmac_f32 v%d, v%d, v%d' % (h + q, si + q, i + q))
                o.append('v_fma_f32 v%d, -v%d, v%d, v%d' % (h + 4 + q, si + q, r + q, h + 4 + q))
        for q in range(4):
            o.append('v_cvt_pk_bf16_f32 v%d, v%d, v%d' % (HP(tl, ta) + q, h + 2 * q, h + 2 * q + 1))
        return o
    D2 = lambda tl, mu: 40 + 4 * (mu + 2 * tl)
    def b2(tl, mu, ta):
        return 'v_mfma_f32_16x16x32_bf16 %s, %s, %s, %s' % (vr(D2(tl, mu)), vr(HP(tl, ta)), vr(C2 + 32 + 4 * (2 * mu + ta)), vr(D2(tl, mu)) if ta else '0')
    F = lambda tl: 104 + 4 * tl
    M = lambda tl: 112 + 4 * tl
    def fin(tl):
        o = []
        for mu in range(2):
            for h in range(2):
                o.append('v_cvt_pk_bf16_f32 v%d, v%d, v%d' % (F(tl) + 2 * mu + h, D2(tl, mu) + 2 * h, D2(tl, mu) + 2 * h + 1))
        o.append('v_permlane16_swap_b32 v%d, v%d' % (F(tl), F(tl) + 2))
        o.append('v_permlane16_swap_b32 v%d, v%d' % (F(tl) + 1, F(tl) + 3))
        o.append('ds_bpermute_b32 v%d, v%d, v%d' % (2 + tl, V['p'], F(tl)))
        o.append('buffer_store_dwordx4 %s, v%d, s[44:47], s%d offen %s' % (vr(F(tl)), V['f'], 48 + tl, opt.get('k2st', 'sc1')))
        return o
    def mir(tl):
        o = []
        for q in (1, 2, 3):
            o.append('v_bfi_b32 v%d, s52, v%d, v%d' % (M(tl) + q, F(tl) + 4 - q, F(tl) + 3 - q))
        o.append('s_waitcnt lgkmcnt(%d)' % (1 - tl))
        o.append('v_bfi_b32 v%d, s52, v%d, v%d' % (M(tl), 2 + tl, F(tl) + 3))
        o.append('buffer_store_dwordx4 %s, v%d, s[44:47], s%d offen %s' % (vr(M(tl)), V['m'], 50 + tl, opt.get('k2st', 'sc1')))
        return o
    def weave(xs, ys, step):
        ys = list(ys)
        for n, x in enumerate(xs):
            if n % step == 0 and ys:
                a(ys.pop(0))
            a(x)
        for y in ys: a(y)
    weave(tw(0, 0), [b1(0, 1, 0), b1(0, 1, 1), b1(1, 1, 0), b1(1, 1, 1)], 3)
    weave(tw(0, 1), [], 3)
    weave(tw(1, 0), [b2(0, 0, 0), b2(0, 1, 0), b2(0, 0, 1), b2(0, 1, 1)], 3)
    weave(tw(1, 1), [b2(1, 0, 0), b2(1, 1, 0)], 3)
    weave(fin(0), [b2(1, 0, 1), b2(1, 1, 1)], 2)
    for x in fin(1): a(x)
    a('s_and_b32 s21, s33, 127\ns_cbranch_scc0 L_SPEC')
    for x in mir(0): a(x)
    for x in mir(1): a(x)
    a('s_branch L_FIN\nL_SPEC:')
    a('''
s_cmp_lt_u32 s2, 256
s_cbranch_scc1 L_FIN
s_cmp_lg_u32 s4, 0
s_cbranch_scc1 L_FIN
s_lshl_b32 s20, s5, 7
s_add_u32 s20, s20, %d
v_mov_b32 v4, s20
v_mov_b32 v6, s34
v_mov_b32 v7, s35
s_mov_b64 exec, 1
global_store_dwordx2 v4, v[6:7], s[12:13]
s_mov_b64 exec, -1
L_FIN:
''' % CELL)
    stamp_out(a, opt, 8)
    a('L_END:\ns_endpgm')
    return a.finish(opt.get('v'))

def build(opt):
    tabs = dz.build_tables()
    hdr = open('cdna_kernels/%s.s.ref' % NAME).read().split('; Override launch')[0]
    s = hdr
    s += '; @launch grid=(%d,1,1) block=(256,1,1) lds=%d\n' % (NWG, LDS)
    s += '.amdgcn_target "amdgcn-amd-amdhsa--gfx950"\n.text\n'
    s += '.globl %s\n.p2align 8\n.type %s,@function\n' % (KN, KN) + gen(opt)
    s += '.p2align 8\n.type K2_TAB,@object\nK2_TAB:\n' + emit_data(k2_table(tabs))
    s += '.section .rodata,"a"\n' + kd(KN, 184, 96)
    return s

if __name__ == '__main__':
    out = sys.argv[1]
    opt = {}
    for kv in sys.argv[2:]:
        k, _, v = kv.partition('=')
        opt[k] = int(v) if v.lstrip('-').isdigit() else (v.replace('+', ' ') if v else 1)
    s = build(opt)
    open(out, 'w').write(s)
    print(out, len(s), 'bytes')
```

```python
import sys, numpy as np
from asmlib import Asm
import design as dz
from gen import gen_k3, NAME, XB, OUTB, vr, op_bytes, emit_data, staged_reads, kd

KN = NAME + '_kernel'
NWG = 258
CH = 16384
WSB = 2 * 128 * CH
HINT = WSB + 4096
CELL = WSB
L_CONST = 16384
L_STG = 28672
LDS = L_STG + 4 * 4608
SB = 72
EM_LO, EM_HI = 0x00F0000F, 0xF0000F00

def stamp(a, opt, i):
    if opt.get('stamp'):
        a('%s s[%d:%d]' % ('s_memtime' if opt.get('cyc') else 's_memrealtime', SB + 2 * i, SB + 1 + 2 * i))

def stamp_out(a, opt, n):
    if not opt.get('stamp'):
        return
    stamp(a, opt, n - 2)
    a('s_waitcnt vmcnt(0)')
    stamp(a, opt, n - 1)
    a('s_getreg_b32 s58, hwreg(HW_REG_XCC_ID)')
    a('s_getreg_b32 s59, hwreg(HW_REG_HW_ID)')
    a('s_lshl_b32 s62, s2, 2\ns_add_u32 s62, s62, s4\ns_lshl_b32 s62, s62, 6\ns_add_u32 s62, s62, %d' % (16 << 20))
    a('s_waitcnt lgkmcnt(0)\ns_add_u32 s60, s12, s62\ns_addc_u32 s61, s13, 0')
    a('v_mov_b32 v0, 0')
    for i in range(n):
        a('v_mov_b32 v1, s%d\nglobal_store_dword v0, v1, s[60:61] offset:%d' % (SB + 2 * i, 4 * i))
    a('v_mov_b32 v1, s55\nglobal_store_dword v0, v1, s[60:61] offset:52')
    a('v_mov_b32 v1, s58\nglobal_store_dword v0, v1, s[60:61] offset:56')
    a('v_mov_b32 v1, s59\nglobal_store_dword v0, v1, s[60:61] offset:60')

def k2_table(tabs):
    b = b''
    for c in range(2):
        b += op_bytes(tabs['k2B1'][c])
    for ta in range(2):
        for x in tabs['k2tw'][ta]:
            b += x.astype('<f4').tobytes()
    for mu in range(2):
        for ta in range(2):
            b += op_bytes(tabs['k2B2'][mu][ta])
    act = [l for l in range(64) if ((l & 15) >> 2) == (l >> 4)]
    for v in range(3):
        for w in range(4):
            for k in range(2):
                b += op_bytes(tabs['k2A'][v][w][k][act])
    return b

C2 = 128
VA = 176

def gen(opt):
    a = Asm()
    V = dict(b0=VA, b1=VA + 1, f=VA + 2, m=VA + 3, p=VA + 4, tg=VA + 5, t=VA + 6, u=VA + 7)
    a('''
%s:
s_cmp_ge_u32 s2, %d
s_cbranch_scc1 L_END
''' % (KN, NWG))
    stamp(a, opt, 0)
    a('''
s_bfe_u32 s5, s2, 0x10003
s_and_b32 s3, s2, 1
s_cmp_ge_u32 s2, 256
s_cselect_b32 s5, s3, s5
s_mul_i32 s7, s5, 40
s_load_dwordx2 s[8:9], s[0:1], s7
s_load_dwordx2 s[12:13], s[0:1], 96
s_load_dwordx2 s[44:45], s[0:1], 80
v_lshrrev_b32 v6, 6, v0
v_and_b32 v0, 63, v0
v_readfirstlane_b32 s4, v6
s_and_b32 s3, s2, 7
s_lshr_b32 s6, s2, 4
v_lshrrev_b32 v6, 4, v0
v_bfe_u32 v7, v0, 2, 2
v_mul_u32_u24 v2, 7168, v6
v_mul_u32_u24 v7, 114688, v7
v_lshrrev_b32 v3, 3, v0
v_and_b32 v3, 2, v3
v_xor_b32 v4, v3, v0
v_and_b32 v4, 3, v4
v_lshlrev_b32 v4, 4, v4
v_add3_u32 v2, v2, v7, v4
s_lshl_b32 s22, s4, 12
s_mov_b32 m0, s22
s_lshl_b32 s24, s4, 9
s_add_u32 s24, s24, s3
s_mul_i32 s24, s24, 896
s_mul_i32 s25, s6, 56
s_add_u32 s24, s24, s25
s_add_u32 s25, s24, 27648
s_add_u32 s26, s24, 55296
s_add_u32 s27, s24, 82944
s_mov_b32 s10, %d
s_mov_b32 s11, 0x20000
s_mov_b32 s14, %d
s_mov_b32 s15, 0x20000
s_lshl_b32 s20, s5, 7
s_add_u32 s20, s20, %d
v_lshlrev_b32 v1, 4, v0
s_cmp_ge_u32 s2, 256
s_waitcnt lgkmcnt(0)
''' % (XB, WSB, CELL))
    stamp(a, opt, 1)
    a('''
s_cbranch_scc1 L_SKIP1
buffer_load_dwordx4 v2, s[8:11], s24 offen lds
buffer_load_dwordx4 v2, s[8:11], s25 offen offset:1024 lds
buffer_load_dwordx4 v2, s[8:11], s26 offen offset:2048 lds
buffer_load_dwordx4 v2, s[8:11], s27 offen offset:3072 lds
L_SKIP1:
s_load_dwordx2 s[34:35], s[12:13], s20
s_mov_b32 s46, %d
s_mov_b32 s47, 0x20000
''' % OUTB)
    if opt.get('tlb'):
        a('''v_lshlrev_b32 v9, %d, v0
buffer_load_dword v{t}, v9, s[12:15], 0 offen
buffer_load_dword v{u}, v9, s[44:47], 0 offen'''.format(**V) % opt['tlb'])
    a('''
s_getpc_b64 s[16:17]
L_PC:
s_lshl_b32 s33, s6, 3
s_add_u32 s33, s33, s3
s_cmp_ge_u32 s2, 256
s_cselect_b32 s33, 128, s33
s_mul_i32 s53, s4, 3072
s_add_u32 s21, s53, K2_TAB-L_PC
s_add_u32 s16, s16, s21
s_addc_u32 s17, s17, 0
s_cmp_eq_u32 s33, 0
s_cselect_b32 s20, 2048, 0
s_cmp_eq_u32 s33, 128
s_cselect_b32 s20, 4096, s20
s_cmp_eq_u32 s4, 3
s_cselect_b32 s20, s20, 0
s_add_u32 s18, s16, s20
s_addc_u32 s19, s17, 0
s_add_u32 s53, s53, %d
s_cmp_ge_u32 s2, 256
s_cbranch_scc1 L_CONS
''' % L_CONST)
    a('''
s_lshl_b32 s20, s4, 1
v_bfe_u32 v32, v0, 1, 1
v_add_u32 v32, s20, v32
v_and_b32 v33, 1, v0
v_cmp_eq_u32 vcc, 0, v32
v_lshlrev_b32 v34, 3, v33
v_lshlrev_b32 v35, 2, v33
v_cndmask_b32 v32, v32, v34, vcc
v_cndmask_b32 v35, v35, 0, vcc
v_and_b32 v34, 1, v32
v_cvt_f32_u32 v32, v32
v_cvt_f32_u32 v35, v35
v_mul_u32_u24 v34, 0x8000, v34
v_mul_f32 v32, 0x3d800000, v32
v_mul_f32 v35, 0x3d800000, v35
v_lshl_or_b32 v34, v34, 16, v34
''')
    for i in range(8, 12): a('v_mov_b32 v%d, 0' % i)
    a('s_mov_b32 exec_lo, 0x%x\ns_mov_b32 exec_hi, 0x%x' % (EM_LO, EM_HI))
    for p in range(4):
        a('v_cos_f32 v36, v35\nv_add_f32 v35, v35, v32\nv_cos_f32 v37, v35')
        a('v_add_f32 v35, v35, v32' if p < 3 else 's_nop 0')
        a('v_cvt_pk_bf16_f32 v%d, v36, v37' % (8 + p))
    a('s_mov_b64 exec, -1')
    for p in range(4): a('v_xor_b32 v%d, v34, v%d' % (12 + p, 8 + p))
    a('''
v_lshlrev_b32 v38, 3, v0
v_and_b32 v38, 0x70, v38
v_lshrrev_b32 v39, 1, v0
v_and_b32 v39, 24, v39
v_add_u32 v39, s3, v39
v_cvt_f32_u32 v39, v39
v_cvt_f32_u32 v44, v33
v_mul_f32 v39, 0x3a000000, v39
v_mul_f32 v40, 0x3e800000, v44
v_mul_f32 v41, 0x3f400000, v44
v_add_u32 v45, s20, v38
s_sub_u32 s21, s20, 16
v_sub_u32 v46, s21, v38
v_add_u32 v47, 1, v45
v_add_u32 v48, 1, v46
v_mov_b32 v42, v40
v_mov_b32 v43, v41
s_cmp_lg_u32 s4, 0
s_cbranch_scc1 L_REG
v_cvt_f32_u32 v49, v6
v_cmp_eq_u32 vcc, 0, v38
v_mul_f32 v49, 0.5, v49
v_add_u32 v46, 8, v38
v_mul_f32 v49, v49, v44
v_add_f32 v43, 0x3e800000, v40
v_cndmask_b32 v42, v40, v49, vcc
L_REG:
''')
    for grp, (tv, pv) in enumerate(((45, 42), (46, 43), (47, 40), (48, 41))):
        a('v_cvt_f32_i32 v%d, v%d' % (tv, tv))
        a('v_fma_f32 v50, v%d, v39, v%d' % (tv, pv))
        a('v_mul_f32 v%d, 0x3c800000, v%d' % (tv, tv))
        for p in range(4):
            a('v_cos_f32 v36, v50\nv_sin_f32 v37, v50')
            a('v_add_f32 v50, v50, v%d' % tv if p < 3 else 's_nop 0')
            a('v_cvt_pk_bf16_f32 v%d, v36, v37' % (16 + 4 * grp + p))
    a('s_cmp_lg_u32 s4, 0\ns_cbranch_scc1 L_REG2')
    for p in range(4): a('v_and_b32 v%d, 0xffff, v%d' % (16 + p, 16 + p))
    for p in range(4): a('v_and_b32 v%d, 0xffff0000, v%d' % (20 + p, 20 + p))
    a('L_REG2:')
    a('''
v_lshlrev_b32 v3, 4, v3
v_and_b32 v4, 3, v0
v_lshl_add_u32 v3, v4, 3, v3
v_and_b32 v7, 0x3c0, v1
v_add_u32 v3, v3, v7
v_lshrrev_b32 v5, 3, v0
v_mul_u32_u24 v5, %d, v5
v_and_b32 v7, 0x70, v1
v_add_u32 v5, v5, v7
s_mul_i32 s20, s4, 4608
s_add_u32 s20, s20, %d
v_lshrrev_b32 v2, 2, v0
v_mul_u32_u24 v2, 72, v2
v_lshl_add_u32 v2, v4, 4, v2
v_add_u32 v2, s20, v2
v_xor_b32 v4, 32, v3
s_lshl_b32 s21, s6, 3
s_and_b32 s21, s21, 32
s_add_u32 s22, s20, s21
s_xor_b32 s21, s21, 32
s_add_u32 s23, s20, s21
v_and_b32 v7, 15, v0
v_mul_u32_u24 v7, 72, v7
v_lshl_add_u32 v7, v6, 3, v7
v_add_u32 v6, s22, v7
v_add_u32 v7, s23, v7
s_mul_i32 s20, s5, %d
s_lshl_b32 s21, s3, 7
s_add_u32 s20, s20, s21
s_lshl_b32 s21, s6, 10
s_add_u32 s20, s20, s21
s_mul_i32 s21, s4, %d
s_add_u32 s28, s20, s21
s_add_u32 s30, s28, %d
s_sub_u32 s31, s20, s21
s_add_u32 s29, s31, %d
s_add_u32 s31, s31, %d
s_add_u32 s20, s20, %d
s_cmp_eq_u32 s4, 0
s_cselect_b32 s29, s20, s29
s_waitcnt lgkmcnt(0)
s_add_u32 s34, s34, 0x9e3779b9
s_addc_u32 s35, s35, 0x7f4a7c15
v_mov_b32 v32, s34
v_mov_b32 v33, s35
s_mov_b32 exec_lo, 0
s_mov_b32 exec_hi, 0xffff0000
ds_write_b64 v7, v[32:33]
ds_write_b64 v7, v[32:33] offset:1152
ds_write_b64 v7, v[32:33] offset:2304
ds_write_b64 v7, v[32:33] offset:3456
s_mov_b64 exec, -1
s_waitcnt vmcnt(%d) lgkmcnt(0)
''' % (16 * CH, L_STG, 128 * CH, 2 * CH, CH, 16 * CH, 15 * CH, 8 * CH, 2 if opt.get('tlb') else 0))
    stamp(a, opt, 2)
    if opt.get('stamp'): a('s_waitcnt lgkmcnt(0)')
    a('s_barrier')
    CD = ['s_mov_b32 m0, s53',
          'global_load_lds_dwordx4 v1, s[16:17]',
          'global_load_lds_dwordx4 v1, s[18:19] offset:1024',
          'global_load_lds_dwordx4 v1, s[18:19] offset:2048']
    ACC = lambda bp, nt: 32 + 4 * (bp + 4 * nt)
    order = [(kap, nt, bp) for kap in range(2) for nt in range(2) for bp in range(4)]
    OPR = {o: 64 + 4 * i for i, o in enumerate(order)}
    cnt = [0]
    def rd(o):
        kap, nt, bp = o
        for hh in range(2):
            a('ds_read_b64_tr_b16 %s, v%d offset:%d' % (vr(OPR[o] + 2 * hh, 2), 3 + nt, (2 * kap + hh) * 4096 + bp * 1024))
        cnt[0] += 1
        if cnt[0] == 7:
            for t in CD: a(t)
    def mf(o):
        kap, nt, bp = o
        a('v_mfma_f32_16x16x32_bf16 %s, %s, %s, %s' % (vr(ACC(bp, nt)), vr(8 + 4 * kap), vr(OPR[o]), vr(ACC(bp, nt)) if kap else '0'))
    A2 = lambda al, nt: 64 + 4 * (al + 2 * nt)
    def cv(nt, p):
        return ['v_cvt_pk_bf16_f32 v%d, v%d, v%d' % (A2(al, nt) + p, ACC(p, nt) + 2 * al, ACC(p, nt) + 2 * al + 1) for al in range(2)]
    after = {12: cv(0, 0), 13: cv(0, 1), 14: cv(0, 2), 15: cv(0, 3)}
    staged_reads(a, order, rd, mf, after)
    D2 = lambda al, nu, nt: 96 + 4 * (nt + 2 * nu + 4 * al)
    def m2(al, nu, nt):
        a('v_mfma_f32_16x16x32_bf16 %s, %s, %s, 0' % (vr(D2(al, nu, nt)), vr(A2(al, nt)), vr(16 + 4 * (2 * al + nu))))
    groups = [(al, nu) for al in range(2) for nu in range(2)]
    def pack(g, nt):
        al, nu = groups[g]
        P = 32 + 4 * g + 2 * nt
        return ['v_cvt_pk_bf16_f32 v%d, v%d, v%d' % (P + h, D2(al, nu, nt) + 2 * h, D2(al, nu, nt) + 2 * h + 1) for h in range(2)]
    def wr(g, nt):
        return 'ds_write_b64 v%d, %s offset:%d' % (6 + nt, vr(32 + 4 * g + 2 * nt, 2), 1152 * g)
    for g in range(4):
        m2(*groups[g], 0)
        for t in cv(1, g): a(t)
    for g in range(4):
        m2(*groups[g], 1)
        for t in pack(g, 0): a(t)
        a(wr(g, 0))
    a('v_add_u32 v8, 2304, v2\ns_bfm_b64 exec, 48, 0')
    for g in range(4):
        for t in pack(g, 1): a(t)
        a(wr(g, 1))
    a('s_mov_b64 exec, -1')
    for g in range(4):
        a('ds_read2_b64 %s, v%d offset0:%d offset1:%d' % (vr(48 + 4 * g), 8 if g >= 2 else 2, 144 * (g & 1), 144 * (g & 1) + 1))
    for g in range(4):
        a('s_waitcnt lgkmcnt(%d)' % (3 - g) + (' vmcnt(0)' if g == 0 else ''))
        a('buffer_store_dwordx4 %s, v5, s[12:15], s%d offen %s' % (vr(48 + 4 * g), 28 + [0, 1, 2, 3][g], opt.get('k1st', 'sc1')))
    stamp(a, opt, 3)
    a('s_branch L_P2\nL_CONS:\ns_waitcnt lgkmcnt(0)\ns_add_u32 s34, s34, 0x9e3779b9\ns_addc_u32 s35, s35, 0x7f4a7c15')
    for t in CD: a(t)
    a('s_waitcnt vmcnt(0)\nL_P2:\ns_barrier')
    if opt.get('hint'):
        a('''
s_cmp_lg_u32 s4, 0
s_cbranch_scc1 L_NOHINT
s_cmp_ge_u32 s2, 256
s_cbranch_scc1 L_NOHINT
s_lshl_b32 s20, s5, 11
s_lshl_b32 s21, s6, 7
s_add_u32 s20, s20, s21
s_lshl_b32 s21, s3, 2
s_add_u32 s20, s20, s21
s_add_u32 s20, s20, %d
v_lshlrev_b32 v6, 12, v0
v_add_u32 v6, s20, v6
v_mov_b32 v7, s34
s_mov_b64 exec, 0xff
global_store_dword v6, v7, s[12:13] sc1
s_mov_b64 exec, -1
L_NOHINT:
''' % HINT)
    a('''
v_lshrrev_b32 v6, 4, v0
v_lshlrev_b32 v{b0}, 12, v6
v_and_b32 v7, 0xc0, v1
v_add_u32 v{b0}, v{b0}, v7
v_and_b32 v6, 1, v6
v_lshl_add_u32 v{b0}, v6, 5, v{b0}
v_and_b32 v6, 3, v0
v_min_u32 v7, 2, v6
v_xor_b32 v{b1}, 32, v{b0}
v_lshl_add_u32 v{b0}, v6, 3, v{b0}
v_lshl_add_u32 v{b1}, v7, 3, v{b1}
v_and_b32 v{f}, 31, v0
v_lshrrev_b32 v6, 5, v0
v_lshl_add_u32 v6, v{f}, 1, v6
v_add_u32 v7, 1, v6
v_cmp_ne_u32 vcc, 56, v7
v_mov_b32 v{t}, 0x40000000
v_lshlrev_b32 v6, 4, v6
v_cndmask_b32 v7, 0, v7, vcc
v_cmp_gt_u32 vcc, 28, v{f}
v_sub_u32 v{m}, 880, v6
v_and_b32 v{u}, 1, v7
v_cndmask_b32 v{f}, v{t}, v6, vcc
v_cndmask_b32 v{m}, v{t}, v{m}, vcc
v_lshlrev_b32 v7, 1, v7
v_and_b32 v7, 0x7c, v7
v_lshl_add_u32 v{p}, v{u}, 7, v7
s_lshl_b32 s22, s4, 12
s_and_b32 s20, s4, 1
s_lshl_b32 s20, s20, 5
s_sub_u32 s20, 56, s20
s_add_u32 s20, s20, s22
v_and_b32 v{tg}, 0x3c0, v1
v_add_u32 v{tg}, s20, v{tg}
s_lshl_b32 s20, s4, 9
s_add_u32 s20, s20, {ca}
v_and_b32 v6, 0xf0, v1
v_add_u32 v6, s20, v6
v_add_u32 v7, {cc}, v1
'''.format(ca=L_CONST + 10240, cc=L_CONST, **V))
    for i in range(8): a('v_mov_b32 v%d, 0' % (C2 + i))
    a('''
s_lshl_b32 s21, s4, 9
s_add_u32 s21, s21, s33
s_mul_i32 s21, s21, 1792
s_mul_i32 s20, s5, 896
s_add_u32 s48, s21, s20
s_add_u32 s49, s48, %d
s_sub_u32 s50, s20, s21
s_add_u32 s51, s50, %d
s_add_u32 s50, s50, %d
s_mov_b32 s52, 0xffff
s_and_b32 s21, s33, 127
s_lshl_b32 s20, s5, 7
s_add_u32 s21, s21, s20
s_lshl_b32 s21, s21, 14
s_add_u32 s54, s22, s21
s_mov_b32 s55, 0x40000
s_mov_b32 m0, s22
s_mov_b32 exec_lo, 0x%x
s_mov_b32 exec_hi, 0x%x
ds_read_b128 %s, v6
ds_read_b128 %s, v6 offset:256
s_mov_b64 exec, -1
''' % (256 * 1792, 1792 * 1792, 2048 * 1792, EM_LO, EM_HI, vr(C2), vr(C2 + 4)))
    for i in range(10): a('ds_read_b128 %s, v7 offset:%d' % (vr(C2 + 8 + 4 * i), 1024 * i))
    ld = opt.get('k2ld', 'sc1')
    if opt.get('hint'):
        a('''
s_getreg_b32 s20, hwreg(HW_REG_XCC_ID, 0, 3)
s_lshl_b32 s20, s20, 12
s_lshl_b32 s21, s5, 11
s_add_u32 s20, s20, s21
s_lshl_b32 s21, s4, 9
s_add_u32 s20, s20, s21
s_add_u32 s20, s20, %d
v_lshrrev_b32 v6, 3, v0
v_lshlrev_b32 v6, 7, v6
v_and_b32 v7, 7, v0
v_lshl_add_u32 v6, v7, 2, v6
v_add_u32 v6, s20, v6
s_bfm_b64 exec, 32, 0
L_HINT:
global_load_dword v7, v6, s[12:13] sc1
s_waitcnt vmcnt(0)
v_cmp_ne_u32 vcc, s34, v7
s_and_b64 exec, exec, vcc
s_cbranch_scc0 L_HINTED
s_sub_u32 s55, s55, 1
s_cbranch_scc0 L_HINT
L_HINTED:
''' % HINT)
        stamp(a, opt, 4)
        if opt.get('stamp'): a('s_mov_b32 s55, 0x40000')
    else:
        if not opt.get('early'): a('s_waitcnt vmcnt(0)')
        stamp(a, opt, 4)
        a('''
s_cmp_lt_u32 s2, 256
s_cbranch_scc1 L_POLL0
s_mov_b64 exec, 15
L_SENT:
buffer_load_dwordx4 v1, s[12:15], s54 offen {ld} lds
s_waitcnt vmcnt(0)
ds_read_b64 v[8:9], v{tg}
s_waitcnt lgkmcnt(0)
v_cmp_ne_u64 vcc, s[34:35], v[8:9]
s_cbranch_vccz L_POLL0
s_sub_u32 s55, s55, 1
s_cbranch_scc0 L_SENT
'''.format(ld=ld, **V))
    a('''
L_POLL0:
s_mov_b64 s[56:57], -1
s_mov_b64 s[58:59], -1
s_mov_b64 s[60:61], -1
s_mov_b64 s[62:63], -1
L_POLL:
''')
    for k in range(4):
        a('s_mov_b64 exec, s[%d:%d]\ns_cbranch_execz L_NO%d' % (56 + 2 * k, 57 + 2 * k, k))
        a('buffer_load_dwordx4 v1, s[12:15], s54 offen offset:%d %s lds' % (1024 * k, ld))
        a('L_NO%d:' % k)
    a('s_mov_b64 exec, -1\ns_waitcnt vmcnt(0)')
    for k in range(4): a('ds_read_b64 %s, v%d offset:%d' % (vr(8 + 2 * k, 2), V['tg'], 1024 * k))
    for k in range(4):
        a('s_waitcnt lgkmcnt(%d)' % (3 - k))
        a('v_cmp_ne_u64 s[%d:%d], s[34:35], %s' % (56 + 2 * k, 57 + 2 * k, vr(8 + 2 * k, 2)))
    a('''
s_or_b64 s[64:65], s[56:57], s[58:59]
s_or_b64 s[66:67], s[60:61], s[62:63]
s_or_b64 s[64:65], s[64:65], s[66:67]
s_cbranch_scc0 L_GO
s_sub_u32 s55, s55, 1
s_cbranch_scc0 L_POLL
L_GO:
''')
    stamp(a, opt, 5)
    if opt.get('stamp'): a('s_waitcnt lgkmcnt(0)')
    a('s_barrier')
    DA = lambda ta, sub: 8 + 4 * (sub + 4 * ta)
    order = [(kap, ta, sub) for kap in range(2) for ta in range(2) for sub in range(4)]
    OPR = {o: 40 + 4 * i for i, o in enumerate(order)}
    def rd(o):
        kap, ta, sub = o
        for hh in range(2):
            a('ds_read_b64_tr_b16 %s, v%d offset:%d' % (vr(OPR[o] + 2 * hh, 2), V['b0'] + ta, (4 * kap + 2 * hh) * 128 + sub * 1024))
    def mf(o):
        kap, ta, sub = o
        a('v_mfma_f32_16x16x32_bf16 %s, %s, %s, %s' % (vr(DA(ta, sub)), vr(C2 + 4 * kap), vr(OPR[o]), vr(DA(ta, sub)) if kap else '0'))
    A1 = lambda tl, ta: 40 + 4 * (tl + 2 * ta)
    def cv(ta, p):
        return ['v_cvt_pk_bf16_f32 v%d, v%d, v%d' % (A1(tl, ta) + p, DA(ta, p) + 2 * tl, DA(ta, p) + 2 * tl + 1) for tl in range(2)]
    after = {12: cv(0, 0), 13: cv(0, 1), 14: cv(0, 2), 15: cv(0, 3)}
    staged_reads(a, order, rd, mf, after)
    D1 = lambda tl, ta, c: 72 + 4 * (c + 2 * ta + 4 * tl)
    def b1(tl, ta, c):
        return 'v_mfma_f32_16x16x32_bf16 %s, %s, %s, 0' % (vr(D1(tl, ta, c)), vr(A1(tl, ta)), vr(C2 + 8 + 4 * c))
    k = 0
    for tl in range(2):
        for c in range(2):
            a(b1(tl, 0, c))
            for t in cv(1, k): a(t)
            k += 1
    HT = lambda tl, ta: 8 + 8 * (ta + 2 * tl)
    HP = lambda tl, ta: 56 + 4 * (ta + 2 * tl)
    def tw(tl, ta):
        r, i, h, co, si = D1(tl, ta, 0), D1(tl, ta, 1), HT(tl, ta), C2 + 16 + 8 * ta, C2 + 20 + 8 * ta
        o = []
        if opt.get('pk'):
            for q in (0, 2):
                o.append('v_pk_mul_f32 %s, %s, %s' % (vr(h + q, 2), vr(co + q, 2), vr(r + q, 2)))
                o.append('v_pk_mul_f32 %s, %s, %s' % (vr(h + 4 + q, 2), vr(co + q, 2), vr(i + q, 2)))
            for q in (0, 2):
                o.append('v_pk_fma_f32 %s, %s, %s, %s' % (vr(h + q, 2), vr(si + q, 2), vr(i + q, 2), vr(h + q, 2)))
                o.append('v_pk_fma_f32 %s, %s, %s, %s neg_lo:[1,0,0] neg_hi:[1,0,0]' % (vr(h + 4 + q, 2), vr(si + q, 2), vr(r + q, 2), vr(h + 4 + q, 2)))
        else:
            for q in range(4):
                o.append('v_mul_f32 v%d, v%d, v%d' % (h + q, co + q, r + q))
                o.append('v_mul_f32 v%d, v%d, v%d' % (h + 4 + q, co + q, i + q))
            for q in range(4):
                o.append('v_fmac_f32 v%d, v%d, v%d' % (h + q, si + q, i + q))
                o.append('v_fma_f32 v%d, -v%d, v%d, v%d' % (h + 4 + q, si + q, r + q, h + 4 + q))
        for q in range(4):
            o.append('v_cvt_pk_bf16_f32 v%d, v%d, v%d' % (HP(tl, ta) + q, h + 2 * q, h + 2 * q + 1))
        return o
    D2 = lambda tl, mu: 40 + 4 * (mu + 2 * tl)
    def b2(tl, mu, ta):
        return 'v_mfma_f32_16x16x32_bf16 %s, %s, %s, %s' % (vr(D2(tl, mu)), vr(HP(tl, ta)), vr(C2 + 32 + 4 * (2 * mu + ta)), vr(D2(tl, mu)) if ta else '0')
    F = lambda tl: 104 + 4 * tl
    M = lambda tl: 112 + 4 * tl
    def fin(tl):
        o = []
        for mu in range(2):
            for h in range(2):
                o.append('v_cvt_pk_bf16_f32 v%d, v%d, v%d' % (F(tl) + 2 * mu + h, D2(tl, mu) + 2 * h, D2(tl, mu) + 2 * h + 1))
        o.append('v_permlane16_swap_b32 v%d, v%d' % (F(tl), F(tl) + 2))
        o.append('v_permlane16_swap_b32 v%d, v%d' % (F(tl) + 1, F(tl) + 3))
        o.append('ds_bpermute_b32 v%d, v%d, v%d' % (2 + tl, V['p'], F(tl)))
        o.append('buffer_store_dwordx4 %s, v%d, s[44:47], s%d offen %s' % (vr(F(tl)), V['f'], 48 + tl, opt.get('k2st', 'sc1')))
        return o
    def mir(tl):
        o = []
        for q in (1, 2, 3):
            o.append('v_bfi_b32 v%d, s52, v%d, v%d' % (M(tl) + q, F(tl) + 4 - q, F(tl) + 3 - q))
        o.append('s_waitcnt lgkmcnt(%d)' % (1 - tl))
        o.append('v_bfi_b32 v%d, s52, v%d, v%d' % (M(tl), 2 + tl, F(tl) + 3))
        o.append('buffer_store_dwordx4 %s, v%d, s[44:47], s%d offen %s' % (vr(M(tl)), V['m'], 50 + tl, opt.get('k2st', 'sc1')))
        return o
    def weave(xs, ys, step):
        ys = list(ys)
        for n, x in enumerate(xs):
            if n % step == 0 and ys:
                a(ys.pop(0))
            a(x)
        for y in ys: a(y)
    weave(tw(0, 0), [b1(0, 1, 0), b1(0, 1, 1), b1(1, 1, 0), b1(1, 1, 1)], 3)
    weave(tw(0, 1), [], 3)
    weave(tw(1, 0), [b2(0, 0, 0), b2(0, 1, 0), b2(0, 0, 1), b2(0, 1, 1)], 3)
    weave(tw(1, 1), [b2(1, 0, 0), b2(1, 1, 0)], 3)
    weave(fin(0), [b2(1, 0, 1), b2(1, 1, 1)], 2)
    for x in fin(1): a(x)
    a('s_and_b32 s21, s33, 127\ns_cbranch_scc0 L_SPEC')
    for x in mir(0): a(x)
    for x in mir(1): a(x)
    a('s_branch L_FIN\nL_SPEC:')
    a('''
s_cmp_lt_u32 s2, 256
s_cbranch_scc1 L_FIN
s_cmp_lg_u32 s4, 0
s_cbranch_scc1 L_FIN
s_lshl_b32 s20, s5, 7
s_add_u32 s20, s20, %d
v_mov_b32 v4, s20
v_mov_b32 v6, s34
v_mov_b32 v7, s35
s_mov_b64 exec, 1
global_store_dwordx2 v4, v[6:7], s[12:13]
s_mov_b64 exec, -1
L_FIN:
''' % CELL)
    stamp_out(a, opt, 8)
    a('L_END:\ns_endpgm')
    return a.finish(opt.get('v'))

def build(opt):
    tabs = dz.build_tables()
    hdr = open('cdna_kernels/%s.s.ref' % NAME).read().split('; Override launch')[0]
    s = hdr
    if opt.get('diag'):
        s += '; @launch kernel=%s grid=(%d,1,1) block=(256,1,1) lds=%d\n' % (KN, NWG, LDS)
        s += '; @launch kernel=k3_kernel grid=(1,1,1) block=(64,1,1) lds=0\n'
    else:
        s += '; @launch grid=(%d,1,1) block=(256,1,1) lds=%d\n' % (NWG, LDS)
    s += '.amdgcn_target "amdgcn-amd-amdhsa--gfx950"\n.text\n'
    s += '.globl %s\n.p2align 8\n.type %s,@function\n' % (KN, KN) + gen(opt)
    if opt.get('diag'):
        s += '.globl k3_kernel\n.p2align 8\n.type k3_kernel,@function\n' + gen_k3(opt, [1024])
    s += '.p2align 8\n.type K2_TAB,@object\nK2_TAB:\n' + emit_data(k2_table(tabs))
    s += '.section .rodata,"a"\n' + kd(KN, 184, 96)
    if opt.get('diag'):
        s += kd('k3_kernel', 8, 32)
    return s

if __name__ == '__main__':
    out = sys.argv[1]
    opt = {}
    for kv in sys.argv[2:]:
        k, _, v = kv.partition('=')
        opt[k] = int(v) if v.lstrip('-').isdigit() else (v.replace('+', ' ') if v else 1)
    s = build(opt)
    open(out, 'w').write(s)
    print(out, len(s), 'bytes')
```

```python
import sys, numpy as np
from asmlib import Asm
import design as dz
from gen import gen_k3, NAME, XB, OUTB, vr, op_bytes, emit_data, staged_reads, kd

KN = NAME + '_kernel'
NWG = 258
CH = 16384
WSB = 2 * 128 * CH
HINT = WSB + 4096
CELL = WSB
L_CONST = 16384
L_STG = 28672
LDS = L_STG + 4 * 4608
SB = 72
EM_LO, EM_HI = 0x00F0000F, 0xF0000F00

def stamp(a, opt, i):
    if opt.get('stamp'):
        a('%s s[%d:%d]' % ('s_memtime' if opt.get('cyc') else 's_memrealtime', SB + 2 * i, SB + 1 + 2 * i))

def stamp_out(a, opt, n):
    if not opt.get('stamp'):
        return
    stamp(a, opt, n - 2)
    a('s_waitcnt vmcnt(0)')
    stamp(a, opt, n - 1)
    a('s_getreg_b32 s58, hwreg(HW_REG_XCC_ID)')
    a('s_getreg_b32 s59, hwreg(HW_REG_HW_ID)')
    a('s_lshl_b32 s62, s2, 2\ns_add_u32 s62, s62, s4\ns_lshl_b32 s62, s62, 6\ns_add_u32 s62, s62, %d' % (16 << 20))
    a('s_waitcnt lgkmcnt(0)\ns_add_u32 s60, s12, s62\ns_addc_u32 s61, s13, 0')
    a('v_mov_b32 v0, 0')
    for i in range(n):
        a('v_mov_b32 v1, s%d\nglobal_store_dword v0, v1, s[60:61] offset:%d' % (SB + 2 * i, 4 * i))
    a('v_mov_b32 v1, s55\nglobal_store_dword v0, v1, s[60:61] offset:52')
    a('v_mov_b32 v1, s58\nglobal_store_dword v0, v1, s[60:61] offset:56')
    a('v_mov_b32 v1, s59\nglobal_store_dword v0, v1, s[60:61] offset:60')

def k2_table(tabs):
    b = b''
    for c in range(2):
        b += op_bytes(tabs['k2B1'][c])
    for ta in range(2):
        for x in tabs['k2tw'][ta]:
            b += x.astype('<f4').tobytes()
    for mu in range(2):
        for ta in range(2):
            b += op_bytes(tabs['k2B2'][mu][ta])
    act = [l for l in range(64) if ((l & 15) >> 2) == (l >> 4)]
    for v in range(3):
        for w in range(4):
            for k in range(2):
                b += op_bytes(tabs['k2A'][v][w][k][act])
    return b

C2 = 128
VA = 176

def gen(opt):
    a = Asm()
    V = dict(b0=VA, b1=VA + 1, f=VA + 2, m=VA + 3, p=VA + 4, tg=VA + 5, t=VA + 6, u=VA + 7)
    a('''
%s:
s_cmp_ge_u32 s2, %d
s_cbranch_scc1 L_END
''' % (KN, NWG))
    stamp(a, opt, 0)
    a('''
s_bfe_u32 s5, s2, 0x10003
s_and_b32 s3, s2, 1
s_cmp_ge_u32 s2, 256
s_cselect_b32 s5, s3, s5
s_mul_i32 s7, s5, 40
s_load_dwordx2 s[8:9], s[0:1], s7
s_load_dwordx2 s[12:13], s[0:1], 96
s_load_dwordx2 s[44:45], s[0:1], 80
v_lshrrev_b32 v6, 6, v0
v_and_b32 v0, 63, v0
v_readfirstlane_b32 s4, v6
s_and_b32 s3, s2, 7
s_lshr_b32 s6, s2, 4
v_lshrrev_b32 v6, 4, v0
v_bfe_u32 v7, v0, 2, 2
v_mul_u32_u24 v2, 7168, v6
v_mul_u32_u24 v7, 114688, v7
v_lshrrev_b32 v3, 3, v0
v_and_b32 v3, 2, v3
v_xor_b32 v4, v3, v0
v_and_b32 v4, 3, v4
v_lshlrev_b32 v4, 4, v4
v_add3_u32 v2, v2, v7, v4
s_lshl_b32 s22, s4, 12
s_mov_b32 m0, s22
s_lshl_b32 s24, s4, 9
s_add_u32 s24, s24, s3
s_mul_i32 s24, s24, 896
s_mul_i32 s25, s6, 56
s_add_u32 s24, s24, s25
s_add_u32 s25, s24, 27648
s_add_u32 s26, s24, 55296
s_add_u32 s27, s24, 82944
s_mov_b32 s10, %d
s_mov_b32 s11, 0x20000
s_mov_b32 s14, %d
s_mov_b32 s15, 0x20000
s_lshl_b32 s20, s5, 7
s_add_u32 s20, s20, %d
v_lshlrev_b32 v1, 4, v0
s_cmp_ge_u32 s2, 256
s_waitcnt lgkmcnt(0)
''' % (XB, WSB, CELL))
    stamp(a, opt, 1)
    a('''
s_cbranch_scc1 L_SKIP1
buffer_load_dwordx4 v2, s[8:11], s24 offen lds
buffer_load_dwordx4 v2, s[8:11], s25 offen offset:1024 lds
buffer_load_dwordx4 v2, s[8:11], s26 offen offset:2048 lds
buffer_load_dwordx4 v2, s[8:11], s27 offen offset:3072 lds
L_SKIP1:
s_load_dwordx2 s[34:35], s[12:13], s20
s_mov_b32 s46, %d
s_mov_b32 s47, 0x20000
''' % OUTB)
    if opt.get('tlb'):
        a('''v_lshlrev_b32 v9, %d, v0
buffer_load_dword v{t}, v9, s[12:15], 0 offen
buffer_load_dword v{u}, v9, s[44:47], 0 offen'''.format(**V) % opt['tlb'])
    a('''
s_getpc_b64 s[16:17]
L_PC:
s_lshl_b32 s33, s6, 3
s_add_u32 s33, s33, s3
s_cmp_ge_u32 s2, 256
s_cselect_b32 s33, 128, s33
s_mul_i32 s53, s4, 3072
s_add_u32 s21, s53, K2_TAB-L_PC
s_add_u32 s16, s16, s21
s_addc_u32 s17, s17, 0
s_cmp_eq_u32 s33, 0
s_cselect_b32 s20, 2048, 0
s_cmp_eq_u32 s33, 128
s_cselect_b32 s20, 4096, s20
s_cmp_eq_u32 s4, 3
s_cselect_b32 s20, s20, 0
s_add_u32 s18, s16, s20
s_addc_u32 s19, s17, 0
s_add_u32 s53, s53, %d
s_cmp_ge_u32 s2, 256
s_cbranch_scc1 L_CONS
''' % L_CONST)
    a('''
s_lshl_b32 s20, s4, 1
v_bfe_u32 v32, v0, 1, 1
v_add_u32 v32, s20, v32
v_and_b32 v33, 1, v0
v_cmp_eq_u32 vcc, 0, v32
v_lshlrev_b32 v34, 3, v33
v_lshlrev_b32 v35, 2, v33
v_cndmask_b32 v32, v32, v34, vcc
v_cndmask_b32 v35, v35, 0, vcc
v_and_b32 v34, 1, v32
v_cvt_f32_u32 v32, v32
v_cvt_f32_u32 v35, v35
v_mul_u32_u24 v34, 0x8000, v34
v_mul_f32 v32, 0x3d800000, v32
v_mul_f32 v35, 0x3d800000, v35
v_lshl_or_b32 v34, v34, 16, v34
''')
    for i in range(8, 12): a('v_mov_b32 v%d, 0' % i)
    a('s_mov_b32 exec_lo, 0x%x\ns_mov_b32 exec_hi, 0x%x' % (EM_LO, EM_HI))
    for p in range(4):
        a('v_cos_f32 v36, v35\nv_add_f32 v35, v35, v32\nv_cos_f32 v37, v35')
        a('v_add_f32 v35, v35, v32' if p < 3 else 's_nop 0')
        a('v_cvt_pk_bf16_f32 v%d, v36, v37' % (8 + p))
    a('s_mov_b64 exec, -1')
    for p in range(4): a('v_xor_b32 v%d, v34, v%d' % (12 + p, 8 + p))
    a('''
v_lshlrev_b32 v38, 3, v0
v_and_b32 v38, 0x70, v38
v_lshrrev_b32 v39, 1, v0
v_and_b32 v39, 24, v39
v_add_u32 v39, s3, v39
v_cvt_f32_u32 v39, v39
v_cvt_f32_u32 v44, v33
v_mul_f32 v39, 0x3a000000, v39
v_mul_f32 v40, 0x3e800000, v44
v_mul_f32 v41, 0x3f400000, v44
v_add_u32 v45, s20, v38
s_sub_u32 s21, s20, 16
v_sub_u32 v46, s21, v38
v_add_u32 v47, 1, v45
v_add_u32 v48, 1, v46
v_mov_b32 v42, v40
v_mov_b32 v43, v41
s_cmp_lg_u32 s4, 0
s_cbranch_scc1 L_REG
v_cvt_f32_u32 v49, v6
v_cmp_eq_u32 vcc, 0, v38
v_mul_f32 v49, 0.5, v49
v_add_u32 v46, 8, v38
v_mul_f32 v49, v49, v44
v_add_f32 v43, 0x3e800000, v40
v_cndmask_b32 v42, v40, v49, vcc
L_REG:
''')
    for grp, (tv, pv) in enumerate(((45, 42), (46, 43), (47, 40), (48, 41))):
        a('v_cvt_f32_i32 v%d, v%d' % (tv, tv))
        a('v_fma_f32 v50, v%d, v39, v%d' % (tv, pv))
        a('v_mul_f32 v%d, 0x3c800000, v%d' % (tv, tv))
        for p in range(4):
            a('v_cos_f32 v36, v50\nv_sin_f32 v37, v50')
            a('v_add_f32 v50, v50, v%d' % tv if p < 3 else 's_nop 0')
            a('v_cvt_pk_bf16_f32 v%d, v36, v37' % (16 + 4 * grp + p))
    a('s_cmp_lg_u32 s4, 0\ns_cbranch_scc1 L_REG2')
    for p in range(4): a('v_and_b32 v%d, 0xffff, v%d' % (16 + p, 16 + p))
    for p in range(4): a('v_and_b32 v%d, 0xffff0000, v%d' % (20 + p, 20 + p))
    a('L_REG2:')
    a('''
v_lshlrev_b32 v3, 4, v3
v_and_b32 v4, 3, v0
v_lshl_add_u32 v3, v4, 3, v3
v_and_b32 v7, 0x3c0, v1
v_add_u32 v3, v3, v7
v_lshrrev_b32 v5, 3, v0
v_mul_u32_u24 v5, %d, v5
v_and_b32 v7, 0x70, v1
v_add_u32 v5, v5, v7
s_mul_i32 s20, s4, 4608
s_add_u32 s20, s20, %d
v_lshrrev_b32 v2, 2, v0
v_mul_u32_u24 v2, 72, v2
v_lshl_add_u32 v2, v4, 4, v2
v_add_u32 v2, s20, v2
v_xor_b32 v4, 32, v3
s_lshl_b32 s21, s6, 3
s_and_b32 s21, s21, 32
s_add_u32 s22, s20, s21
s_xor_b32 s21, s21, 32
s_add_u32 s23, s20, s21
v_and_b32 v7, 15, v0
v_mul_u32_u24 v7, 72, v7
v_lshl_add_u32 v7, v6, 3, v7
v_add_u32 v6, s22, v7
v_add_u32 v7, s23, v7
s_mul_i32 s20, s5, %d
s_lshl_b32 s21, s3, 7
s_add_u32 s20, s20, s21
s_lshl_b32 s21, s6, 10
s_add_u32 s20, s20, s21
s_mul_i32 s21, s4, %d
s_add_u32 s28, s20, s21
s_add_u32 s30, s28, %d
s_sub_u32 s31, s20, s21
s_add_u32 s29, s31, %d
s_add_u32 s31, s31, %d
s_add_u32 s20, s20, %d
s_cmp_eq_u32 s4, 0
s_cselect_b32 s29, s20, s29
s_waitcnt lgkmcnt(0)
s_add_u32 s34, s34, 0x9e3779b9
s_addc_u32 s35, s35, 0x7f4a7c15
v_mov_b32 v32, s34
v_mov_b32 v33, s35
s_mov_b32 exec_lo, 0
s_mov_b32 exec_hi, 0xffff0000
ds_write_b64 v7, v[32:33]
ds_write_b64 v7, v[32:33] offset:1152
ds_write_b64 v7, v[32:33] offset:2304
ds_write_b64 v7, v[32:33] offset:3456
s_mov_b64 exec, -1
s_waitcnt vmcnt(%d) lgkmcnt(0)
''' % (16 * CH, L_STG, 128 * CH, 2 * CH, CH, 16 * CH, 15 * CH, 8 * CH, 2 if opt.get('tlb') else 0))
    stamp(a, opt, 2)
    if opt.get('stamp'): a('s_waitcnt lgkmcnt(0)')
    a('s_barrier')
    CD = ['s_mov_b32 m0, s53',
          'global_load_lds_dwordx4 v1, s[16:17]',
          'global_load_lds_dwordx4 v1, s[18:19] offset:1024',
          'global_load_lds_dwordx4 v1, s[18:19] offset:2048']
    ACC = lambda bp, nt: 32 + 4 * (bp + 4 * nt)
    order = [(kap, nt, bp) for kap in range(2) for nt in range(2) for bp in range(4)]
    OPR = {o: 64 + 4 * i for i, o in enumerate(order)}
    cnt = [0]
    def rd(o):
        kap, nt, bp = o
        for hh in range(2):
            a('ds_read_b64_tr_b16 %s, v%d offset:%d' % (vr(OPR[o] + 2 * hh, 2), 3 + nt, (2 * kap + hh) * 4096 + bp * 1024))
        cnt[0] += 1
        if cnt[0] == 7:
            for t in CD: a(t)
    def mf(o):
        kap, nt, bp = o
        a('v_mfma_f32_16x16x32_bf16 %s, %s, %s, %s' % (vr(ACC(bp, nt)), vr(8 + 4 * kap), vr(OPR[o]), vr(ACC(bp, nt)) if kap else '0'))
    A2 = lambda al, nt: 64 + 4 * (al + 2 * nt)
    def cv(nt, p):
        return ['v_cvt_pk_bf16_f32 v%d, v%d, v%d' % (A2(al, nt) + p, ACC(p, nt) + 2 * al, ACC(p, nt) + 2 * al + 1) for al in range(2)]
    after = {12: cv(0, 0), 13: cv(0, 1), 14: cv(0, 2), 15: cv(0, 3)}
    staged_reads(a, order, rd, mf, after)
    D2 = lambda al, nu, nt: 96 + 4 * (nt + 2 * nu + 4 * al)
    def m2(al, nu, nt):
        a('v_mfma_f32_16x16x32_bf16 %s, %s, %s, 0' % (vr(D2(al, nu, nt)), vr(A2(al, nt)), vr(16 + 4 * (2 * al + nu))))
    groups = [(al, nu) for al in range(2) for nu in range(2)]
    def pack(g, nt):
        al, nu = groups[g]
        P = 32 + 4 * g + 2 * nt
        return ['v_cvt_pk_bf16_f32 v%d, v%d, v%d' % (P + h, D2(al, nu, nt) + 2 * h, D2(al, nu, nt) + 2 * h + 1) for h in range(2)]
    def wr(g, nt):
        return 'ds_write_b64 v%d, %s offset:%d' % (6 + nt, vr(32 + 4 * g + 2 * nt, 2), 1152 * g)
    for g in range(4):
        m2(*groups[g], 0)
        for t in cv(1, g): a(t)
    for g in range(4):
        m2(*groups[g], 1)
        for t in pack(g, 0): a(t)
        a(wr(g, 0))
    a('v_add_u32 v8, 2304, v2\ns_bfm_b64 exec, 48, 0')
    for g in range(4):
        for t in pack(g, 1): a(t)
        a(wr(g, 1))
    a('s_mov_b64 exec, -1')
    for g in range(4):
        a('ds_read2_b64 %s, v%d offset0:%d offset1:%d' % (vr(48 + 4 * g), 8 if g >= 2 else 2, 144 * (g & 1), 144 * (g & 1) + 1))
    if opt.get('half'): a('s_mov_b32 exec_lo, 0x0f0f0f0f\ns_mov_b32 exec_hi, 0x0f0f0f0f')
    for g in range(4):
        a('s_waitcnt lgkmcnt(%d)' % (3 - g) + (' vmcnt(0)' if g == 0 else ''))
        a('buffer_store_dwordx4 %s, v5, s[12:15], s%d offen %s' % (vr(48 + 4 * g), 28 + [0, 1, 2, 3][g], opt.get('k1st', 'sc1')))
    a('s_mov_b64 exec, -1')
    stamp(a, opt, 3)
    a('s_branch L_P2\nL_CONS:\ns_waitcnt lgkmcnt(0)\ns_add_u32 s34, s34, 0x9e3779b9\ns_addc_u32 s35, s35, 0x7f4a7c15')
    for t in CD: a(t)
    a('s_waitcnt vmcnt(0)\nL_P2:\ns_barrier')
    if opt.get('hint'):
        a('''
s_cmp_lg_u32 s4, 0
s_cbranch_scc1 L_NOHINT
s_cmp_ge_u32 s2, 256
s_cbranch_scc1 L_NOHINT
s_lshl_b32 s20, s5, 11
s_lshl_b32 s21, s6, 7
s_add_u32 s20, s20, s21
s_lshl_b32 s21, s3, 2
s_add_u32 s20, s20, s21
s_add_u32 s20, s20, %d
v_lshlrev_b32 v6, 12, v0
v_add_u32 v6, s20, v6
v_mov_b32 v7, s34
s_mov_b64 exec, 0xff
global_store_dword v6, v7, s[12:13] sc1
s_mov_b64 exec, -1
L_NOHINT:
''' % HINT)
    a('''
v_lshrrev_b32 v6, 4, v0
v_lshlrev_b32 v{b0}, 12, v6
v_and_b32 v7, 0xc0, v1
v_add_u32 v{b0}, v{b0}, v7
v_and_b32 v6, 1, v6
v_lshl_add_u32 v{b0}, v6, 5, v{b0}
v_and_b32 v6, 3, v0
v_min_u32 v7, 2, v6
v_xor_b32 v{b1}, 32, v{b0}
v_lshl_add_u32 v{b0}, v6, 3, v{b0}
v_lshl_add_u32 v{b1}, v7, 3, v{b1}
v_and_b32 v{f}, 31, v0
v_lshrrev_b32 v6, 5, v0
v_lshl_add_u32 v6, v{f}, 1, v6
v_add_u32 v7, 1, v6
v_cmp_ne_u32 vcc, 56, v7
v_mov_b32 v{t}, 0x40000000
v_lshlrev_b32 v6, 4, v6
v_cndmask_b32 v7, 0, v7, vcc
v_cmp_gt_u32 vcc, 28, v{f}
v_sub_u32 v{m}, 880, v6
v_and_b32 v{u}, 1, v7
v_cndmask_b32 v{f}, v{t}, v6, vcc
v_cndmask_b32 v{m}, v{t}, v{m}, vcc
v_lshlrev_b32 v7, 1, v7
v_and_b32 v7, 0x7c, v7
v_lshl_add_u32 v{p}, v{u}, 7, v7
s_lshl_b32 s22, s4, 12
s_and_b32 s20, s4, 1
s_lshl_b32 s20, s20, 5
s_sub_u32 s20, 56, s20
s_add_u32 s20, s20, s22
v_and_b32 v{tg}, {tm}, v1
v_add_u32 v{tg}, s20, v{tg}
s_lshl_b32 s20, s4, 9
s_add_u32 s20, s20, {ca}
v_and_b32 v6, 0xf0, v1
v_add_u32 v6, s20, v6
v_add_u32 v7, {cc}, v1
'''.format(ca=L_CONST + 10240, cc=L_CONST, tm=0x380 if opt.get('half') else 0x3c0, **V))
    for i in range(8): a('v_mov_b32 v%d, 0' % (C2 + i))
    a('''
s_lshl_b32 s21, s4, 9
s_add_u32 s21, s21, s33
s_mul_i32 s21, s21, 1792
s_mul_i32 s20, s5, 896
s_add_u32 s48, s21, s20
s_add_u32 s49, s48, %d
s_sub_u32 s50, s20, s21
s_add_u32 s51, s50, %d
s_add_u32 s50, s50, %d
s_mov_b32 s52, 0xffff
s_and_b32 s21, s33, 127
s_lshl_b32 s20, s5, 7
s_add_u32 s21, s21, s20
s_lshl_b32 s21, s21, 14
s_add_u32 s54, s22, s21
s_mov_b32 s55, 0x40000
s_mov_b32 m0, s22
s_mov_b32 exec_lo, 0x%x
s_mov_b32 exec_hi, 0x%x
ds_read_b128 %s, v6
ds_read_b128 %s, v6 offset:256
s_mov_b64 exec, -1
''' % (256 * 1792, 1792 * 1792, 2048 * 1792, EM_LO, EM_HI, vr(C2), vr(C2 + 4)))
    for i in range(10): a('ds_read_b128 %s, v7 offset:%d' % (vr(C2 + 8 + 4 * i), 1024 * i))
    ld = opt.get('k2ld', 'sc1')
    if opt.get('hint'):
        a('''
s_getreg_b32 s20, hwreg(HW_REG_XCC_ID, 0, 3)
s_lshl_b32 s20, s20, 12
s_lshl_b32 s21, s5, 11
s_add_u32 s20, s20, s21
s_lshl_b32 s21, s4, 9
s_add_u32 s20, s20, s21
s_add_u32 s20, s20, %d
v_lshrrev_b32 v6, 3, v0
v_lshlrev_b32 v6, 7, v6
v_and_b32 v7, 7, v0
v_lshl_add_u32 v6, v7, 2, v6
v_add_u32 v6, s20, v6
s_bfm_b64 exec, 32, 0
L_HINT:
global_load_dword v7, v6, s[12:13] sc1
s_waitcnt vmcnt(0)
v_cmp_ne_u32 vcc, s34, v7
s_and_b64 exec, exec, vcc
s_cbranch_scc0 L_HINTED
s_sub_u32 s55, s55, 1
s_cbranch_scc0 L_HINT
L_HINTED:
''' % HINT)
        stamp(a, opt, 4)
        if opt.get('stamp'): a('s_mov_b32 s55, 0x40000')
    else:
        if not opt.get('early'): a('s_waitcnt vmcnt(0)')
        stamp(a, opt, 4)
        a('''
s_cmp_lt_u32 s2, 256
s_cbranch_scc1 L_POLL0
s_mov_b64 exec, 15
L_SENT:
buffer_load_dwordx4 v1, s[12:15], s54 offen {ld} lds
s_waitcnt vmcnt(0)
ds_read_b64 v[8:9], v{tg}
s_waitcnt lgkmcnt(0)
v_cmp_ne_u64 vcc, s[34:35], v[8:9]
s_cbranch_vccz L_POLL0
s_sub_u32 s55, s55, 1
s_cbranch_scc0 L_SENT
'''.format(ld=ld, **V))
    a('''
L_POLL0:
s_mov_b64 s[56:57], -1
s_mov_b64 s[58:59], -1
s_mov_b64 s[60:61], -1
s_mov_b64 s[62:63], -1
L_POLL:
''')
    for k in range(4):
        if opt.get('half') == 2: a('s_and_b32 s%d, s%d, 0x0f0f0f0f\ns_and_b32 s%d, s%d, 0x0f0f0f0f' % (56 + 2 * k, 56 + 2 * k, 57 + 2 * k, 57 + 2 * k))
        a('s_mov_b64 exec, s[%d:%d]\ns_cbranch_execz L_NO%d' % (56 + 2 * k, 57 + 2 * k, k))
        a('buffer_load_dwordx4 v1, s[12:15], s54 offen offset:%d %s lds' % (1024 * k, ld))
        a('L_NO%d:' % k)
    a('s_mov_b64 exec, -1\ns_waitcnt vmcnt(0)')
    for k in range(4): a('ds_read_b64 %s, v%d offset:%d' % (vr(8 + 2 * k, 2), V['tg'], 1024 * k))
    for k in range(4):
        a('s_waitcnt lgkmcnt(%d)' % (3 - k))
        a('v_cmp_ne_u64 s[%d:%d], s[34:35], %s' % (56 + 2 * k, 57 + 2 * k, vr(8 + 2 * k, 2)))
    a('''
s_or_b64 s[64:65], s[56:57], s[58:59]
s_or_b64 s[66:67], s[60:61], s[62:63]
s_or_b64 s[64:65], s[64:65], s[66:67]
s_cbranch_scc0 L_GO
s_sub_u32 s55, s55, 1
s_cbranch_scc0 L_POLL
L_GO:
''')
    stamp(a, opt, 5)
    if opt.get('stamp'): a('s_waitcnt lgkmcnt(0)')
    a('s_barrier')
    DA = lambda ta, sub: 8 + 4 * (sub + 4 * ta)
    order = [(kap, ta, sub) for kap in range(2) for ta in range(2) for sub in range(4)]
    OPR = {o: 40 + 4 * i for i, o in enumerate(order)}
    def rd(o):
        kap, ta, sub = o
        for hh in range(2):
            a('ds_read_b64_tr_b16 %s, v%d offset:%d' % (vr(OPR[o] + 2 * hh, 2), V['b0'] + ta, (4 * kap + 2 * hh) * 128 + sub * 1024))
    def mf(o):
        kap, ta, sub = o
        a('v_mfma_f32_16x16x32_bf16 %s, %s, %s, %s' % (vr(DA(ta, sub)), vr(C2 + 4 * kap), vr(OPR[o]), vr(DA(ta, sub)) if kap else '0'))
    A1 = lambda tl, ta: 40 + 4 * (tl + 2 * ta)
    def cv(ta, p):
        return ['v_cvt_pk_bf16_f32 v%d, v%d, v%d' % (A1(tl, ta) + p, DA(ta, p) + 2 * tl, DA(ta, p) + 2 * tl + 1) for tl in range(2)]
    after = {12: cv(0, 0), 13: cv(0, 1), 14: cv(0, 2), 15: cv(0, 3)}
    staged_reads(a, order, rd, mf, after)
    D1 = lambda tl, ta, c: 72 + 4 * (c + 2 * ta + 4 * tl)
    def b1(tl, ta, c):
        return 'v_mfma_f32_16x16x32_bf16 %s, %s, %s, 0' % (vr(D1(tl, ta, c)), vr(A1(tl, ta)), vr(C2 + 8 + 4 * c))
    k = 0
    for tl in range(2):
        for c in range(2):
            a(b1(tl, 0, c))
            for t in cv(1, k): a(t)
            k += 1
    HT = lambda tl, ta: 8 + 8 * (ta + 2 * tl)
    HP = lambda tl, ta: 56 + 4 * (ta + 2 * tl)
    def tw(tl, ta):
        r, i, h, co, si = D1(tl, ta, 0), D1(tl, ta, 1), HT(tl, ta), C2 + 16 + 8 * ta, C2 + 20 + 8 * ta
        o = []
        if opt.get('pk'):
            for q in (0, 2):
                o.append('v_pk_mul_f32 %s, %s, %s' % (vr(h + q, 2), vr(co + q, 2), vr(r + q, 2)))
                o.append('v_pk_mul_f32 %s, %s, %s' % (vr(h + 4 + q, 2), vr(co + q, 2), vr(i + q, 2)))
            for q in (0, 2):
                o.append('v_pk_fma_f32 %s, %s, %s, %s' % (vr(h + q, 2), vr(si + q, 2), vr(i + q, 2), vr(h + q, 2)))
                o.append('v_pk_fma_f32 %s, %s, %s, %s neg_lo:[1,0,0] neg_hi:[1,0,0]' % (vr(h + 4 + q, 2), vr(si + q, 2), vr(r + q, 2), vr(h + 4 + q, 2)))
        else:
            for q in range(4):
                o.append('v_mul_f32 v%d, v%d, v%d' % (h + q, co + q, r + q))
                o.append('v_mul_f32 v%d, v%d, v%d' % (h + 4 + q, co + q, i + q))
            for q in range(4):
                o.append('v_fmac_f32 v%d, v%d, v%d' % (h + q, si + q, i + q))
                o.append('v_fma_f32 v%d, -v%d, v%d, v%d' % (h + 4 + q, si + q, r + q, h + 4 + q))
        for q in range(4):
            o.append('v_cvt_pk_bf16_f32 v%d, v%d, v%d' % (HP(tl, ta) + q, h + 2 * q, h + 2 * q + 1))
        return o
    D2 = lambda tl, mu: 40 + 4 * (mu + 2 * tl)
    def b2(tl, mu, ta):
        return 'v_mfma_f32_16x16x32_bf16 %s, %s, %s, %s' % (vr(D2(tl, mu)), vr(HP(tl, ta)), vr(C2 + 32 + 4 * (2 * mu + ta)), vr(D2(tl, mu)) if ta else '0')
    F = lambda tl: 104 + 4 * tl
    M = lambda tl: 112 + 4 * tl
    def fin(tl):
        o = []
        for mu in range(2):
            for h in range(2):
                o.append('v_cvt_pk_bf16_f32 v%d, v%d, v%d' % (F(tl) + 2 * mu + h, D2(tl, mu) + 2 * h, D2(tl, mu) + 2 * h + 1))
        o.append('v_permlane16_swap_b32 v%d, v%d' % (F(tl), F(tl) + 2))
        o.append('v_permlane16_swap_b32 v%d, v%d' % (F(tl) + 1, F(tl) + 3))
        o.append('ds_bpermute_b32 v%d, v%d, v%d' % (2 + tl, V['p'], F(tl)))
        o.append('buffer_store_dwordx4 %s, v%d, s[44:47], s%d offen %s' % (vr(F(tl)), V['f'], 48 + tl, opt.get('k2st', 'sc1')))
        return o
    def mir(tl):
        o = []
        for q in (1, 2, 3):
            o.append('v_bfi_b32 v%d, s52, v%d, v%d' % (M(tl) + q, F(tl) + 4 - q, F(tl) + 3 - q))
        o.append('s_waitcnt lgkmcnt(%d)' % (1 - tl))
        o.append('v_bfi_b32 v%d, s52, v%d, v%d' % (M(tl), 2 + tl, F(tl) + 3))
        o.append('buffer_store_dwordx4 %s, v%d, s[44:47], s%d offen %s' % (vr(M(tl)), V['m'], 50 + tl, opt.get('k2st', 'sc1')))
        return o
    def weave(xs, ys, step):
        ys = list(ys)
        for n, x in enumerate(xs):
            if n % step == 0 and ys:
                a(ys.pop(0))
            a(x)
        for y in ys: a(y)
    weave(tw(0, 0), [b1(0, 1, 0), b1(0, 1, 1), b1(1, 1, 0), b1(1, 1, 1)], 3)
    weave(tw(0, 1), [], 3)
    weave(tw(1, 0), [b2(0, 0, 0), b2(0, 1, 0), b2(0, 0, 1), b2(0, 1, 1)], 3)
    weave(tw(1, 1), [b2(1, 0, 0), b2(1, 1, 0)], 3)
    weave(fin(0), [b2(1, 0, 1), b2(1, 1, 1)], 2)
    for x in fin(1): a(x)
    a('s_and_b32 s21, s33, 127\ns_cbranch_scc0 L_SPEC')
    for x in mir(0): a(x)
    for x in mir(1): a(x)
    a('s_branch L_FIN\nL_SPEC:')
    a('''
s_cmp_lt_u32 s2, 256
s_cbranch_scc1 L_FIN
s_cmp_lg_u32 s4, 0
s_cbranch_scc1 L_FIN
s_lshl_b32 s20, s5, 7
s_add_u32 s20, s20, %d
v_mov_b32 v4, s20
v_mov_b32 v6, s34
v_mov_b32 v7, s35
s_mov_b64 exec, 1
global_store_dwordx2 v4, v[6:7], s[12:13]
s_mov_b64 exec, -1
L_FIN:
''' % CELL)
    stamp_out(a, opt, 8)
    a('L_END:\ns_endpgm')
    return a.finish(opt.get('v'))

def build(opt):
    tabs = dz.build_tables()
    hdr = open('cdna_kernels/%s.s.ref' % NAME).read().split('; Override launch')[0]
    s = hdr
    if opt.get('diag'):
        s += '; @launch kernel=%s grid=(%d,1,1) block=(256,1,1) lds=%d\n' % (KN, NWG, LDS)
        s += '; @launch kernel=k3_kernel grid=(1,1,1) block=(64,1,1) lds=0\n'
    else:
        s += '; @launch grid=(%d,1,1) block=(256,1,1) lds=%d\n' % (NWG, LDS)
    s += '.amdgcn_target "amdgcn-amd-amdhsa--gfx950"\n.text\n'
    s += '.globl %s\n.p2align 8\n.type %s,@function\n' % (KN, KN) + gen(opt)
    if opt.get('diag'):
        s += '.globl k3_kernel\n.p2align 8\n.type k3_kernel,@function\n' + gen_k3(opt, [1024])
    s += '.p2align 8\n.type K2_TAB,@object\nK2_TAB:\n' + emit_data(k2_table(tabs))
    s += '.section .rodata,"a"\n' + kd(KN, 184, 96)
    if opt.get('diag'):
        s += kd('k3_kernel', 8, 32)
    return s

if __name__ == '__main__':
    out = sys.argv[1]
    opt = {}
    for kv in sys.argv[2:]:
        k, _, v = kv.partition('=')
        opt[k] = int(v) if v.lstrip('-').isdigit() else (v.replace('+', ' ') if v else 1)
    s = build(opt)
    open(out, 'w').write(s)
    print(out, len(s), 'bytes')
```

```python
import numpy as np
from design import bf16_bits, bf16_val, rb, cs, mfma, swap16, tr_read, k1_stage1, k2_tw, L, LN, LG
S, D = 2048, 448
CH = 16384

def mfma16(A, B, C=None):
    Am = np.zeros((16, 16)); Bm = np.zeros((16, 16))
    for l in range(64):
        Am[l & 15, 4 * (l >> 4):4 * (l >> 4) + 4] = A[l]
        Bm[4 * (l >> 4):4 * (l >> 4) + 4, l & 15] = B[l]
    Dm = Am @ Bm
    Dl = np.zeros((64, 4))
    for l in range(64):
        Dl[l] = Dm[4 * (l >> 4):4 * (l >> 4) + 4, l & 15]
    if C is not None:
        Dl = Dl + C
    return Dl.astype(np.float32)

def t1_of(sig, bi):
    bl = bi & 3
    if bi < 4:
        return sig + 16 * bl
    return 16 * bl + (8 if sig == 0 else 16 - sig)

def k1_stage2(cls, sig, win):
    T = np.zeros((64, 4))
    for l in range(64):
        n, g = l & 15, l >> 4
        bi, c2 = n >> 1, n & 1
        bl = bi & 3
        for i in range(4):
            bp, c = i >> 1, i & 1
            b = 4 * bp + g
            sarg = 16 * b + cls
            if sig >= 1:
                t = sig + 16 * bl if bi < 4 else sig - 16 * (bl + 1)
                co, si = cs(t * sarg, 2048)
                if c2 == 0:
                    v = co if c == 0 else si
                else:
                    v = -si if c == 0 else co
                    if t < 0: v = -v
                    if win: v = -v
            elif bi < 4:
                if c == 1:
                    v = 0.0
                elif bi == 0:
                    v = 1.0 if c2 == 0 else (-1.0) ** b * (-1.0 if (win and cls != 0) else 1.0)
                else:
                    co, si = cs(16 * bl * sarg, 2048)
                    v = co if c2 == 0 else (-si if not win else si)
            else:
                if c == 0:
                    v = 0.0
                else:
                    co, si = cs((8 + 16 * bl) * sarg, 2048)
                    v = co if c2 == 0 else (-si if not win else si)
            T[l, i] = v
    return T

def k1_perm(jp, nu):
    T = np.zeros((64, 8))
    for l in range(64):
        m, g = l & 15, l >> 4
        k = 16 * nu + m
        if k > 27 or (jp == 0 and k == 0):
            continue
        for i in range(8):
            k2 = 16 * (i >> 2) + 4 * g + (i & 3)
            if k2 == 28 - k:
                T[l, i] = 1.0
    return T

def k2_stageA(var, w, kap):
    T = np.zeros((64, 8))
    for l in range(64):
        m, g = l & 15, l >> 4
        if (m >> 2) != g:
            continue
        tl, c1 = (m & 3) >> 1, m & 1
        t2 = 8 * (var & 1) + 2 * w + tl
        for i in range(8):
            cl, c = 4 * kap + (i >> 1), i & 1
            if var < 2:
                co, si = cs(t2 * cl, 16)
                v = (co if c == 0 else si) if c1 == 0 else (-si if c == 0 else co)
            elif var < 4:
                co, si = cs(t2 * cl, 16)
                v = 0.0 if c == 1 else (co if c1 == 0 else -si)
            else:
                co, si = cs((2 * t2 + 1) * cl, 32)
                v = 0.0 if c == 0 else (co if c1 == 0 else -si)
            T[l, i] = v
    return T

def k2_B1(c2):
    T = np.zeros((64, 4))
    for l in range(64):
        eb, g = l & 15, l >> 4
        for i in range(4):
            sub, c1 = i >> 1, i & 1
            co, si = cs(eb * (2 * g + sub), 16)
            T[l, i] = (co if c1 == 0 else si) if c2 == 0 else (-si if c1 == 0 else co)
    return T

def k2_B2(mu, ta):
    T = np.zeros((64, 8))
    for l in range(64):
        n, g = l & 15, l >> 4
        ea = 16 * mu + n
        for i in range(8):
            c2, ii = i >> 2, i & 3
            da = 16 * ta + 4 * g + ii
            if ea >= 28 or da > 28:
                continue
            co, si = cs(ea * da, 28)
            T[l, i] = co if c2 == 0 else si
    return T

def build_tables():
    tabs = {}
    tabs['k1s1'] = [[rb(k1_stage1(w, k)) for k in range(2)] for w in range(4)]
    tabs['k2A'] = [[[rb(k2_stageA(v, w, k)) for k in range(4)] for w in range(4)] for v in range(5)]
    tabs['k2B1'] = [rb(k2_B1(c)) for c in range(2)]
    tabs['k2tw'] = [k2_tw(ta) for ta in range(2)]
    tabs['k2B2'] = [[rb(k2_B2(mu, ta)) for ta in range(2)] for mu in range(2)]
    return tabs

def emu_k1(x, ws, cls, jp, tabs):
    xf = np.concatenate([x.reshape(-1), np.zeros(64, dtype=np.float32)])
    clsw = [cls, (16 - cls) % 16]
    col = [28 * jp, 420 - 28 * jp]
    lds = np.zeros(8192, dtype=np.float32)
    for w in range(4):
        for k in range(4):
            win, bp = k >> 1, k & 1
            for l in range(64):
                g, al, q = l >> 4, (l >> 2) & 3, l & 3
                s = 128 * (4 * w + al) + 16 * (4 * bp + g) + clsw[win]
                src = s * 448 + col[win] + (q ^ ((g & 1) << 1)) * 8
                dst = (w * 4096 + k * 1024 + l * 16) // 2
                lds[dst:dst + 8] = xf[src:src + 8]
    r_, cc = (L >> 2) & 3, L & 3
    sw = (jp >> 1) & 1
    for w in range(4):
        D1 = {}
        for win in range(2):
            for bp in range(2):
                for nt in range(2):
                    base = LG * 256 + r_ * 64 + (nt ^ (LG & 1)) * 32 + cc * 8
                    acc = None
                    for kap in range(2):
                        op = np.concatenate([tr_read(lds, base + (2 * kap + hh) * 4096 + win * 2048 + bp * 1024) for hh in range(2)], axis=1)
                        acc = mfma(tabs['k1s1'][w][kap], op, acc)
                    D1[win, bp, nt] = acc
        for al in range(2):
            sig = 2 * w + al
            D2 = {}
            for win in range(2):
                Bc = rb(k1_stage2(clsw[win], sig, win))
                for nt in range(2):
                    A = rb(np.concatenate([D1[win, p, nt][:, 2 * al:2 * al + 2] for p in range(2)], axis=1))
                    D2[win, nt] = mfma16(A, Bc)
            B2 = rb(np.concatenate([D2[1, 0], D2[1, 1]], axis=1))
            for nt in range(2):
                v = rb(mfma(k1_perm(jp, nt), B2, D2[0, nt]))
                for l in range(64):
                    n, g = l & 15, l >> 4
                    vv = v[l].copy()
                    if nt == 1 and g == 3:
                        vv[1:] = 1.25
                        if jp != 7: vv[0] = 0
                    off = t1_of(sig, n >> 1) * CH + jp * 2048 + cls * 128 + (n & 1) * 64 + (nt ^ sw) * 32 + g * 8
                    ws[off // 2:off // 2 + 4] = vv

def emu_k2(ws, out, tau, h, tabs):
    var = 4 if tau == 64 else (2 + h if tau == 0 else h)
    lds = ws[(tau & 63) * CH // 2:((tau & 63) + 1) * CH // 2]
    r_, cc = (L >> 2) & 3, L & 3
    for w in range(4):
        DA = {}
        for ta in range(2):
            base = LG * 4096 + r_ * 64 + (ta ^ (LG & 1)) * 32 + cc * 8
            for sub in range(2):
                acc = None
                for kap in range(4):
                    op = np.concatenate([tr_read(lds, base + (4 * kap + 2 * hh) * 128 + sub * 2048) for hh in range(2)], axis=1)
                    acc = mfma(tabs['k2A'][var][w][kap], op, acc)
                DA[ta, sub] = acc
        for tl in range(2):
            H = []
            for ta in range(2):
                A = rb(np.concatenate([DA[ta, p][:, 2 * tl:2 * tl + 2] for p in range(2)], axis=1))
                Gr = mfma16(A, tabs['k2B1'][0]); Gi = mfma16(A, tabs['k2B1'][1])
                co, si = tabs['k2tw'][ta]
                H.append(rb(np.concatenate([co * Gr + si * Gi, co * Gi - si * Gr], axis=1)))
            pk = []
            for mu in range(2):
                pk.append(rb(mfma(H[1], tabs['k2B2'][mu][1], mfma(H[0], tabs['k2B2'][mu][0]))))
            X0, Y0 = swap16(pk[0][:, 0:2], pk[1][:, 0:2])
            X1, Y1 = swap16(pk[0][:, 2:4], pk[1][:, 2:4])
            F = np.concatenate([X0, X1, Y0, Y1], axis=1)
            ea = LN + 16 * (LG & 1)
            p = 2 * ea + (LG >> 1)
            valid = ea < 28
            t = tau + 128 * (8 * h + 2 * w + tl)
            lane_of = {int(p[l]): l for l in range(64) if valid[l]}
            for l in range(64):
                if not valid[l]:
                    continue
                out[t, 8 * p[l]: 8 * p[l] + 8] = F[l]
                if tau != 0:
                    nx = F[lane_of[(int(p[l]) + 1) % 56]]
                    pp = 55 - p[l]
                    out[2048 - t, 8 * pp: 8 * pp + 8] = np.concatenate([[nx[0]], F[l][7:0:-1]])

if __name__ == '__main__':
    rng = np.random.default_rng(0)
    x = rb(rng.standard_normal((S, D)) * 0.05)
    tabs = build_tables()
    ws = np.full(64 * CH // 2, np.nan, dtype=np.float32)
    for cls in range(16):
        for jp in range(8):
            emu_k1(x, ws, cls, jp, tabs)
    print('k1 nan', np.isnan(ws).sum())
    out = np.full((S, D), np.nan, dtype=np.float32)
    for tau in range(64):
        for h in range(2):
            emu_k2(ws, out, tau, h, tabs)
    emu_k2(ws, out, 64, 0, tabs)
    ref = np.fft.fft2(x.astype(np.float64)).real
    e = np.abs(out - ref)
    print('nan', np.isnan(out).sum(), 'maxerr', np.nanmax(e), 'rms', np.sqrt(np.nanmean(e ** 2)), 'worst rows', np.argsort(-np.nanmax(e, axis=1))[:8])
```

```python
import sys, numpy as np
from asmlib import Asm
import design as dz
import design3 as d3
from gen import gen_k3, NAME, XB, OUTB, vr, op_bytes, emit_data, kd

KN = NAME + '_kernel'
NWG = 258
CH = 16384
WSB = 2 * 64 * CH
CELL = WSB
L_CONST = 16384
L_STG = 28672
LDS = L_STG + 4 * 2304
SB = 72
EM_LO, EM_HI = 0x00F0000F, 0xF0000F00
M32 = 'v_mfma_f32_16x16x32_bf16'
M16 = 'v_mfma_f32_16x16x16_bf16'

def pstamp(a, opt, i):
    if opt.get('prof'):
        a('s_memtime s[%d:%d]' % (SB + 2 * i, SB + 1 + 2 * i))

def stamp(a, opt, i):
    if opt.get('stamp') and not opt.get('prof'):
        a('s_memrealtime s[%d:%d]' % (SB + 2 * i, SB + 1 + 2 * i))

def stamp_out(a, opt, n):
    if not opt.get('stamp'):
        return
    stamp(a, opt, n - 2)
    if opt.get('prof'): n = opt['prof']; pstamp(a, opt, n - 1)
    a('s_waitcnt vmcnt(0)')
    stamp(a, opt, n - 1)
    a('s_getreg_b32 s58, hwreg(HW_REG_XCC_ID)')
    a('s_getreg_b32 s59, hwreg(HW_REG_HW_ID)')
    a('s_lshl_b32 s62, s2, 2\ns_add_u32 s62, s62, s4\ns_lshl_b32 s62, s62, 6\ns_add_u32 s62, s62, %d' % (16 << 20))
    a('s_waitcnt lgkmcnt(0)\ns_add_u32 s60, s12, s62\ns_addc_u32 s61, s13, 0')
    a('v_mov_b32 v0, 0')
    for i in range(n):
        a('v_mov_b32 v1, s%d\nglobal_store_dword v0, v1, s[60:61] offset:%d' % (SB + 2 * i, 4 * i))
    a('v_mov_b32 v1, s55\nglobal_store_dword v0, v1, s[60:61] offset:52')
    a('v_mov_b32 v1, s58\nglobal_store_dword v0, v1, s[60:61] offset:56')
    a('v_mov_b32 v1, s59\nglobal_store_dword v0, v1, s[60:61] offset:60')

def k2_table(tabs):
    b = b''
    for ta in range(2):
        for x in tabs['k2tw'][ta]:
            b += x.astype('<f4').tobytes()
    for mu in range(2):
        for ta in range(2):
            b += op_bytes(tabs['k2B2'][mu][ta])
    b += op_bytes(np.concatenate(tabs['k2B1'], axis=1))
    act = [l for l in range(64) if ((l & 15) >> 2) == (l >> 4)]
    for v in range(5):
        for w in range(4):
            for k in range(4):
                b += op_bytes(tabs['k2A'][v][w][k][act])
    return b

CA, CB1, CTW, CB2 = 128, 144, 148, 164
VA = 180

def paired(a, rd, mf, after, n=16, depth=7):
    for i in range(depth): rd(i)
    issued = depth
    for k in range(n // 2):
        a('s_waitcnt lgkmcnt(%d)' % (2 * (issued - 2 * k - 2)))
        mf(2 * k); mf(2 * k + 1)
        for _ in range(2):
            if issued < n:
                rd(issued); issued += 1
        for t in after.get(k, []): a(t)

def mix(xs, ys, step, first=0):
    ys = list(ys); o = []
    for n, x in enumerate(xs):
        if n >= first and (n - first) % step == 0 and ys:
            o.append(ys.pop(0))
        o.append(x)
    return o + ys

def gen(opt):
    a = Asm()
    V = dict(b0=VA, b1=VA + 1, f=VA + 2, m=VA + 3, p=VA + 4, tg=VA + 5, t=VA + 6, u=VA + 7)
    a('''
%s:
s_bfe_u32 s5, s2, 0x10003
s_mul_i32 s7, s5, 40
s_load_dwordx2 s[8:9], s[0:1], s7
s_load_dwordx2 s[12:13], s[0:1], 96
s_load_dwordx2 s[44:45], s[0:1], 80
s_cmp_ge_u32 s2, %d
s_cbranch_scc1 L_END
''' % (KN, NWG))
    stamp(a, opt, 0)
    a('''
v_lshrrev_b32 v6, 6, v0
v_and_b32 v0, 63, v0
v_readfirstlane_b32 s4, v6
s_and_b32 s33, s2, 7
s_lshr_b32 s6, s2, 5
s_sub_u32 s3, 16, s33
s_cmp_eq_u32 s33, 0
s_cselect_b32 s3, 8, s3
s_bfe_u32 s36, s2, 0x10004
s_cselect_b32 s3, s3, s33
s_sub_u32 s32, 16, s3
s_and_b32 s32, s32, 15
v_lshrrev_b32 v6, 4, v0
v_bfe_u32 v7, v0, 2, 2
v_mul_u32_u24 v2, 14336, v6
v_mul_u32_u24 v7, 114688, v7
v_lshrrev_b32 v3, 3, v0
v_and_b32 v3, 2, v3
v_xor_b32 v4, v3, v0
v_and_b32 v4, 3, v4
v_lshlrev_b32 v4, 4, v4
v_add3_u32 v2, v2, v7, v4
s_lshl_b32 s22, s4, 12
s_add_u32 m0, s22, 2048
s_mul_i32 s20, s4, 458752
s_mul_i32 s21, s6, 56
s_mul_i32 s24, s3, 896
s_mul_i32 s26, s32, 896
s_add_u32 s24, s24, s20
s_add_u32 s26, s26, s20
s_add_u32 s24, s24, s21
s_sub_u32 s26, s26, s21
s_add_u32 s25, s24, 56320
s_add_u32 s27, s26, %d
s_add_u32 s26, s26, %d
s_mov_b32 s10, %d
s_mov_b32 s11, 0x20000
s_mov_b32 s14, %d
s_mov_b32 s15, 0x20000
s_and_b32 s20, s2, 1
s_cmp_ge_u32 s2, 256
s_cselect_b32 s5, s20, s5
s_lshl_b32 s20, s5, 7
s_add_u32 s20, s20, %d
v_lshlrev_b32 v1, 4, v0
s_cmp_ge_u32 s2, 256
s_waitcnt lgkmcnt(0)
''' % (840 + 56320, 840, XB, WSB, CELL))
    stamp(a, opt, 1)
    a('''
s_cbranch_scc1 L_SKIP1
buffer_load_dwordx4 v2, s[8:11], s26 offen lds
buffer_load_dwordx4 v2, s[8:11], s27 offen offset:1024 lds
s_mov_b32 m0, s22
buffer_load_dwordx4 v2, s[8:11], s24 offen lds
buffer_load_dwordx4 v2, s[8:11], s25 offen offset:1024 lds
L_SKIP1:
s_load_dwordx2 s[34:35], s[12:13], s20
s_mov_b32 s46, %d
s_mov_b32 s47, 0x20000
s_getpc_b64 s[16:17]
L_PC:
s_lshl_b32 s20, s6, 3
s_add_u32 s33, s33, s20
s_cmp_eq_u32 s33, 0
s_cselect_b32 s20, 2, 0
s_add_u32 s20, s20, s36
s_cmp_ge_u32 s2, 256
s_cselect_b32 s33, 64, s33
s_cselect_b32 s20, 4, s20
s_cselect_b32 s36, 0, s36
s_add_u32 s16, s16, K2_TAB-L_PC
s_addc_u32 s17, s17, 0
s_add_u32 s40, s16, 8192
s_addc_u32 s41, s17, 0
s_lshl_b32 s20, s20, 12
s_lshl_b32 s21, s4, 10
s_add_u32 s20, s20, s21
s_add_u32 s20, s20, 7168
s_add_u32 s18, s16, s20
s_addc_u32 s19, s17, 0
s_lshl_b32 s21, s4, 11
s_add_u32 s16, s16, s21
s_addc_u32 s17, s17, 0
s_mul_i32 s53, s4, 3072
s_add_u32 s53, s53, %d
s_cmp_ge_u32 s2, 256
s_cbranch_scc1 L_CONS
''' % (OUTB, L_CONST))
    a('''
s_lshl_b32 s20, s4, 1
v_bfe_u32 v32, v0, 1, 1
v_add_u32 v32, s20, v32
v_and_b32 v33, 1, v0
v_cmp_eq_u32 vcc, 0, v32
v_lshlrev_b32 v34, 3, v33
v_lshlrev_b32 v35, 2, v33
v_cndmask_b32 v32, v32, v34, vcc
v_cndmask_b32 v35, v35, 0, vcc
v_and_b32 v34, 1, v32
v_cvt_f32_u32 v32, v32
v_cvt_f32_u32 v35, v35
v_mul_u32_u24 v34, 0x8000, v34
v_mul_f32 v32, 0x3d800000, v32
v_mul_f32 v35, 0x3d800000, v35
v_lshl_or_b32 v34, v34, 16, v34
''')
    for i in range(8, 12): a('v_mov_b32 v%d, 0' % i)
    a('s_mov_b32 exec_lo, 0x%x\ns_mov_b32 exec_hi, 0x%x' % (EM_LO, EM_HI))
    for p in range(4):
        a('v_cos_f32 v36, v35\nv_add_f32 v35, v35, v32\nv_cos_f32 v37, v35')
        a('v_add_f32 v35, v35, v32' if p < 3 else 's_nop 0')
        a('v_cvt_pk_bf16_f32 v%d, v36, v37' % (8 + p))
    a('s_mov_b64 exec, -1')
    for p in range(4): a('v_xor_b32 v%d, v34, v%d' % (12 + p, 8 + p))
    a('''
v_lshlrev_b32 v38, 3, v0
v_and_b32 v38, 0x30, v38
v_and_b32 v39, 0x30, v0
v_add_u32 v40, s32, v39
v_add_u32 v39, s3, v39
v_and_b32 v47, 8, v0
v_cmp_ne_u32 s[56:57], 0, v47
v_cvt_f32_u32 v39, v39
v_cvt_f32_u32 v40, v40
v_cvt_f32_u32 v48, v33
v_sub_u32 v45, -16, v38
v_mul_f32 v39, 0x3a000000, v39
v_mul_f32 v40, 0x3a000000, v40
v_cndmask_b32 v45, v38, v45, s[56:57]
v_mul_f32 v49, 0x3e800000, v48
v_mul_f32 v50, 0.5, v48
v_add_u32 v45, s20, v45
v_add_f32 v43, v49, v50
v_add_u32 v46, 1, v45
v_cndmask_b32 v43, v49, v43, s[56:57]
v_add_f32 v44, v43, v50
v_mov_b32 v41, v43
v_mov_b32 v42, v44
s_cmp_lg_u32 s4, 0
s_cbranch_scc1 L_REG
v_cvt_f32_u32 v51, v6
v_add_u32 v45, v47, v38
v_and_b32 v52, 14, v0
v_add_f32 v41, 0x3e800000, v49
v_cmp_eq_u32 vcc, 0, v52
v_mul_f32 v51, v51, v50
v_cndmask_b32 v41, v49, v41, s[56:57]
s_cmp_eq_u32 s3, 0
s_cselect_b64 s[58:59], vcc, 0
v_cndmask_b32 v41, v41, v51, vcc
v_add_f32 v42, v41, v50
v_cndmask_b32 v42, v42, v41, s[58:59]
L_REG:
v_cvt_f32_i32 v45, v45
v_cvt_f32_i32 v46, v46
''')
    for al in range(2):
        a('v_mul_f32 v47, 0x3d000000, v%d' % (45 + al))
        for win in range(2):
            a('v_fma_f32 v50, v%d, v%d, v%d' % (45 + al, 39 + win, 41 + 2 * al + win))
            a('v_cos_f32 v36, v50\nv_sin_f32 v37, v50\nv_add_f32 v50, v50, v47')
            a('v_cvt_pk_bf16_f32 v%d, v36, v37' % (16 + 4 * al + 2 * win))
            a('v_cos_f32 v36, v50\nv_sin_f32 v37, v50\ns_nop 0')
            a('v_cvt_pk_bf16_f32 v%d, v36, v37' % (17 + 4 * al + 2 * win))
    a('''
s_cmp_lg_u32 s4, 0
s_cbranch_scc1 L_REG2
v_mov_b32 v36, 0xffff
v_not_b32 v37, v36
v_cndmask_b32 v36, v36, v37, s[56:57]
''')
    for p in range(4): a('v_and_b32 v%d, v36, v%d' % (16 + p, 16 + p))
    a('L_REG2:')
    a('''
v_and_b32 v36, 15, v0
v_lshl_add_u32 v37, v6, 2, v36
v_sub_u32 v38, 28, v37
v_sub_u32 v37, 12, v37
v_mov_b32 v41, 0
v_mov_b32 v42, 0x3f80
v_cmp_gt_u32 vcc, 4, v38
v_lshlrev_b32 v38, 4, v38
v_mov_b32 v30, 0
v_cndmask_b32 v40, 0, v42, vcc
v_cmp_gt_u32 vcc, 4, v37
v_lshlrev_b64 v[24:25], v38, v[40:41]
v_lshlrev_b32 v37, 4, v37
v_cndmask_b32 v40, 0, v42, vcc
s_cmp_eq_u32 s6, 0
s_cselect_b32 s21, 0, 0x3f80
v_lshlrev_b64 v[26:27], v37, v[40:41]
v_mov_b32 v31, 0
v_mov_b32 v28, v26
v_mov_b32 v29, v27
v_writelane_b32 v26, s21, 48
v_writelane_b32 v28, 0, 12
''')
    a('''
v_lshlrev_b32 v3, 4, v3
v_and_b32 v4, 3, v0
v_lshl_add_u32 v3, v4, 3, v3
v_and_b32 v7, 0x3c0, v1
v_add_u32 v3, v3, v7
v_bfe_u32 v5, v0, 3, 2
v_lshlrev_b32 v5, 18, v5
v_and_b32 v7, 0x70, v1
v_add_u32 v5, v5, v7
s_lshl_b32 s21, s4, 2
s_sub_u32 s22, 14, s21
s_sub_u32 s21, 16, s21
s_cmp_eq_u32 s4, 0
s_cselect_b32 s21, 8, s21
s_lshl_b32 s21, s21, 14
s_lshl_b32 s22, s22, 14
v_lshrrev_b32 v7, 5, v0
v_mad_u32_u24 v53, v7, s22, v5
v_mad_u32_u24 v5, v7, s21, v5
s_mul_i32 s20, s4, 2304
s_add_u32 s20, s20, %d
v_lshrrev_b32 v2, 2, v0
v_mul_u32_u24 v2, 72, v2
v_lshl_add_u32 v2, v4, 4, v2
v_add_u32 v2, s20, v2
v_xor_b32 v4, 32, v3
s_lshl_b32 s21, s6, 4
s_and_b32 s21, s21, 32
s_add_u32 s22, s20, s21
s_xor_b32 s21, s21, 32
s_add_u32 s23, s20, s21
v_mul_u32_u24 v7, 72, v36
v_lshl_add_u32 v7, v6, 3, v7
v_add_u32 v6, s22, v7
v_add_u32 v7, s23, v7
s_lshl_b32 s20, s5, 20
s_lshl_b32 s21, s3, 7
s_add_u32 s20, s20, s21
s_lshl_b32 s21, s6, 11
s_add_u32 s20, s20, s21
s_lshl_b32 s21, s4, 15
s_add_u32 s28, s20, s21
s_add_u32 s29, s28, %d
s_cmp_eq_u32 s6, 7
s_cselect_b32 s30, 0xffff, 0
''' % (L_STG, CH))
    NONCE = '''
s_waitcnt lgkmcnt(0)
s_or_b32 s34, s34, 0x40000000
s_or_b32 s35, s35, 0x40004000
s_add_u32 s34, s34, 0x2b150000
s_add_u32 s35, s35, 0x1e3739b9
s_and_b32 s34, s34, 0xbfff0000
s_and_b32 s35, s35, 0xbfffbfff
'''
    a(NONCE)
    a('v_mov_b32 v54, s34\ns_waitcnt vmcnt(0)')
    stamp(a, opt, 2)
    if opt.get('stamp') and not opt.get('prof'): a('s_waitcnt lgkmcnt(0)')
    a('s_barrier')
    pstamp(a, opt, 0)
    CD = ['s_mov_b32 m0, s53',
          'global_load_dwordx4 %s, v1, s[40:41]' % vr(CB1),
          'global_load_lds_dwordx4 v1, s[16:17]',
          'global_load_lds_dwordx4 v1, s[16:17] offset:1024',
          'global_load_lds_dwordx4 v1, s[18:19] offset:2048']
    order = [(win, kap, nt, bp) for win in (1, 0) for kap in range(2) for nt in range(2) for bp in range(2)]
    ACC = lambda win, nt, bp: 32 + 4 * (bp + 2 * nt) if win else 112 + 4 * (bp + 2 * nt)
    OPR = lambda i: 56 + 4 * (i % 14) if i < 14 else 56 + 4 * (i - 14)
    def rd(i):
        win, kap, nt, bp = order[i]
        for hh in range(2):
            a('ds_read_b64_tr_b16 %s, v%d offset:%d' % (vr(OPR(i) + 2 * hh, 2), 3 + nt, (2 * kap + hh) * 4096 + win * 2048 + bp * 1024))
        if i == 6:
            for t in CD: a(t)
    def mf(i):
        win, kap, nt, bp = order[i]
        A = ACC(win, nt, bp)
        a('%s %s, %s, %s, %s' % (M32, vr(A), vr(8 + 4 * kap), vr(OPR(i)), vr(A) if kap else '0'))
    A2 = lambda al, win, nt: 64 + 2 * (al + 2 * nt) if win else 32 + 2 * (al + 2 * nt)
    def cv(win, nt):
        return ['v_cvt_pk_bf16_f32 v%d, v%d, v%d' % (A2(al, win, nt) + p, ACC(win, nt, p) + 2 * al, ACC(win, nt, p) + 2 * al + 1) for al in range(2) for p in range(2)]
    D2M = lambda al, nt: 32 + 4 * (nt + 2 * al)
    B2 = lambda al: 72 + 4 * al
    D2 = lambda al, nt: 80 + 4 * (nt + 2 * al)
    def m2m(al, nt): return '%s %s, %s, %s, 0' % (M16, vr(D2M(al, nt)), vr(A2(al, 1, nt), 2), vr(18 + 4 * al, 2))
    def cvm(al): return ['v_cvt_pk_bf16_f32 v%d, v%d, v%d' % (B2(al) + 2 * nt + h, D2M(al, nt) + 2 * h, D2M(al, nt) + 2 * h + 1) for nt in range(2) for h in range(2)]
    def mp(al, nt): return '%s %s, %s, %s, 0' % (M32, vr(D2(al, nt)), vr(24 + 4 * nt), vr(B2(al)))
    def m2(al, nt): return '%s %s, %s, %s, %s' % (M16, vr(D2(al, nt)), vr(A2(al, 0, nt), 2), vr(16 + 4 * al, 2), vr(D2(al, nt)))
    after = {4: cv(1, 0) + cv(1, 1),
             5: [m2m(0, 0), m2m(0, 1), m2m(1, 0), m2m(1, 1)],
             6: cvm(0),
             7: cvm(1) + [mp(0, 0), mp(0, 1), mp(1, 0), mp(1, 1)]}
    paired(a, rd, mf, after)
    pstamp(a, opt, 1)
    for t in cv(0, 0) + cv(0, 1)[:2] + [m2(0, 0)] + cv(0, 1)[2:] + [m2(0, 1), m2(1, 0), m2(1, 1)]: a(t)
    PK = lambda al, nt: 96 + 2 * (nt + 2 * al)
    def pack(al, nt): return ['v_cvt_pk_bf16_f32 v%d, v%d, v%d' % (PK(al, nt) + h, D2(al, nt) + 2 * h, D2(al, nt) + 2 * h + 1) for h in range(2)]
    def wr(al, nt): return 'ds_write_b64 v%d, %s offset:%d' % (6 + nt, vr(PK(al, nt), 2), 1152 * al)
    a('s_mov_b32 s56, 0\ns_mov_b32 s57, 0xffff0000')
    for t in pack(0, 0) + pack(0, 1) + [wr(0, 0)] + pack(1, 0) + [wr(1, 0)] + pack(1, 1): a(t)
    a('s_mov_b64 exec, s[56:57]')
    for al in range(2):
        a('v_and_or_b32 v%d, v%d, s30, v54\nv_mov_b32 v%d, s35' % (PK(al, 1), PK(al, 1), PK(al, 1) + 1))
    a('s_mov_b64 exec, -1')
    for al in range(2):
        a(wr(al, 1))
        a('ds_read2_b64 %s, v2 offset0:%d offset1:%d' % (vr(104 + 4 * al), 144 * al, 144 * al + 1))
    pstamp(a, opt, 2)
    if opt.get('prof'): a('s_waitcnt lgkmcnt(0)')
    a('s_waitcnt lgkmcnt(2) vmcnt(0)')
    a('buffer_store_dwordx4 v[104:107], v5, s[12:15], s28 offen %s' % opt.get('k1st', 'sc1'))
    a('s_waitcnt lgkmcnt(0)')
    a('buffer_store_dwordx4 v[108:111], v53, s[12:15], s29 offen %s' % opt.get('k1st', 'sc1'))
    stamp(a, opt, 3)
    pstamp(a, opt, 3)
    a('s_branch L_P2\nL_CONS:')
    a(NONCE)
    for t in CD: a(t)
    a('s_waitcnt vmcnt(0)\nL_P2:\ns_barrier')
    a('''
v_lshrrev_b32 v6, 4, v0
v_lshlrev_b32 v{b0}, 12, v6
v_and_b32 v7, 0xc0, v1
v_add_u32 v{b0}, v{b0}, v7
v_and_b32 v6, 1, v6
v_lshl_add_u32 v{b0}, v6, 5, v{b0}
v_and_b32 v6, 3, v0
v_lshl_add_u32 v{b0}, v6, 3, v{b0}
v_xor_b32 v{b1}, 32, v{b0}
v_and_b32 v{f}, 31, v0
v_lshrrev_b32 v6, 5, v0
v_lshl_add_u32 v6, v{f}, 1, v6
v_add_u32 v7, 1, v6
v_cmp_ne_u32 vcc, 56, v7
v_mov_b32 v{t}, 0x40000000
v_lshlrev_b32 v6, 4, v6
v_cndmask_b32 v7, 0, v7, vcc
v_cmp_gt_u32 vcc, 28, v{f}
v_sub_u32 v{m}, 880, v6
v_and_b32 v{u}, 1, v7
v_cndmask_b32 v{f}, v{t}, v6, vcc
v_cndmask_b32 v{m}, v{t}, v{m}, vcc
v_lshlrev_b32 v7, 1, v7
v_and_b32 v7, 0x7c, v7
v_lshl_add_u32 v{p}, v{u}, 7, v7
s_lshl_b32 s22, s4, 12
s_and_b32 s20, s4, 1
s_lshl_b32 s20, s20, 5
s_sub_u32 s20, 56, s20
s_add_u32 s20, s20, s22
v_and_b32 v{tg}, 0x3c0, v1
v_add_u32 v{tg}, s20, v{tg}
v_and_b32 v6, 0xf0, v1
v_add_u32 v6, s53, v6
v_add_u32 v7, {cc}, v1
'''.format(cc=L_CONST, **V))
    for i in range(16): a('v_mov_b32 v%d, 0' % (CA + i))
    a('''
s_lshl_b32 s21, s36, 2
s_add_u32 s21, s21, s4
s_lshl_b32 s21, s21, 8
s_add_u32 s21, s21, s33
s_mul_i32 s21, s21, 1792
s_mul_i32 s20, s5, 896
s_add_u32 s48, s21, s20
s_add_u32 s49, s48, %d
s_sub_u32 s50, s20, s21
s_add_u32 s51, s50, %d
s_add_u32 s50, s50, %d
s_mov_b32 s52, 0xffff
s_and_b32 s21, s33, 63
s_lshl_b32 s20, s5, 6
s_add_u32 s21, s21, s20
s_lshl_b32 s21, s21, 14
s_add_u32 s54, s22, s21
s_mov_b32 s55, 0x40000
s_mov_b32 m0, s22
s_mov_b32 exec_lo, 0x%x
s_mov_b32 exec_hi, 0x%x
''' % (128 * 1792, 1920 * 1792, 2048 * 1792, EM_LO, EM_HI))
    for k in range(4): a('ds_read_b128 %s, v6 offset:%d' % (vr(CA + 4 * k), 2048 + 256 * k))
    a('s_mov_b64 exec, -1')
    for i in range(8): a('ds_read_b128 %s, v7 offset:%d' % (vr(CTW + 4 * i), (i >> 1) * 3072 + (i & 1) * 1024))
    ld = opt.get('k2ld', 'sc1')
    if not opt.get('early'): a('s_waitcnt vmcnt(0)')
    stamp(a, opt, 4)
    a('''
s_cmp_lt_u32 s2, 256
s_cbranch_scc1 L_POLL0
s_mov_b64 exec, 15
L_SENT:
buffer_load_dwordx4 v1, s[12:15], s54 offen {ld} lds
s_waitcnt vmcnt(0)
ds_read_b64 v[8:9], v{tg}
s_waitcnt lgkmcnt(0)
v_cmp_ne_u32 vcc, s35, v9
s_cbranch_vccz L_POLL0
s_sub_u32 s55, s55, 1
s_cbranch_scc0 L_SENT
L_POLL0:
s_mov_b64 s[56:57], -1
s_mov_b64 s[58:59], -1
s_mov_b64 s[60:61], -1
s_mov_b64 s[62:63], -1
L_POLL:
'''.format(ld=ld, **V))
    for k in range(4):
        a('s_mov_b64 exec, s[%d:%d]\ns_cbranch_execz L_NO%d' % (56 + 2 * k, 57 + 2 * k, k))
        a('buffer_load_dwordx4 v1, s[12:15], s54 offen offset:%d %s lds' % (1024 * k, ld))
        a('L_NO%d:' % k)
    a('s_mov_b64 exec, -1\ns_waitcnt vmcnt(0)')
    for k in range(4): a('ds_read_b64 %s, v%d offset:%d' % (vr(8 + 2 * k, 2), V['tg'], 1024 * k))
    for k in range(4):
        a('s_waitcnt lgkmcnt(%d)' % (3 - k))
        a('v_and_b32 v%d, 0xffff0000, v%d' % (8 + 2 * k, 8 + 2 * k))
        a('v_cmp_ne_u64 s[%d:%d], s[34:35], %s' % (56 + 2 * k, 57 + 2 * k, vr(8 + 2 * k, 2)))
    a('''
s_or_b64 s[64:65], s[56:57], s[58:59]
s_or_b64 s[66:67], s[60:61], s[62:63]
s_or_b64 s[64:65], s[64:65], s[66:67]
s_cbranch_scc0 L_GO
s_sub_u32 s55, s55, 1
s_cbranch_scc0 L_POLL
L_GO:
''')
    stamp(a, opt, 5)
    if opt.get('stamp') and not opt.get('prof'): a('s_waitcnt lgkmcnt(0)')
    a('s_barrier')
    pstamp(a, opt, 4)
    order = [(ta, kap, sub) for ta in range(2) for kap in range(4) for sub in range(2)]
    DA = lambda ta, sub: 8 + 4 * (sub + 2 * ta)
    OPR = lambda i: 24 + 4 * i
    def rd(i):
        ta, kap, sub = order[i]
        for hh in range(2):
            a('ds_read_b64_tr_b16 %s, v%d offset:%d' % (vr(OPR(i) + 2 * hh, 2), V['b0'] + ta, (4 * kap + 2 * hh) * 128 + sub * 2048))
    def mf(i):
        ta, kap, sub = order[i]
        a('%s %s, %s, %s, %s' % (M32, vr(DA(ta, sub)), vr(CA + 4 * kap), vr(OPR(i)), vr(DA(ta, sub)) if kap else '0'))
    A1 = lambda tl, ta: 88 + 2 * (tl + 2 * ta)
    def cv(ta):
        return ['v_cvt_pk_bf16_f32 v%d, v%d, v%d' % (A1(tl, ta) + p, DA(ta, p) + 2 * tl, DA(ta, p) + 2 * tl + 1) for tl in range(2) for p in range(2)]
    D1 = lambda tl, ta, c: 96 + 4 * (c + 2 * tl) if ta == 0 else 112 + 4 * (c + 2 * tl)
    def b1(tl, ta, c):
        return '%s %s, %s, %s, 0' % (M16, vr(D1(tl, ta, c)), vr(A1(tl, ta), 2), vr(CB1 + 2 * c, 2))
    HT = lambda tl, ta: 24 + 8 * (tl + 2 * ta)
    HP = lambda tl, ta: 8 + 4 * tl if ta == 0 else 56 + 4 * tl
    def tw(tl, ta):
        r, i, h, co, si = D1(tl, ta, 0), D1(tl, ta, 1), HT(tl, ta), CTW + 8 * ta, CTW + 4 + 8 * ta
        o = []
        for q in range(4):
            o.append('v_mul_f32 v%d, v%d, v%d' % (h + q, co + q, r + q))
        for q in range(4):
            o.append('v_mul_f32 v%d, v%d, v%d' % (h + 4 + q, co + q, i + q))
        for q in range(4):
            o.append('v_fmac_f32 v%d, v%d, v%d' % (h + q, si + q, i + q))
            o.append('v_fma_f32 v%d, -v%d, v%d, v%d' % (h + 4 + q, si + q, r + q, h + 4 + q))
        for q in range(4):
            o.append('v_cvt_pk_bf16_f32 v%d, v%d, v%d' % (HP(tl, ta) + q, h + 2 * q, h + 2 * q + 1))
        return o
    D2 = lambda tl, mu: 64 + 4 * (mu + 2 * tl)
    def b2(tl, mu, ta):
        return '%s %s, %s, %s, %s' % (M32, vr(D2(tl, mu)), vr(HP(tl, ta)), vr(CB2 + 4 * (2 * mu + ta)), vr(D2(tl, mu)) if ta else '0')
    F = lambda tl: 80 + 4 * tl
    M = lambda tl: 96 + 4 * tl
    st = opt.get('k2st', 'sc1')
    def fin(tl):
        o = []
        for mu in range(2):
            for h in range(2):
                o.append('v_cvt_pk_bf16_f32 v%d, v%d, v%d' % (F(tl) + 2 * mu + h, D2(tl, mu) + 2 * h, D2(tl, mu) + 2 * h + 1))
        return o
    def fin2(tl):
        return ['v_permlane16_swap_b32 v%d, v%d' % (F(tl), F(tl) + 2),
                'v_permlane16_swap_b32 v%d, v%d' % (F(tl) + 1, F(tl) + 3),
                'ds_bpermute_b32 v%d, v%d, v%d' % (2 + tl, V['p'], F(tl)),
                'buffer_store_dwordx4 %s, v%d, s[44:47], s%d offen %s' % (vr(F(tl)), V['f'], 48 + tl, st)]
    def mir(tl):
        return ['v_bfi_b32 v%d, s52, v%d, v%d' % (M(tl) + q, F(tl) + 4 - q, F(tl) + 3 - q) for q in (1, 2, 3)]
    def mir2(tl):
        return ['v_bfi_b32 v%d, s52, v%d, v%d' % (M(tl), 2 + tl, F(tl) + 3),
                'buffer_store_dwordx4 %s, v%d, s[44:47], s%d offen %s' % (vr(M(tl)), V['m'], 50 + tl, st)]
    t00, t10 = tw(0, 0), tw(1, 0)
    after = {4: cv(0),
             5: [b1(0, 0, 0), b1(0, 0, 1), b1(1, 0, 0), b1(1, 0, 1)],
             6: t00[:8],
             7: t00[8:16]}
    paired(a, rd, mf, after)
    pstamp(a, opt, 5)
    seq = cv(1) + t00[16:] + mix(t10, [b1(0, 1, 0), b1(0, 1, 1), b1(1, 1, 0), b1(1, 1, 1), b2(0, 0, 0), b2(0, 1, 0)], 2)
    seq += mix(tw(0, 1), [b2(1, 0, 0), b2(1, 1, 0)], 2, 2)
    t11 = tw(1, 1)
    seq += mix(t11[:12], [b2(0, 0, 1), b2(0, 1, 1)], 2, 2) + fin(0) + t11[12:] + fin2(0)[:2] + [b2(1, 0, 1), b2(1, 1, 1)] + fin2(0)[2:]
    for t in seq: a(t)
    pstamp(a, opt, 6)
    if opt.get('prof'): a('s_waitcnt lgkmcnt(0)')
    a('s_cmp_eq_u32 s33, 0\ns_cbranch_scc1 L_NOMIR')
    for t in mir(0) + ['s_waitcnt lgkmcnt(0)'] + mir2(0) + fin(1) + fin2(1) + mir(1) + ['s_waitcnt lgkmcnt(0)'] + mir2(1): a(t)
    a('''
s_cmp_lt_u32 s2, 256
s_cbranch_scc1 L_FIN
s_cmp_lg_u32 s4, 0
s_cbranch_scc1 L_FIN
s_lshl_b32 s20, s5, 7
s_add_u32 s20, s20, %d
v_mov_b32 v4, s20
v_mov_b32 v6, s34
v_mov_b32 v7, s35
s_mov_b64 exec, 1
global_store_dwordx2 v4, v[6:7], s[12:13]
s_mov_b64 exec, -1
s_branch L_FIN
L_NOMIR:
s_nop 7
''' % CELL)
    for t in fin(1) + fin2(1): a(t)
    a('L_FIN:')
    stamp_out(a, opt, 8)
    a('L_END:\ns_endpgm')
    return a.finish(opt.get('v'))

def build(opt):
    tabs = d3.build_tables()
    hdr = open('cdna_kernels/%s.s.ref' % NAME).read().split('; Override launch')[0]
    s = hdr
    if opt.get('diag'):
        s += '; @launch kernel=%s grid=(%d,1,1) block=(256,1,1) lds=%d\n' % (KN, NWG, LDS)
        s += '; @launch kernel=k3_kernel grid=(1,1,1) block=(64,1,1) lds=0\n'
    else:
        s += '; @launch grid=(%d,1,1) block=(256,1,1) lds=%d\n' % (NWG, LDS)
    s += '.amdgcn_target "amdgcn-amd-amdhsa--gfx950"\n.text\n'
    s += '.globl %s\n.p2align 8\n.type %s,@function\n' % (KN, KN) + gen(opt)
    if opt.get('diag'):
        s += '.globl k3_kernel\n.p2align 8\n.type k3_kernel,@function\n' + gen_k3(opt, [1024])
    s += '.p2align 8\n.type K2_TAB,@object\nK2_TAB:\n' + emit_data(k2_table(tabs))
    s += '.section .rodata,"a"\n' + kd(KN, 188, 96)
    if opt.get('diag'):
        s += kd('k3_kernel', 8, 32)
    return s

if __name__ == '__main__':
    out = sys.argv[1]
    opt = {}
    for kv in sys.argv[2:]:
        k, _, v = kv.partition('=')
        opt[k] = int(v) if v.lstrip('-').isdigit() else (v.replace('+', ' ') if v else 1)
    s = build(opt)
    open(out, 'w').write(s)
    print(out, len(s), 'bytes')
```

```python
import numpy as np
from design import bf16_bits, bf16_val, rb, cs, mfma, swap16, tr_read, k1_stage1, k2_tw, L, LN, LG
S, D = 2048, 448
CH = 16384

def mfma16(A, B, C=None):
    Am = np.zeros((16, 16)); Bm = np.zeros((16, 16))
    for l in range(64):
        Am[l & 15, 4 * (l >> 4):4 * (l >> 4) + 4] = A[l]
        Bm[4 * (l >> 4):4 * (l >> 4) + 4, l & 15] = B[l]
    Dm = Am @ Bm
    Dl = np.zeros((64, 4))
    for l in range(64):
        Dl[l] = Dm[4 * (l >> 4):4 * (l >> 4) + 4, l & 15]
    if C is not None:
        Dl = Dl + C
    return Dl.astype(np.float32)

def t1_of(sig, bi):
    bl = bi & 3
    if bi < 4:
        return sig + 16 * bl
    return 16 * bl + (8 if sig == 0 else 16 - sig)

def k1_stage2(cls, sig, win):
    T = np.zeros((64, 4))
    for l in range(64):
        n, g = l & 15, l >> 4
        bi, c2 = n >> 1, n & 1
        bl = bi & 3
        for i in range(4):
            bp, c = i >> 1, i & 1
            b = 4 * bp + g
            sarg = 16 * b + cls
            if sig >= 1:
                t = sig + 16 * bl if bi < 4 else sig - 16 * (bl + 1)
                co, si = cs(t * sarg, 2048)
                if c2 == 0:
                    v = co if c == 0 else si
                else:
                    v = -si if c == 0 else co
                    if t < 0: v = -v
                    if win: v = -v
            elif bi < 4:
                if c == 1:
                    v = 0.0
                elif bi == 0:
                    v = 1.0 if c2 == 0 else (-1.0) ** b * (-1.0 if (win and cls != 0) else 1.0)
                else:
                    co, si = cs(16 * bl * sarg, 2048)
                    v = co if c2 == 0 else (-si if not win else si)
            else:
                if c == 0:
                    v = 0.0
                else:
                    co, si = cs((8 + 16 * bl) * sarg, 2048)
                    v = co if c2 == 0 else (-si if not win else si)
            T[l, i] = v
    return T

def k1_perm(jp, nu):
    T = np.zeros((64, 8))
    for l in range(64):
        m, g = l & 15, l >> 4
        k = 16 * nu + m
        if k > 27 or (jp == 0 and k == 0):
            continue
        for i in range(8):
            k2 = 16 * (i >> 2) + 4 * g + (i & 3)
            if k2 == 28 - k:
                T[l, i] = 1.0
    return T

def slot_t2(var, w, tl):
    q = 2 * w + tl
    if var < 2: return 8 * var + q
    if var == 2: return (q + 1) & 7
    if var == 3: return q
    return 8 if q == 0 else None

def k2_stageA(var, w, kap):
    T = np.zeros((64, 8))
    for l in range(64):
        m, g = l & 15, l >> 4
        if (m >> 2) != g:
            continue
        tl, c1 = (m & 3) >> 1, m & 1
        t2 = slot_t2(var, w, tl)
        if t2 is None:
            continue
        for i in range(8):
            cl, c = 4 * kap + (i >> 1), i & 1
            if var < 2:
                co, si = cs(t2 * cl, 16)
                v = (co if c == 0 else si) if c1 == 0 else (-si if c == 0 else co)
            elif var != 3:
                co, si = cs(t2 * cl, 16)
                v = 0.0 if c == 1 else (co if c1 == 0 else -si)
            else:
                co, si = cs((2 * t2 + 1) * cl, 32)
                v = 0.0 if c == 0 else (co if c1 == 0 else -si)
            T[l, i] = v
    return T

def k2_B1(c2):
    T = np.zeros((64, 4))
    for l in range(64):
        eb, g = l & 15, l >> 4
        for i in range(4):
            sub, c1 = i >> 1, i & 1
            co, si = cs(eb * (2 * g + sub), 16)
            T[l, i] = (co if c1 == 0 else si) if c2 == 0 else (-si if c1 == 0 else co)
    return T

def k2_B2(mu, ta):
    T = np.zeros((64, 8))
    for l in range(64):
        n, g = l & 15, l >> 4
        ea = 16 * mu + n
        for i in range(8):
            c2, ii = i >> 2, i & 3
            da = 16 * ta + 4 * g + ii
            if ea >= 28 or da > 28:
                continue
            co, si = cs(ea * da, 28)
            T[l, i] = co if c2 == 0 else si
    return T

def build_tables():
    tabs = {}
    tabs['k1s1'] = [[rb(k1_stage1(w, k)) for k in range(2)] for w in range(4)]
    tabs['k2A'] = [[[rb(k2_stageA(v, w, k)) for k in range(4)] for w in range(4)] for v in range(5)]
    tabs['k2B1'] = [rb(k2_B1(c)) for c in range(2)]
    tabs['k2tw'] = [k2_tw(ta) for ta in range(2)]
    tabs['k2B2'] = [[rb(k2_B2(mu, ta)) for ta in range(2)] for mu in range(2)]
    return tabs

def emu_k1(x, ws, cls, jp, tabs):
    xf = np.concatenate([x.reshape(-1), np.zeros(64, dtype=np.float32)])
    clsw = [cls, (16 - cls) % 16]
    col = [28 * jp, 420 - 28 * jp]
    lds = np.zeros(8192, dtype=np.float32)
    for w in range(4):
        for k in range(4):
            win, bp = k >> 1, k & 1
            for l in range(64):
                g, al, q = l >> 4, (l >> 2) & 3, l & 3
                s = 128 * (4 * w + al) + 16 * (4 * bp + g) + clsw[win]
                src = s * 448 + col[win] + (q ^ ((g & 1) << 1)) * 8
                dst = (w * 4096 + k * 1024 + l * 16) // 2
                lds[dst:dst + 8] = xf[src:src + 8]
    r_, cc = (L >> 2) & 3, L & 3
    sw = (jp >> 1) & 1
    for w in range(4):
        D1 = {}
        for win in range(2):
            for bp in range(2):
                for nt in range(2):
                    base = LG * 256 + r_ * 64 + (nt ^ (LG & 1)) * 32 + cc * 8
                    acc = None
                    for kap in range(2):
                        op = np.concatenate([tr_read(lds, base + (2 * kap + hh) * 4096 + win * 2048 + bp * 1024) for hh in range(2)], axis=1)
                        acc = mfma(tabs['k1s1'][w][kap], op, acc)
                    D1[win, bp, nt] = acc
        for al in range(2):
            sig = 2 * w + al
            D2 = {}
            for win in range(2):
                Bc = rb(k1_stage2(clsw[win], sig, win))
                for nt in range(2):
                    A = rb(np.concatenate([D1[win, p, nt][:, 2 * al:2 * al + 2] for p in range(2)], axis=1))
                    D2[win, nt] = mfma16(A, Bc)
            B2 = rb(np.concatenate([D2[1, 0], D2[1, 1]], axis=1))
            for nt in range(2):
                v = rb(mfma(k1_perm(jp, nt), B2, D2[0, nt]))
                for l in range(64):
                    n, g = l & 15, l >> 4
                    vv = v[l].copy()
                    if nt == 1 and g == 3:
                        vv[1:] = 1.25
                        if jp != 7: vv[0] = 0
                    off = t1_of(sig, n >> 1) * CH + jp * 2048 + cls * 128 + (n & 1) * 64 + (nt ^ sw) * 32 + g * 8
                    ws[off // 2:off // 2 + 4] = vv

def emu_k2(ws, out, ch, var, tabs):
    tau = 64 if var == 3 else ch
    lds = ws[ch * CH // 2:(ch + 1) * CH // 2]
    r_, cc = (L >> 2) & 3, L & 3
    for w in range(4):
        DA = {}
        for ta in range(2):
            base = LG * 4096 + r_ * 64 + (ta ^ (LG & 1)) * 32 + cc * 8
            for sub in range(2):
                acc = None
                for kap in range(4):
                    op = np.concatenate([tr_read(lds, base + (4 * kap + 2 * hh) * 128 + sub * 2048) for hh in range(2)], axis=1)
                    acc = mfma(tabs['k2A'][var][w][kap], op, acc)
                DA[ta, sub] = acc
        for tl in range(2):
            H = []
            for ta in range(2):
                A = rb(np.concatenate([DA[ta, p][:, 2 * tl:2 * tl + 2] for p in range(2)], axis=1))
                Gr = mfma16(A, tabs['k2B1'][0]); Gi = mfma16(A, tabs['k2B1'][1])
                co, si = tabs['k2tw'][ta]
                H.append(rb(np.concatenate([co * Gr + si * Gi, co * Gi - si * Gr], axis=1)))
            pk = []
            for mu in range(2):
                pk.append(rb(mfma(H[1], tabs['k2B2'][mu][1], mfma(H[0], tabs['k2B2'][mu][0]))))
            X0, Y0 = swap16(pk[0][:, 0:2], pk[1][:, 0:2])
            X1, Y1 = swap16(pk[0][:, 2:4], pk[1][:, 2:4])
            F = np.concatenate([X0, X1, Y0, Y1], axis=1)
            ea = LN + 16 * (LG & 1)
            p = 2 * ea + (LG >> 1)
            valid = ea < 28
            if slot_t2(var, w, tl) is None: continue
            t = tau + 128 * slot_t2(var, w, tl)
            lane_of = {int(p[l]): l for l in range(64) if valid[l]}
            for l in range(64):
                if not valid[l]:
                    continue
                out[t, 8 * p[l]: 8 * p[l] + 8] = F[l]
                if t % 1024 != 0:
                    nx = F[lane_of[(int(p[l]) + 1) % 56]]
                    pp = 55 - p[l]
                    out[2048 - t, 8 * pp: 8 * pp + 8] = np.concatenate([[nx[0]], F[l][7:0:-1]])

if __name__ == '__main__':
    rng = np.random.default_rng(0)
    x = rb(rng.standard_normal((S, D)) * 0.05)
    tabs = build_tables()
    ws = np.full(64 * CH // 2, np.nan, dtype=np.float32)
    for cls in range(16):
        for jp in range(8):
            emu_k1(x, ws, cls, jp, tabs)
    print('k1 nan', np.isnan(ws).sum())
    out = np.full((S, D), np.nan, dtype=np.float32)
    for tau in range(64):
        for h in range(2):
            emu_k2(ws, out, tau, h + (2 if tau == 0 else 0), tabs)
    emu_k2(ws, out, 0, 4, tabs)
    ref = np.fft.fft2(x.astype(np.float64)).real
    e = np.abs(out - ref)
    print('nan', np.isnan(out).sum(), 'maxerr', np.nanmax(e), 'rms', np.sqrt(np.nanmean(e ** 2)), 'worst rows', np.argsort(-np.nanmax(e, axis=1))[:8])
```

```python
from asmlib import Ins, need

def cost(i):
    if i.kind == 'mfma': return 8
    if i.kind == 'vmem': return 8
    if i.kind == 'ds': return 5
    return 4

def schedule(texts, ds_lat=80, ds_gap=8.3, slack=40, late=(), boost=(), pin=(), verbose=False):
    ins = [Ins(t) for t in texts]
    n = len(ins)
    pred = [[] for _ in range(n)]; succ = [[] for _ in range(n)]
    def edge(p, c, lat):
        pred[c].append((p, lat)); succ[p].append((c, lat))
    states = {}
    lastds = None; laststore = None
    for c in range(n):
        C = ins[c]
        for p in range(c):
            P = ins[p]
            raw = P.w & C.r; waw = P.w & C.w; war = P.r & C.w
            if raw or waw or war:
                lat = cost(P)
                k = need(P, C)
                if k: lat = max(lat, cost(P) + 4 * k); states[p, c] = k
                if raw and P.kind == 'ds': lat = ds_lat
                if raw and P.kind == 'mfma' and C.kind == 'mfma' and not k: lat = 16
                edge(p, c, lat)
        if C.kind == 'ds':
            if lastds is not None: edge(lastds, c, 5)
            lastds = c
        if C.kind == 'vmem':
            if laststore is not None: edge(laststore, c, 8)
            laststore = c
    for x, y in pin:
        edge(texts.index(y), texts.index(x), 5)
    prio = [0] * n
    for c in reversed(range(n)):
        prio[c] = max([cost(ins[c])] + [l + prio[s] for s, l in succ[c]])
    for c in range(n):
        if ins[c].text in boost: prio[c] += 1000
    idx = {}
    islate = [any(x in ins[c].text for x in late) for c in range(n)]
    done = {}; dsdone = {}; order = []; t = 0; pipe = 0; dsfree = 0
    left = set(range(n)); cnt = [0]
    def ready(c):
        r = 0
        for p, l in pred[c]:
            if p not in done: return None
            if (p, c) in states:
                r = max(r, t + 4 * (states[p, c] - (cnt[0] - idx[p] - 1)), done[p] + min(l, 28))
            else:
                r = max(r, done[p] + l)
            if p in dsdone and (ins[p].w & ins[c].r): r = max(r, dsdone[p])
        if ins[c].kind == 'mfma': r = max(r, pipe)
        if ins[c].kind == 'ds': r = max(r, dsfree - 3 * ds_gap)
        return r
    while left:
        cand = [(c, ready(c)) for c in left]
        cand = [(c, r) for c, r in cand if r is not None]
        now = [c for c, r in cand if r <= t]
        if now:
            m = [c for c in now if ins[c].kind == 'mfma']
            pool = m or [c for c in now if not islate[c]] or now
            c = max(pool, key=lambda c: (prio[c], -c))
        else:
            c, r = min(cand, key=lambda x: (x[1], -prio[x[0]]))
            k = int((r - t) // 4)
            if k >= 1 and any((p, x) in states and states[p, x] > cnt[0] - idx[p] - 1 for x, _ in cand for p, _l in pred[x]):
                order.append(-k); cnt[0] += k; t += 4 * k
                continue
            t = r
        done[c] = t; idx[c] = cnt[0]; cnt[0] += 1
        if ins[c].kind == 'mfma': pipe = t + 16
        if ins[c].kind == 'ds':
            dsfree = max(dsfree, t) + ds_gap
            dsdone[c] = max(t + ds_lat, dsfree + ds_lat - ds_gap)
        t += cost(ins[c])
        order.append(c); left.remove(c)
    out = []; dsl = []; covered = -1
    for c in order:
        if c < 0:
            out.append('s_nop %d' % (-c - 1)); continue
        C = ins[c]
        needk = -1
        for k, p in enumerate(dsl):
            if k > covered and ins[p].w & (C.r | C.w): needk = k
        if needk >= 0:
            while needk + 1 < len(dsl) and dsdone[dsl[needk + 1]] + slack <= done[c]: needk += 1
            out.append('s_waitcnt lgkmcnt(%d)' % min(15, len(dsl) - 1 - needk)); covered = needk
        if C.kind == 'ds': dsl.append(c)
        out.append(C.text)
    if verbose: print('model length', t, 'instrs', len(out))
    return out
```

```python
import sys, numpy as np
from asmlib import Asm
from sched import schedule
import design as dz
import design3 as d3
from gen import gen_k3, NAME, XB, OUTB, vr, op_bytes, emit_data, kd

KN = NAME + '_kernel'
NWG = 258
CH = 16384
WSB = 2 * 64 * CH
CELL = WSB
HINT = WSB + 1024
L_CONST = 16384
L_STG = 28672
L_DAT = L_STG + 4 * 2304
LDS = L_DAT
SB = 72
EM_LO, EM_HI = 0x00F0000F, 0xF0000F00
M32 = 'v_mfma_f32_16x16x32_bf16'
M16 = 'v_mfma_f32_16x16x16_bf16'

def pstamp(a, opt, i):
    if opt.get('prof'):
        a('s_memtime s[%d:%d]' % (SB + 2 * i, SB + 1 + 2 * i))

def stamp(a, opt, i):
    if opt.get('stamp') and not opt.get('prof'):
        a('s_memrealtime s[%d:%d]' % (SB + 2 * i, SB + 1 + 2 * i))

def stamp_out(a, opt, n):
    if not opt.get('stamp'):
        return
    stamp(a, opt, n - 2)
    if opt.get('prof'): n = opt['prof']; pstamp(a, opt, n - 1)
    a('s_waitcnt vmcnt(0)')
    stamp(a, opt, n - 1)
    a('s_getreg_b32 s58, hwreg(HW_REG_XCC_ID)')
    a('s_getreg_b32 s59, hwreg(HW_REG_HW_ID)')
    a('s_lshl_b32 s62, s2, 2\ns_add_u32 s62, s62, s4\ns_lshl_b32 s62, s62, 6\ns_add_u32 s62, s62, %d' % (16 << 20))
    a('s_waitcnt lgkmcnt(0)\ns_add_u32 s60, s12, s62\ns_addc_u32 s61, s13, 0')
    a('v_mov_b32 v0, 0')
    for i in range(n):
        a('v_mov_b32 v1, s%d\nglobal_store_dword v0, v1, s[60:61] offset:%d' % (SB + 2 * i, 4 * i))
    a('v_mov_b32 v1, s55\nglobal_store_dword v0, v1, s[60:61] offset:52')
    a('v_mov_b32 v1, s58\nglobal_store_dword v0, v1, s[60:61] offset:56')
    a('v_mov_b32 v1, s59\nglobal_store_dword v0, v1, s[60:61] offset:60')

def k2_table(tabs):
    b = b''
    for ta in range(2):
        for x in tabs['k2tw'][ta]:
            b += x.astype('<f4').tobytes()
    for mu in range(2):
        for ta in range(2):
            b += op_bytes(tabs['k2B2'][mu][ta])
    b += op_bytes(np.concatenate(tabs['k2B1'], axis=1))
    act = [l for l in range(64) if ((l & 15) >> 2) == (l >> 4)]
    for v in range(5):
        for w in range(4):
            for k in range(4):
                b += op_bytes(tabs['k2A'][v][w][k][act])
    return b

CA, CB1, CTW, CB2 = 128, 144, 148, 164
VA = 180

def paired(a, rd, mf, after, n=16, depth=7):
    for i in range(depth): rd(i)
    issued = depth
    for k in range(n // 2):
        a('s_waitcnt lgkmcnt(%d)' % (2 * (issued - 2 * k - 2)))
        mf(2 * k); mf(2 * k + 1)
        for _ in range(2):
            if issued < n:
                rd(issued); issued += 1
        for t in after.get(k, []): a(t)

def emit(a, seq):
    pos = {}; n = 0
    for it in seq:
        if isinstance(it, tuple) and it[0] == 'W':
            a('s_waitcnt lgkmcnt(%d)' % (n - pos[it[1]]))
            continue
        if isinstance(it, tuple):
            _, key, it = it
            pos[key] = n + 1
        if it.startswith('ds_'): n += 1
        a(it)

def zipm(*lists):
    tot = sum(len(l) for l in lists); idx = [0] * len(lists); o = []
    for k in range(tot):
        j = min((j for j in range(len(lists)) if idx[j] < len(lists[j])), key=lambda j: (idx[j] + 0.5) / len(lists[j]))
        o.append(lists[j][idx[j]]); idx[j] += 1
    return o

def mix(xs, ys, step, first=0):
    ys = list(ys); o = []
    for n, x in enumerate(xs):
        if n >= first and (n - first) % step == 0 and ys:
            o.append(ys.pop(0))
        o.append(x)
    return o + ys

def gen(opt):
    a = Asm()
    SO = dict(ds_lat=opt.get('lat', 64), ds_gap=opt.get('gap', 83) / 10., slack=opt.get('slack', -20))
    V = dict(b0=VA, b1=VA + 1, f=VA + 2, m=VA + 3, p=VA + 4, tg=VA + 5, t=VA + 6, u=VA + 7)
    a('''
%s:
s_bfe_u32 s5, s2, 0x10003
s_mul_i32 s7, s5, 40
s_load_dwordx2 s[8:9], s[0:1], s7
s_load_dwordx2 s[12:13], s[0:1], 96
s_load_dwordx2 s[44:45], s[0:1], 80
s_cmp_ge_u32 s2, %d
s_cbranch_scc1 L_END
''' % (KN, NWG))
    stamp(a, opt, 0)
    a('''
v_lshrrev_b32 v6, 6, v0
v_and_b32 v0, 63, v0
v_readfirstlane_b32 s4, v6
s_and_b32 s33, s2, 7
s_lshr_b32 s6, s2, 5
s_sub_u32 s3, 16, s33
s_cmp_eq_u32 s33, 0
s_cselect_b32 s3, 8, s3
s_bfe_u32 s36, s2, 0x10004
s_cselect_b32 s3, s3, s33
s_sub_u32 s32, 16, s3
s_and_b32 s32, s32, 15
v_lshrrev_b32 v6, 4, v0
v_bfe_u32 v7, v0, 2, 2
v_mul_u32_u24 v2, 14336, v6
v_mul_u32_u24 v7, 114688, v7
v_lshrrev_b32 v3, 3, v0
v_and_b32 v3, 2, v3
v_xor_b32 v4, v3, v0
v_and_b32 v4, 3, v4
v_lshlrev_b32 v4, 4, v4
v_add3_u32 v2, v2, v7, v4
s_lshl_b32 s22, s4, %d
s_add_u32 m0, s22, 2048
s_mul_i32 s20, s4, %d
s_mul_i32 s21, s6, 56
s_mul_i32 s24, s3, 896
s_mul_i32 s26, s32, 896
s_add_u32 s24, s24, s20
s_add_u32 s26, s26, s20
s_add_u32 s24, s24, s21
s_sub_u32 s26, s26, s21
s_add_u32 s25, s24, 56320
s_add_u32 s27, s26, %d
s_add_u32 s26, s26, %d
s_mov_b32 s10, %d
s_mov_b32 s11, 0x20000
s_mov_b32 s14, %d
s_mov_b32 s15, 0x20000
s_and_b32 s20, s2, 1
s_cmp_ge_u32 s2, 256
s_cselect_b32 s5, s20, s5
s_lshl_b32 s20, s5, 7
s_add_u32 s20, s20, %d
v_lshlrev_b32 v1, 4, v0
s_cmp_ge_u32 s2, 256
s_waitcnt lgkmcnt(0)
''' % ((13, 917504) if opt.get('pw2') else (12, 458752)).__add__((840 + 56320, 840, XB, WSB, CELL)))
    stamp(a, opt, 1)
    a('s_cbranch_scc1 L_SKIP1')
    XD = '''
buffer_load_dwordx4 v2, s[8:11], s26 offen lds
buffer_load_dwordx4 v2, s[8:11], s27 offen offset:1024 lds
s_mov_b32 m0, s22
buffer_load_dwordx4 v2, s[8:11], s24 offen lds
buffer_load_dwordx4 v2, s[8:11], s25 offen offset:1024 lds
'''.replace(' lds', ' %s lds' % opt.get('xf', ''))
    if opt.get('pw2'):
        a('s_cmp_ge_u32 s4, 2\ns_cbranch_scc1 L_PRE')
        a(XD)
        a('s_add_u32 m0, s22, 6144\ns_add_u32 s22, s22, 4096')
        for r in (24, 25, 26, 27): a('s_add_u32 s%d, s%d, 458752' % (r, r))
        a(XD)
        a('''s_branch L_PRE2
L_PRE:
v_lshrrev_b32 v5, 3, v0
v_lshlrev_b32 v5, 14, v5
v_and_b32 v7, 0x70, v1
v_add_u32 v5, v5, v7
s_lshl_b32 s21, s5, 20
s_lshl_b32 s23, s3, 7
s_add_u32 s21, s21, s23
s_lshl_b32 s23, s6, 11
s_add_u32 s21, s21, s23
s_and_b32 s23, s4, 1
s_lshl_b32 s23, s23, 19
s_add_u32 s24, s21, s23
s_add_u32 s25, s24, 0x20000
s_add_u32 s26, s24, 0x40000
s_add_u32 s27, s24, 0x60000''')
        for i in range(4): a('v_mov_b32 v%d, 2.0' % (48 + i))
        for r in (24, 25, 26, 27): a('buffer_store_dwordx4 v[48:51], v5, s[12:15], s%d offen sc1' % r)
        a('L_PRE2:')
    else:
        a(XD)
    a('''
L_SKIP1:
s_load_dwordx2 s[34:35], s[12:13], s20
s_lshl_b32 s22, s4, 12
s_mov_b32 s46, %d
s_mov_b32 s47, 0x20000
s_getpc_b64 s[16:17]
L_PC:
s_lshl_b32 s20, s6, 3
s_add_u32 s33, s33, s20
s_lshl_b32 s31, s36, 10
s_add_u32 s31, s31, s33
s_lshr_b32 s21, 128, s36
s_cmp_eq_u32 s33, 0
s_cselect_b32 s31, s21, s31
s_cselect_b32 s20, 2, 0
s_add_u32 s36, s20, s36
s_cmp_ge_u32 s2, 256
s_cselect_b32 s33, 0, s33
s_cselect_b32 s36, 4, s36
s_cselect_b32 s31, 1024, s31
s_add_u32 s16, s16, K2_TAB-L_PC
s_addc_u32 s17, s17, 0
s_add_u32 s40, s16, 8192
s_addc_u32 s41, s17, 0
s_lshl_b32 s20, s36, 12
s_lshl_b32 s21, s4, 10
s_add_u32 s20, s20, s21
s_add_u32 s20, s20, 7168
s_add_u32 s18, s16, s20
s_addc_u32 s19, s17, 0
s_lshl_b32 s21, s4, 11
s_add_u32 s16, s16, s21
s_addc_u32 s17, s17, 0
s_mul_i32 s53, s4, 3072
s_add_u32 s53, s53, %d
s_lshl_b32 s20, s5, 6
s_add_u32 s21, s33, s20
s_lshl_b32 s21, s21, 14
s_add_u32 s54, s22, s21
s_cmp_ge_u32 s2, 256
s_cbranch_scc1 L_CONS
''' % (OUTB, L_CONST))
    CD = ['s_mov_b32 m0, s53',
          'global_load_dwordx4 %s, v1, s[40:41]' % vr(CB1),
          'global_load_lds_dwordx4 v1, s[16:17]',
          'global_load_lds_dwordx4 v1, s[16:17] offset:1024',
          'global_load_lds_dwordx4 v1, s[18:19] offset:2048']
    a('''v_bfe_u32 v5, v0, 3, 2
v_lshlrev_b32 v5, 18, v5
v_and_b32 v7, 0x70, v1
v_add_u32 v5, v5, v7
s_lshl_b32 s21, s4, 2
s_sub_u32 s22, 14, s21
s_sub_u32 s21, 16, s21
s_cmp_eq_u32 s4, 0
s_cselect_b32 s21, 8, s21
s_lshl_b32 s21, s21, 14
s_lshl_b32 s22, s22, 14
v_lshrrev_b32 v7, 5, v0
v_mad_u32_u24 v53, v7, s22, v5
v_mad_u32_u24 v5, v7, s21, v5
s_lshl_b32 s20, s5, 20
s_lshl_b32 s21, s3, 7
s_add_u32 s20, s20, s21
s_lshl_b32 s21, s6, 11
s_add_u32 s20, s20, s21
s_lshl_b32 s21, s4, 15
s_add_u32 s28, s20, s21
s_add_u32 s29, s28, %d
''' % CH)
    if opt.get('pre'):
        for i in range(4): a('v_mov_b32 v%d, 2.0' % (48 + i))
        PRE = ['buffer_store_dwordx4 v[48:51], v5, s[12:15], s28 offen %s' % opt.get('prest', 'sc1'),
               'buffer_store_dwordx4 v[48:51], v53, s[12:15], s29 offen %s' % opt.get('prest', 'sc1')]
        if opt['pre'] == 1:
            for t in PRE: a(t)
            a('s_nop 1')
    pw = opt.get('pw', 0)
    PW = []
    if pw:
        if opt.get('pwh'):
            a('s_lshl_b32 s20, s36, 11\ns_add_u32 s37, s54, s20\nv_lshlrev_b32 v55, 5, v0')
        else:
            a('s_mov_b32 s37, s54\nv_lshlrev_b32 v55, 6, v0')
        PW = ['buffer_load_dword v48, v55, s[12:15], s37 offen sc1']
    if opt.get('cde'):
        for t in CD: a(t)
    if pw == 2:
        for t in PW: a(t)
    a('''
s_lshl_b32 s20, s4, 1
v_bfe_u32 v32, v0, 1, 1
v_add_u32 v32, s20, v32
v_and_b32 v33, 1, v0
v_cmp_eq_u32 vcc, 0, v32
v_lshlrev_b32 v34, 3, v33
v_lshlrev_b32 v35, 2, v33
v_cndmask_b32 v32, v32, v34, vcc
v_cndmask_b32 v35, v35, 0, vcc
v_and_b32 v34, 1, v32
v_cvt_f32_u32 v32, v32
v_cvt_f32_u32 v35, v35
v_mul_u32_u24 v34, 0x8000, v34
v_mul_f32 v32, 0x3d800000, v32
v_mul_f32 v35, 0x3d800000, v35
v_lshl_or_b32 v34, v34, 16, v34
''')
    for i in range(8, 12): a('v_mov_b32 v%d, 0' % i)
    a('s_mov_b32 exec_lo, 0x%x\ns_mov_b32 exec_hi, 0x%x' % (EM_LO, EM_HI))
    for p in range(4):
        a('v_cos_f32 v36, v35\nv_add_f32 v35, v35, v32\nv_cos_f32 v37, v35')
        a('v_add_f32 v35, v35, v32' if p < 3 else 's_nop 0')
        a('v_cvt_pk_bf16_f32 v%d, v36, v37' % (8 + p))
    a('s_mov_b64 exec, -1')
    for p in range(4): a('v_xor_b32 v%d, v34, v%d' % (12 + p, 8 + p))
    a('''
v_lshlrev_b32 v38, 3, v0
v_and_b32 v38, 0x30, v38
v_and_b32 v39, 0x30, v0
v_add_u32 v40, s32, v39
v_add_u32 v39, s3, v39
v_and_b32 v47, 8, v0
v_cmp_ne_u32 s[56:57], 0, v47
v_cvt_f32_u32 v39, v39
v_cvt_f32_u32 v40, v40
v_cvt_f32_u32 v48, v33
v_sub_u32 v45, -16, v38
v_mul_f32 v39, 0x3a000000, v39
v_mul_f32 v40, 0x3a000000, v40
v_cndmask_b32 v45, v38, v45, s[56:57]
v_mul_f32 v49, 0x3e800000, v48
v_mul_f32 v50, 0.5, v48
v_add_u32 v45, s20, v45
v_add_f32 v43, v49, v50
v_add_u32 v46, 1, v45
v_cndmask_b32 v43, v49, v43, s[56:57]
v_add_f32 v44, v43, v50
v_mov_b32 v41, v43
v_mov_b32 v42, v44
s_cmp_lg_u32 s4, 0
s_cbranch_scc1 L_REG
v_cvt_f32_u32 v51, v6
v_add_u32 v45, v47, v38
v_and_b32 v52, 14, v0
v_add_f32 v41, 0x3e800000, v49
v_cmp_eq_u32 vcc, 0, v52
v_mul_f32 v51, v51, v50
v_cndmask_b32 v41, v49, v41, s[56:57]
s_cmp_eq_u32 s3, 0
s_cselect_b64 s[58:59], vcc, 0
v_cndmask_b32 v41, v41, v51, vcc
v_add_f32 v42, v41, v50
v_cndmask_b32 v42, v42, v41, s[58:59]
L_REG:
v_cvt_f32_i32 v45, v45
v_cvt_f32_i32 v46, v46
''')
    for al in range(2):
        a('v_mul_f32 v47, 0x3d000000, v%d' % (45 + al))
        for win in range(2):
            a('v_fma_f32 v50, v%d, v%d, v%d' % (45 + al, 39 + win, 41 + 2 * al + win))
            a('v_cos_f32 v36, v50\nv_sin_f32 v37, v50\nv_add_f32 v50, v50, v47')
            a('v_cvt_pk_bf16_f32 v%d, v36, v37' % (16 + 4 * al + 2 * win))
            a('v_cos_f32 v36, v50\nv_sin_f32 v37, v50\ns_nop 0')
            a('v_cvt_pk_bf16_f32 v%d, v36, v37' % (17 + 4 * al + 2 * win))
    a('''
s_cmp_lg_u32 s4, 0
s_cbranch_scc1 L_REG2
v_mov_b32 v36, 0xffff
v_not_b32 v37, v36
v_cndmask_b32 v36, v36, v37, s[56:57]
''')
    for p in range(4): a('v_and_b32 v%d, v36, v%d' % (16 + p, 16 + p))
    a('L_REG2:')
    a('''
v_and_b32 v36, 15, v0
v_lshl_add_u32 v37, v6, 2, v36
v_sub_u32 v38, 28, v37
v_sub_u32 v37, 12, v37
v_mov_b32 v41, 0
v_mov_b32 v42, 0x3f80
v_cmp_gt_u32 vcc, 4, v38
v_lshlrev_b32 v38, 4, v38
v_mov_b32 v30, 0
v_cndmask_b32 v40, 0, v42, vcc
v_cmp_gt_u32 vcc, 4, v37
v_lshlrev_b64 v[24:25], v38, v[40:41]
v_lshlrev_b32 v37, 4, v37
v_cndmask_b32 v40, 0, v42, vcc
s_cmp_eq_u32 s6, 0
s_cselect_b32 s21, 0, 0x3f80
v_lshlrev_b64 v[26:27], v37, v[40:41]
v_mov_b32 v31, 0
v_mov_b32 v28, v26
v_mov_b32 v29, v27
v_writelane_b32 v26, s21, 48
v_writelane_b32 v28, 0, 12
''')
    a('''
v_lshlrev_b32 v3, 4, v3
v_and_b32 v4, 3, v0
v_lshl_add_u32 v3, v4, 3, v3
v_and_b32 v7, 0x3c0, v1
v_add_u32 v3, v3, v7
s_mul_i32 s20, s4, 2304
s_add_u32 s20, s20, %d
v_lshrrev_b32 v2, 2, v0
v_mul_u32_u24 v2, 72, v2
v_lshl_add_u32 v2, v4, 4, v2
v_add_u32 v2, s20, v2
v_xor_b32 v4, 32, v3
s_lshl_b32 s21, s6, 4
s_and_b32 s21, s21, 32
s_add_u32 s22, s20, s21
s_xor_b32 s21, s21, 32
s_add_u32 s23, s20, s21
v_mul_u32_u24 v7, 72, v36
v_lshl_add_u32 v7, v6, 3, v7
v_add_u32 v6, s22, v7
v_add_u32 v7, s23, v7
s_cmp_eq_u32 s6, 7
s_cselect_b32 s30, 0xffff, 0
''' % L_STG)
    NONCE = '''
s_waitcnt lgkmcnt(0)
s_or_b32 s34, s34, 0x40000000
s_or_b32 s35, s35, 0x40004000
s_add_u32 s34, s34, 0x2b150000
s_add_u32 s35, s35, 0x1e3739b9
s_and_b32 s34, s34, 0xbfff0000
s_and_b32 s35, s35, 0xbfffbfff
'''
    a(NONCE)
    if opt.get('pre', 0) >= 2:
        for i in range(4): a('v_mov_b32 v%d, 2.0' % (48 + i))
    a('s_mov_b32 s56, 0\ns_mov_b32 s57, 0xffff0000\nv_mov_b32 v54, s34')
    if opt.get('pw2'): a('s_cmp_ge_u32 s4, 2\ns_cbranch_scc1 L_NOXW')
    a('s_waitcnt vmcnt(0)\nL_NOXW:')
    stamp(a, opt, 2)
    if opt.get('stamp') and not opt.get('prof'): a('s_waitcnt lgkmcnt(0)')
    if opt.get('pre') == 3:
        for t in PRE: a(t)
    a('s_barrier')
    pstamp(a, opt, 0)
    if opt.get('pre') == 2:
        pass
    CDL = (PRE if opt.get('pre') == 2 else []) + ([] if opt.get('cde') else CD) + (PW if pw == 1 else [])
    order = [(win, kap, nt, bp) for win in (1, 0) for kap in range(2) for nt in range(2) for bp in range(2)]
    ACC = lambda win, nt, bp: 32 + 4 * (bp + 2 * nt) if win else 112 + 4 * (bp + 2 * nt)
    OPR = lambda i: 56 + 4 * (i % 14) if i < 14 else 56 + 4 * (i - 14)
    def rd(i):
        win, kap, nt, bp = order[i]
        t = ['ds_read_b64_tr_b16 %s, v%d offset:%d' % (vr(OPR(i) + 2 * hh, 2), 3 + nt, (2 * kap + hh) * 4096 + win * 2048 + bp * 1024) for hh in range(2)]
        return [t[0], ('T', i, t[1])]
    def mf(i):
        win, kap, nt, bp = order[i]
        A = ACC(win, nt, bp)
        return '%s %s, %s, %s, %s' % (M32, vr(A), vr(8 + 4 * kap), vr(OPR(i)), vr(A) if kap else '0')
    A2 = lambda al, win, nt: 64 + 2 * (al + 2 * nt) if win else 32 + 2 * (al + 2 * nt)
    def cv(win, nt):
        return ['v_cvt_pk_bf16_f32 v%d, v%d, v%d' % (A2(al, win, nt) + p, ACC(win, nt, p) + 2 * al, ACC(win, nt, p) + 2 * al + 1) for al in range(2) for p in range(2)]
    D2M = lambda al, nt: 32 + 4 * (nt + 2 * al)
    B2 = lambda al: 72 + 4 * al
    D2 = lambda al, nt: 80 + 4 * (nt + 2 * al)
    def m2m(al, nt): return '%s %s, %s, %s, 0' % (M16, vr(D2M(al, nt)), vr(A2(al, 1, nt), 2), vr(18 + 4 * al, 2))
    def cvm(al): return ['v_cvt_pk_bf16_f32 v%d, v%d, v%d' % (B2(al) + 2 * nt + h, D2M(al, nt) + 2 * h, D2M(al, nt) + 2 * h + 1) for nt in range(2) for h in range(2)]
    def mp(al, nt): return '%s %s, %s, %s, 0' % (M32, vr(D2(al, nt)), vr(24 + 4 * nt), vr(B2(al)))
    def m2(al, nt): return '%s %s, %s, %s, %s' % (M16, vr(D2(al, nt)), vr(A2(al, 0, nt), 2), vr(16 + 4 * al, 2), vr(D2(al, nt)))
    PK = lambda al, nt: 96 + 2 * (nt + 2 * al)
    def pack(al, nt): return ['v_cvt_pk_bf16_f32 v%d, v%d, v%d' % (PK(al, nt) + h, D2(al, nt) + 2 * h, D2(al, nt) + 2 * h + 1) for h in range(2)]
    def wr(al, nt): return 'ds_write_b64 v%d, %s offset:%d' % (6 + nt, vr(PK(al, nt), 2), 1152 * al)
    R = lambda *ii: [x[2] if isinstance(x, tuple) else x for i in ii for x in rd(i)]
    seq = R(*range(14)) + [mf(i) for i in range(8)] + R(14, 15) + CDL + cv(1, 0) + cv(1, 1) + [m2m(0, 0), m2m(0, 1), m2m(1, 0), m2m(1, 1)]
    seq += [mf(i) for i in range(8, 12)] + cvm(0) + cvm(1) + [mp(0, 0), mp(0, 1), mp(1, 0), mp(1, 1)] + [mf(i) for i in range(12, 16)]
    seq += cv(0, 0) + cv(0, 1) + [m2(0, 0), m2(1, 0), m2(0, 1), m2(1, 1)]
    seq += pack(0, 0) + pack(1, 0) + [wr(0, 0), wr(1, 0)] + pack(0, 1) + pack(1, 1)
    bo = cv(1, 0) + cv(1, 1) + [m2m(0, 0), m2m(0, 1), m2m(1, 0), m2m(1, 1)] + [mf(i) for i in range(8)] if not opt.get('nob') else []
    for t in schedule(seq, boost=bo + CDL, pin=[(CDL[i], R(*range(8))[min(15, opt.get('p0', 7) + 2 * i)]) for i in range(len(CDL))], verbose=opt.get('v'), **SO): a(t)
    pstamp(a, opt, 1)
    a('s_mov_b64 exec, s[56:57]')
    for al in range(2):
        a('v_and_or_b32 v%d, v%d, s30, v54\nv_mov_b32 v%d, s35' % (PK(al, 1), PK(al, 1), PK(al, 1) + 1))
    a('s_mov_b64 exec, -1')
    for al in range(2):
        a(wr(al, 1))
        a('ds_read2_b64 %s, v2 offset0:%d offset1:%d' % (vr(104 + 4 * al), 144 * al, 144 * al + 1))
    pstamp(a, opt, 2)
    if opt.get('prof'): a('s_waitcnt lgkmcnt(0)')
    a('s_waitcnt lgkmcnt(2)' + ('' if opt.get('cde') or opt.get('rs') else ' vmcnt(0)'))
    if opt.get('pw2') or opt.get('bb'): a('s_barrier')
    a('buffer_store_dwordx4 v[104:107], v5, s[12:15], s28 offen %s' % opt.get('k1st', 'sc1'))
    a('s_waitcnt lgkmcnt(0)')
    a('buffer_store_dwordx4 v[108:111], v53, s[12:15], s29 offen %s' % opt.get('k1st', 'sc1'))
    stamp(a, opt, 3)
    pstamp(a, opt, 3)
    if opt.get('xh'):
        a('''s_lshl_b32 s20, s4, 8
s_add_u32 s20, s20, s2
s_cmp_lt_u32 s20, 1008
s_cbranch_scc1 L_P2
s_lshl_b32 s20, s2, 7
s_and_b32 s20, s20, 0x780
s_add_u32 s20, s20, %d
v_lshl_add_u32 v8, v1, 7, s20
v_mov_b32 v9, s35
s_mov_b64 exec, %d
global_store_dword v8, v9, s[12:13] sc1
s_mov_b64 exec, -1
%s
s_waitcnt vmcnt(1)
s_branch L_P3''' % (HINT, 0xff if opt.get('ah') else 1, '' if opt.get('pw2') or opt.get('bb') else 's_barrier'))
    else:
        a('s_branch L_P2')
    a('L_CONS:')
    a(NONCE)
    for t in CD: a(t)
    a('L_P2:' if opt.get('rs') else 's_waitcnt vmcnt(0)\ns_barrier\nL_P2:' if opt.get('pw2') or opt.get('bb') else 's_waitcnt vmcnt(0)\nL_P2:\ns_barrier')
    if opt.get('pa'): a('s_waitcnt vmcnt(0)')
    a('L_P3:')
    if opt.get('ah'):
        a('''s_getreg_b32 s20, hwreg(HW_REG_XCC_ID, 0, 3)
s_lshl_b32 s20, s20, 1
s_add_u32 s20, s20, s5
s_lshl_b32 s20, s20, 10
s_add_u32 s20, s20, %d
v_lshl_add_u32 v8, v1, 3, s20
s_mov_b64 exec, 0xff
global_load_dword v9, v8, s[12:13] sc1
s_mov_b64 exec, -1''' % HINT)
    DB = L_DAT if opt.get('rs') else 0
    a('''
v_lshrrev_b32 v6, 4, v0
v_lshlrev_b32 v{b0}, 12, v6
v_and_b32 v7, 0xc0, v1
v_add_u32 v{b0}, v{b0}, v7
v_and_b32 v6, 1, v6
v_lshl_add_u32 v{b0}, v6, 5, v{b0}
v_and_b32 v6, 3, v0
v_lshl_add_u32 v{b0}, v6, 3, v{b0}
v_add_u32 v{b0}, {db}, v{b0}
v_xor_b32 v{b1}, 32, v{b0}
v_and_b32 v{f}, 31, v0
v_lshrrev_b32 v6, 5, v0
v_lshl_add_u32 v6, v{f}, 1, v6
v_add_u32 v7, 1, v6
v_cmp_ne_u32 vcc, 56, v7
v_mov_b32 v{t}, 0x40000000
v_lshlrev_b32 v6, 4, v6
v_cndmask_b32 v7, 0, v7, vcc
v_cmp_gt_u32 vcc, 28, v{f}
v_sub_u32 v{m}, 880, v6
v_and_b32 v{u}, 1, v7
v_cndmask_b32 v{f}, v{t}, v6, vcc
v_cndmask_b32 v{m}, v{t}, v{m}, vcc
v_lshlrev_b32 v7, 1, v7
v_and_b32 v7, 0x7c, v7
v_lshl_add_u32 v{p}, v{u}, 7, v7
s_lshl_b32 s22, s4, 12
s_add_u32 s22, s22, {db}
s_and_b32 s20, s4, 1
s_lshl_b32 s20, s20, 5
s_sub_u32 s20, 56, s20
s_add_u32 s20, s20, s22
v_and_b32 v{tg}, 0x3c0, v1
v_add_u32 v{tg}, s20, v{tg}
v_lshl_add_u32 v{u}, v1, 2, s20
v_and_b32 v6, 0xf0, v1
v_add_u32 v6, s53, v6
v_add_u32 v7, {cc}, v1
'''.format(cc=L_CONST, db=DB, **V))
    for i in range(16): a('v_mov_b32 v%d, 0' % (CA + i))
    a('''
s_lshl_b32 s21, s4, 8
s_add_u32 s48, s21, s31
s_add_u32 s49, s48, 128
s_cmp_eq_u32 s36, 2
s_cselect_b32 s21, 1023, -1
s_and_b32 s49, s49, s21
s_sub_u32 s50, 2048, s48
s_sub_u32 s51, 2048, s49
s_and_b32 s51, s51, 2047
s_mul_i32 s20, s5, 896
s_mul_i32 s48, s48, 1792
s_mul_i32 s49, s49, 1792
s_mul_i32 s50, s50, 1792
s_mul_i32 s51, s51, 1792
s_add_u32 s48, s48, s20
s_add_u32 s49, s49, s20
s_add_u32 s50, s50, s20
s_add_u32 s51, s51, s20
s_mov_b32 s52, 0xffff
s_mov_b32 s55, 0x40000
s_mov_b32 m0, s22
''')
    def const_reads():
        a('s_mov_b32 exec_lo, 0x%x\ns_mov_b32 exec_hi, 0x%x' % (EM_LO, EM_HI))
        for k in range(4): a('ds_read_b128 %s, v6 offset:%d' % (vr(CA + 4 * k), 2048 + 256 * k))
        a('s_mov_b64 exec, -1')
        for i in range(8): a('ds_read_b128 %s, v7 offset:%d' % (vr(CTW + 4 * i), (i >> 1) * 3072 + (i & 1) * 1024))
    if not opt.get('rs'): const_reads()
    ld = opt.get('k2ld', 'sc1')
    sent = opt.get('sent', 0)
    if not opt.get('early') and sent != 2 and not opt.get('pa'): a('s_waitcnt vmcnt(0)')
    stamp(a, opt, 4)
    if opt.get('slp'): a('s_sleep %d' % opt['slp'])
    if opt.get('ah'):
        a('''s_mov_b64 exec, 0xff
L_SENT:
s_waitcnt vmcnt(0)
v_cmp_ne_u32 vcc, s35, v9
s_and_b64 exec, exec, vcc
s_cbranch_scc0 L_POLL0
global_load_dword v9, v8, s[12:13] sc1
s_sub_u32 s55, s55, 1
s_cbranch_scc0 L_SENT''')
    elif opt.get('xh'):
        a('''s_cmp_lt_u32 s2, 256
s_cbranch_scc1 L_POLL0
s_lshl_b32 s20, s5, 10
s_add_u32 s20, s20, %d
v_lshl_add_u32 v8, v1, 3, s20
s_mov_b64 exec, 0xff
L_SENT:
global_load_dword v9, v8, s[12:13] sc1
s_waitcnt vmcnt(0)
v_cmp_ne_u32 vcc, s35, v9
s_and_b64 exec, exec, vcc
s_cbranch_scc0 L_POLL0
s_sub_u32 s55, s55, 1
s_cbranch_scc0 L_SENT''' % HINT)
    else:
        if sent:
            a('s_mov_b32 exec_lo, 0x%x\ns_mov_b32 exec_hi, 0x%x' % ((opt.get('sm', 0x0f0f0f0f),) * 2))
        else:
            a('s_cmp_lt_u32 s2, 256\ns_cbranch_scc1 L_POLL0\ns_mov_b64 exec, 15')
        a('''
L_SENT:
buffer_load_dwordx4 v1, s[12:15], s54 offen {ld} lds
s_waitcnt vmcnt(0)
ds_read_b64 v[8:9], v{tg}
s_waitcnt lgkmcnt(0)
v_cmp_ne_u32 vcc, s35, v9
s_cbranch_vccz L_POLL0
s_sub_u32 s55, s55, 1
s_cbranch_scc0 L_SENT'''.format(ld=ld, **V))
    a('''
L_POLL0:
s_mov_b64 exec, -1
'''.format(ld=ld, **V))
    for k in range(4): a('buffer_load_dwordx4 v1, s[12:15], s54 offen offset:%d %s lds' % (1024 * k, ld))
    if opt.get('rs'):
        a('s_barrier')
        const_reads()
    a('s_branch L_CHK\nL_POLL:')
    for k in range(4):
        a('s_mov_b64 exec, s[%d:%d]\ns_cbranch_execz L_NO%d' % (56 + 2 * k, 57 + 2 * k, k))
        a('buffer_load_dwordx4 v1, s[12:15], s54 offen offset:%d %s lds' % (1024 * k, ld))
        a('L_NO%d:' % k)
    a('s_mov_b64 exec, -1\nL_CHK:\ns_waitcnt vmcnt(0)')
    if not opt.get('slowchk'):
        a('''ds_read_b64 v[8:9], v{u}
s_waitcnt lgkmcnt(0)
v_and_b32 v8, 0xffff0000, v8
v_cmp_ne_u64 vcc, s[34:35], v[8:9]
s_cbranch_vccz L_GO'''.format(**V))
    for k in range(4): a('ds_read_b64 %s, v%d offset:%d' % (vr(8 + 2 * k, 2), V['tg'], 1024 * k))
    for k in range(4):
        a('s_waitcnt lgkmcnt(%d)' % (3 - k))
        a('v_and_b32 v%d, 0xffff0000, v%d' % (8 + 2 * k, 8 + 2 * k))
        a('v_cmp_ne_u64 s[%d:%d], s[34:35], %s' % (56 + 2 * k, 57 + 2 * k, vr(8 + 2 * k, 2)))
    a('''
s_or_b64 s[64:65], s[56:57], s[58:59]
s_or_b64 s[66:67], s[60:61], s[62:63]
s_or_b64 s[64:65], s[64:65], s[66:67]
s_cbranch_scc0 L_GO
s_sub_u32 s55, s55, 1
s_cbranch_scc0 L_POLL
L_GO:
''')
    stamp(a, opt, 5)
    if opt.get('stamp') and not opt.get('prof'): a('s_waitcnt lgkmcnt(0)')
    a('s_cmp_ge_u32 s2, 256\ns_barrier\ns_cbranch_scc1 L_ONE')
    pstamp(a, opt, 4)
    order = [(ta, kap, sub) for ta in range(2) for kap in range(4) for sub in range(2)]
    DA = lambda ta, sub: 8 + 4 * (sub + 2 * ta)
    OPR = lambda i: 24 + 4 * i
    def rd(i):
        ta, kap, sub = order[i]
        t = ['ds_read_b64_tr_b16 %s, v%d offset:%d' % (vr(OPR(i) + 2 * hh, 2), V['b0'] + ta, (4 * kap + 2 * hh) * 128 + sub * 2048) for hh in range(2)]
        return [t[0], ('T', i, t[1])]
    def mf(i):
        ta, kap, sub = order[i]
        return '%s %s, %s, %s, %s' % (M32, vr(DA(ta, sub)), vr(CA + 4 * kap), vr(OPR(i)), vr(DA(ta, sub)) if kap else '0')
    A1 = lambda tl, ta: 88 + 2 * (tl + 2 * ta)
    def cv(ta):
        return ['v_cvt_pk_bf16_f32 v%d, v%d, v%d' % (A1(tl, ta) + p, DA(ta, p) + 2 * tl, DA(ta, p) + 2 * tl + 1) for tl in range(2) for p in range(2)]
    D1 = lambda tl, ta, c: 96 + 4 * (c + 2 * tl) if ta == 0 else 112 + 4 * (c + 2 * tl)
    def b1(tl, ta, c):
        return '%s %s, %s, %s, 0' % (M16, vr(D1(tl, ta, c)), vr(A1(tl, ta), 2), vr(CB1 + 2 * c, 2))
    HT = lambda tl, ta: 24 + 8 * (tl + 2 * ta)
    HP = lambda tl, ta: 8 + 4 * tl if ta == 0 else 56 + 4 * tl
    def tw(tl, ta):
        r, i, h, co, si = D1(tl, ta, 0), D1(tl, ta, 1), HT(tl, ta), CTW + 8 * ta, CTW + 4 + 8 * ta
        o = []
        for q in range(4):
            o.append('v_mul_f32 v%d, v%d, v%d' % (h + q, co + q, r + q))
        for q in range(4):
            o.append('v_mul_f32 v%d, v%d, v%d' % (h + 4 + q, co + q, i + q))
        for q in range(4):
            o.append('v_fmac_f32 v%d, v%d, v%d' % (h + q, si + q, i + q))
            o.append('v_fma_f32 v%d, -v%d, v%d, v%d' % (h + 4 + q, si + q, r + q, h + 4 + q))
        for q in range(4):
            o.append('v_cvt_pk_bf16_f32 v%d, v%d, v%d' % (HP(tl, ta) + q, h + 2 * q, h + 2 * q + 1))
        return o
    D2 = lambda tl, mu: 64 + 4 * (mu + 2 * tl)
    def b2(tl, mu, ta):
        return '%s %s, %s, %s, %s' % (M32, vr(D2(tl, mu)), vr(HP(tl, ta)), vr(CB2 + 4 * (2 * mu + ta)), vr(D2(tl, mu)) if ta else '0')
    F = lambda tl: 80 + 4 * tl
    M = lambda tl: 96 + 4 * tl
    st = opt.get('k2st', 'sc1')
    def fin(tl):
        o = []
        for mu in range(2):
            for h in range(2):
                o.append('v_cvt_pk_bf16_f32 v%d, v%d, v%d' % (F(tl) + 2 * mu + h, D2(tl, mu) + 2 * h, D2(tl, mu) + 2 * h + 1))
        return o
    def fin2(tl):
        return ['v_permlane16_swap_b32 v%d, v%d' % (F(tl), F(tl) + 2),
                'v_permlane16_swap_b32 v%d, v%d' % (F(tl) + 1, F(tl) + 3),
                'ds_bpermute_b32 v%d, v%d, v%d' % (2 + tl, V['p'], F(tl)),
                'buffer_store_dwordx4 %s, v%d, s[44:47], s%d offen %s' % (vr(F(tl)), V['f'], 48 + tl, st)]
    def mir(tl):
        return ['v_bfi_b32 v%d, s52, v%d, v%d' % (M(tl) + q, F(tl) + 4 - q, F(tl) + 3 - q) for q in (1, 2, 3)]
    def mir2(tl):
        return ['v_bfi_b32 v%d, s52, v%d, v%d' % (M(tl), 2 + tl, F(tl) + 3),
                'buffer_store_dwordx4 %s, v%d, s[44:47], s%d offen %s' % (vr(M(tl)), V['m'], 50 + tl, st)]
    t00, t10, t01, t11 = tw(0, 0), tw(1, 0), tw(0, 1), tw(1, 1)
    seq = R(*range(16)) + [mf(i) for i in range(8)] + cv(0) + [b1(0, 0, 0), b1(0, 0, 1), b1(1, 0, 0), b1(1, 0, 1)]
    seq += [mf(i) for i in range(8, 16)] + t00 + t10 + cv(1) + [b1(0, 1, 0), b1(0, 1, 1), b1(1, 1, 0), b1(1, 1, 1)]
    seq += [b2(0, 0, 0), b2(0, 1, 0), b2(1, 0, 0), b2(1, 1, 0)] + t01 + [b2(0, 0, 1), b2(0, 1, 1)] + t11 + [b2(1, 0, 1), b2(1, 1, 1)]
    seq += fin(0) + fin2(0) + mir(0) + mir2(0) + fin(1) + fin2(1) + mir(1) + mir2(1)
    bo = cv(0) + [b1(0, 0, 0), b1(0, 0, 1), b1(1, 0, 0), b1(1, 0, 1)] + [mf(i) for i in range(8)] if not opt.get('nob') else []
    for t in schedule(seq, boost=bo, verbose=opt.get('v'), **SO): a(t)
    a('s_branch L_FIN\nL_ONE:\ns_cmp_lg_u32 s4, 0\ns_cbranch_scc1 L_FIN')
    seq = R(*range(16)) + [mf(i) for i in range(8)] + cv(0)[:2] + [b1(0, 0, 0), b1(0, 0, 1)]
    seq += [mf(i) for i in range(8, 16)] + t00 + cv(1)[:2] + [b1(0, 1, 0), b1(0, 1, 1), b2(0, 0, 0), b2(0, 1, 0)] + t01 + [b2(0, 0, 1), b2(0, 1, 1)]
    seq += fin(0) + fin2(0)[:2] + fin2(0)[3:]
    for t in schedule(seq, boost=bo, verbose=opt.get('v'), **SO): a(t)
    a('''
s_lshl_b32 s20, s5, 7
s_add_u32 s20, s20, %d
v_mov_b32 v4, s20
v_mov_b32 v6, s34
v_mov_b32 v7, s35
s_mov_b64 exec, 1
global_store_dwordx2 v4, v[6:7], s[12:13]
s_mov_b64 exec, -1
''' % CELL)
    a('L_FIN:')
    stamp_out(a, opt, 8)
    a('L_END:\ns_endpgm')
    return a.finish(opt.get('v'))

def build(opt):
    tabs = d3.build_tables()
    hdr = open('cdna_kernels/%s.s.ref' % NAME).read().split('; Override launch')[0]
    s = hdr
    if opt.get('diag'):
        s += '; @launch kernel=%s grid=(%d,1,1) block=(256,1,1) lds=%d\n' % (KN, NWG, LDS + (16384 if opt.get('rs') else 0))
        s += '; @launch kernel=k3_kernel grid=(1,1,1) block=(64,1,1) lds=0\n'
    else:
        s += '; @launch grid=(%d,1,1) block=(256,1,1) lds=%d\n' % (NWG, LDS + (16384 if opt.get('rs') else 0))
    s += '.amdgcn_target "amdgcn-amd-amdhsa--gfx950"\n.text\n'
    s += '.globl %s\n.p2align 8\n.type %s,@function\n' % (KN, KN) + gen(opt)
    if opt.get('diag'):
        s += '.globl k3_kernel\n.p2align 8\n.type k3_kernel,@function\n' + gen_k3(opt, [opt.get('nw', 1024)])
    s += '.p2align 8\n.type K2_TAB,@object\nK2_TAB:\n' + emit_data(k2_table(tabs))
    s += '.section .rodata,"a"\n' + kd(KN, 188, 96)
    if opt.get('diag'):
        s += kd('k3_kernel', 8, 32)
    return s

if __name__ == '__main__':
    out = sys.argv[1]
    opt = {}
    for kv in sys.argv[2:]:
        k, _, v = kv.partition('=')
        opt[k] = int(v) if v.lstrip('-').isdigit() else (v.replace('+', ' ') if v else 1)
    s = build(opt)
    open(out, 'w').write(s)
    print(out, len(s), 'bytes')
```

```python
import sys, numpy as np
from asmlib import Asm
from sched import schedule
import design as dz
import design3 as d3
from gen import gen_k3, NAME, XB, OUTB, vr, op_bytes, emit_data, kd

KN = NAME + '_kernel'
NWG = 258
CH = 16384
WSB = 2 * 64 * CH
CELL = WSB
HINT = WSB + 1024
L_CONST = 16384
L_STG = 28672
L_DAT = L_STG + 4 * 2304
LDS = L_DAT
SB = 72
EM_LO, EM_HI = 0x00F0000F, 0xF0000F00
M32 = 'v_mfma_f32_16x16x32_bf16'
M16 = 'v_mfma_f32_16x16x16_bf16'

def pstamp(a, opt, i):
    if opt.get('prof'):
        a('s_memtime s[%d:%d]' % (SB + 2 * i, SB + 1 + 2 * i))

def stamp(a, opt, i):
    if opt.get('stamp') and not opt.get('prof'):
        a('s_memrealtime s[%d:%d]' % (SB + 2 * i, SB + 1 + 2 * i))

def stamp_out(a, opt, n):
    if not opt.get('stamp'):
        return
    stamp(a, opt, n - 2)
    if opt.get('prof'): n = opt['prof']; pstamp(a, opt, n - 1)
    a('s_waitcnt vmcnt(0)')
    stamp(a, opt, n - 1)
    a('s_getreg_b32 s58, hwreg(HW_REG_XCC_ID)')
    a('s_getreg_b32 s59, hwreg(HW_REG_HW_ID)')
    a('s_lshl_b32 s62, s2, 2\ns_add_u32 s62, s62, s4\ns_lshl_b32 s62, s62, 6\ns_add_u32 s62, s62, %d' % (16 << 20))
    a('s_waitcnt lgkmcnt(0)\ns_add_u32 s60, s12, s62\ns_addc_u32 s61, s13, 0')
    a('v_mov_b32 v0, 0')
    for i in range(n):
        a('v_mov_b32 v1, s%d\nglobal_store_dword v0, v1, s[60:61] offset:%d' % (SB + 2 * i, 4 * i))
    a('v_mov_b32 v1, s55\nglobal_store_dword v0, v1, s[60:61] offset:52')
    a('v_mov_b32 v1, s58\nglobal_store_dword v0, v1, s[60:61] offset:56')
    a('v_mov_b32 v1, s59\nglobal_store_dword v0, v1, s[60:61] offset:60')

def k2_table(tabs):
    b = b''
    for ta in range(2):
        for x in tabs['k2tw'][ta]:
            b += x.astype('<f4').tobytes()
    for mu in range(2):
        for ta in range(2):
            b += op_bytes(tabs['k2B2'][mu][ta])
    b += op_bytes(np.concatenate(tabs['k2B1'], axis=1))
    act = [l for l in range(64) if ((l & 15) >> 2) == (l >> 4)]
    for v in range(5):
        for w in range(4):
            for k in range(4):
                b += op_bytes(tabs['k2A'][v][w][k][act])
    return b

CA, CB1, CTW, CB2 = 128, 144, 148, 164
VA = 180

def paired(a, rd, mf, after, n=16, depth=7):
    for i in range(depth): rd(i)
    issued = depth
    for k in range(n // 2):
        a('s_waitcnt lgkmcnt(%d)' % (2 * (issued - 2 * k - 2)))
        mf(2 * k); mf(2 * k + 1)
        for _ in range(2):
            if issued < n:
                rd(issued); issued += 1
        for t in after.get(k, []): a(t)

def emit(a, seq):
    pos = {}; n = 0
    for it in seq:
        if isinstance(it, tuple) and it[0] == 'W':
            a('s_waitcnt lgkmcnt(%d)' % (n - pos[it[1]]))
            continue
        if isinstance(it, tuple):
            _, key, it = it
            pos[key] = n + 1
        if it.startswith('ds_'): n += 1
        a(it)

def zipm(*lists):
    tot = sum(len(l) for l in lists); idx = [0] * len(lists); o = []
    for k in range(tot):
        j = min((j for j in range(len(lists)) if idx[j] < len(lists[j])), key=lambda j: (idx[j] + 0.5) / len(lists[j]))
        o.append(lists[j][idx[j]]); idx[j] += 1
    return o

def mix(xs, ys, step, first=0):
    ys = list(ys); o = []
    for n, x in enumerate(xs):
        if n >= first and (n - first) % step == 0 and ys:
            o.append(ys.pop(0))
        o.append(x)
    return o + ys

def gen(opt):
    a = Asm()
    SO = dict(ds_lat=opt.get('lat', 64), ds_gap=opt.get('gap', 83) / 10., slack=opt.get('slack', -20))
    V = dict(b0=VA, b1=VA + 1, f=VA + 2, m=VA + 3, p=VA + 4, tg=VA + 5, t=VA + 6, u=VA + 7)
    a('''
%s:
s_bfe_u32 s5, s2, 0x10003
s_mul_i32 s7, s5, 40
s_load_dwordx2 s[8:9], s[0:1], s7
s_load_dwordx2 s[12:13], s[0:1], 96
s_load_dwordx2 s[44:45], s[0:1], 80
s_cmp_ge_u32 s2, %d
s_cbranch_scc1 L_END
''' % (KN, NWG))
    stamp(a, opt, 0)
    a('''
v_lshrrev_b32 v6, 6, v0
v_and_b32 v0, 63, v0
v_readfirstlane_b32 s4, v6
s_and_b32 s33, s2, 7
s_lshr_b32 s6, s2, 5
s_sub_u32 s3, 16, s33
s_cmp_eq_u32 s33, 0
s_cselect_b32 s3, 8, s3
s_bfe_u32 s36, s2, 0x10004
s_cselect_b32 s3, s3, s33
s_sub_u32 s32, 16, s3
s_and_b32 s32, s32, 15
v_lshrrev_b32 v6, 4, v0
v_bfe_u32 v7, v0, 2, 2
v_mul_u32_u24 v2, 14336, v6
v_mul_u32_u24 v7, 114688, v7
v_lshrrev_b32 v3, 3, v0
v_and_b32 v3, 2, v3
v_xor_b32 v4, v3, v0
v_and_b32 v4, 3, v4
v_lshlrev_b32 v4, 4, v4
v_add3_u32 v2, v2, v7, v4
s_lshl_b32 s22, s4, %d
s_add_u32 m0, s22, 2048
s_mul_i32 s20, s4, %d
s_mul_i32 s21, s6, 56
s_mul_i32 s24, s3, 896
s_mul_i32 s26, s32, 896
s_add_u32 s24, s24, s20
s_add_u32 s26, s26, s20
s_add_u32 s24, s24, s21
s_sub_u32 s26, s26, s21
s_add_u32 s25, s24, 56320
s_add_u32 s27, s26, %d
s_add_u32 s26, s26, %d
s_mov_b32 s10, %d
s_mov_b32 s11, 0x20000
s_mov_b32 s14, %d
s_mov_b32 s15, 0x20000
s_and_b32 s20, s2, 1
s_cmp_ge_u32 s2, 256
s_cselect_b32 s5, s20, s5
s_lshl_b32 s20, s5, 7
s_add_u32 s20, s20, %d
v_lshlrev_b32 v1, 4, v0
s_cmp_ge_u32 s2, 256
s_waitcnt lgkmcnt(0)
''' % ((13, 917504) if opt.get('pw2') else (12, 458752)).__add__((840 + 56320, 840, XB, WSB, CELL)))
    stamp(a, opt, 1)
    a('s_cbranch_scc1 L_SKIP1')
    XD = '''
buffer_load_dwordx4 v2, s[8:11], s26 offen lds
buffer_load_dwordx4 v2, s[8:11], s27 offen offset:1024 lds
s_mov_b32 m0, s22
buffer_load_dwordx4 v2, s[8:11], s24 offen lds
buffer_load_dwordx4 v2, s[8:11], s25 offen offset:1024 lds
'''.replace(' lds', ' %s lds' % opt.get('xf', ''))
    if opt.get('pw2'):
        a('s_cmp_ge_u32 s4, 2\ns_cbranch_scc1 L_PRE')
        a(XD)
        a('s_add_u32 m0, s22, 6144\ns_add_u32 s22, s22, 4096')
        for r in (24, 25, 26, 27): a('s_add_u32 s%d, s%d, 458752' % (r, r))
        a(XD)
        a('''s_branch L_PRE2
L_PRE:
v_lshrrev_b32 v5, 3, v0
v_lshlrev_b32 v5, 14, v5
v_and_b32 v7, 0x70, v1
v_add_u32 v5, v5, v7
s_lshl_b32 s21, s5, 20
s_lshl_b32 s23, s3, 7
s_add_u32 s21, s21, s23
s_lshl_b32 s23, s6, 11
s_add_u32 s21, s21, s23
s_and_b32 s23, s4, 1
s_lshl_b32 s23, s23, 19
s_add_u32 s24, s21, s23
s_add_u32 s25, s24, 0x20000
s_add_u32 s26, s24, 0x40000
s_add_u32 s27, s24, 0x60000''')
        for i in range(4): a('v_mov_b32 v%d, 2.0' % (48 + i))
        for r in (24, 25, 26, 27): a('buffer_store_dwordx4 v[48:51], v5, s[12:15], s%d offen sc1' % r)
        a('L_PRE2:')
    else:
        a(XD)
    a('''
L_SKIP1:
s_load_dwordx2 s[34:35], s[12:13], s20
s_lshl_b32 s22, s4, 12
s_mov_b32 s46, %d
s_mov_b32 s47, 0x20000
s_getpc_b64 s[16:17]
L_PC:
s_lshl_b32 s20, s6, 3
s_add_u32 s33, s33, s20
s_lshl_b32 s31, s36, 10
s_add_u32 s31, s31, s33
s_lshr_b32 s21, 128, s36
s_cmp_eq_u32 s33, 0
s_cselect_b32 s31, s21, s31
s_cselect_b32 s20, 2, 0
s_add_u32 s36, s20, s36
s_cmp_ge_u32 s2, 256
s_cselect_b32 s33, 0, s33
s_cselect_b32 s36, 4, s36
s_cselect_b32 s31, 1024, s31
s_add_u32 s16, s16, K2_TAB-L_PC
s_addc_u32 s17, s17, 0
s_add_u32 s40, s16, 8192
s_addc_u32 s41, s17, 0
s_lshl_b32 s20, s36, 12
s_lshl_b32 s21, s4, 10
s_add_u32 s20, s20, s21
s_add_u32 s20, s20, 7168
s_add_u32 s18, s16, s20
s_addc_u32 s19, s17, 0
s_lshl_b32 s21, s4, 11
s_add_u32 s16, s16, s21
s_addc_u32 s17, s17, 0
s_mul_i32 s53, s4, 3072
s_add_u32 s53, s53, %d
s_lshl_b32 s20, s5, 6
s_add_u32 s21, s33, s20
s_lshl_b32 s21, s21, 14
s_add_u32 s54, s22, s21
s_cmp_ge_u32 s2, 256
s_cbranch_scc1 L_CONS
''' % (OUTB, L_CONST))
    CD = ['s_mov_b32 m0, s53',
          'global_load_dwordx4 %s, v1, s[40:41]' % vr(CB1),
          'global_load_lds_dwordx4 v1, s[16:17]',
          'global_load_lds_dwordx4 v1, s[16:17] offset:1024',
          'global_load_lds_dwordx4 v1, s[18:19] offset:2048']
    a('''v_bfe_u32 v5, v0, 3, 2
v_lshlrev_b32 v5, 18, v5
v_and_b32 v7, 0x70, v1
v_add_u32 v5, v5, v7
s_lshl_b32 s21, s4, 2
s_sub_u32 s22, 14, s21
s_sub_u32 s21, 16, s21
s_cmp_eq_u32 s4, 0
s_cselect_b32 s21, 8, s21
s_lshl_b32 s21, s21, 14
s_lshl_b32 s22, s22, 14
v_lshrrev_b32 v7, 5, v0
v_mad_u32_u24 v53, v7, s22, v5
v_mad_u32_u24 v5, v7, s21, v5
s_lshl_b32 s20, s5, 20
s_lshl_b32 s21, s3, 7
s_add_u32 s20, s20, s21
s_lshl_b32 s21, s6, 11
s_add_u32 s20, s20, s21
s_lshl_b32 s21, s4, 15
s_add_u32 s28, s20, s21
s_add_u32 s29, s28, %d
''' % CH)
    if opt.get('pre'):
        for i in range(4): a('v_mov_b32 v%d, 2.0' % (48 + i))
        PRE = ['buffer_store_dwordx4 v[48:51], v5, s[12:15], s28 offen %s' % opt.get('prest', 'sc1'),
               'buffer_store_dwordx4 v[48:51], v53, s[12:15], s29 offen %s' % opt.get('prest', 'sc1')]
        if opt['pre'] == 1:
            for t in PRE: a(t)
            a('s_nop 1')
    pw = opt.get('pw', 0)
    PW = []
    if pw:
        if opt.get('pwh'):
            a('s_lshl_b32 s20, s36, 11\ns_add_u32 s37, s54, s20\nv_lshlrev_b32 v55, 5, v0')
        else:
            a('s_mov_b32 s37, s54\nv_lshlrev_b32 v55, 6, v0')
        PW = ['buffer_load_dword v48, v55, s[12:15], s37 offen sc1']
    if opt.get('cde'):
        for t in CD: a(t)
    if pw == 2:
        for t in PW: a(t)
    a('''
s_lshl_b32 s20, s4, 1
v_bfe_u32 v32, v0, 1, 1
v_add_u32 v32, s20, v32
v_and_b32 v33, 1, v0
v_cmp_eq_u32 vcc, 0, v32
v_lshlrev_b32 v34, 3, v33
v_lshlrev_b32 v35, 2, v33
v_cndmask_b32 v32, v32, v34, vcc
v_cndmask_b32 v35, v35, 0, vcc
v_and_b32 v34, 1, v32
v_cvt_f32_u32 v32, v32
v_cvt_f32_u32 v35, v35
v_mul_u32_u24 v34, 0x8000, v34
v_mul_f32 v32, 0x3d800000, v32
v_mul_f32 v35, 0x3d800000, v35
v_lshl_or_b32 v34, v34, 16, v34
''')
    for i in range(8, 12): a('v_mov_b32 v%d, 0' % i)
    a('s_mov_b32 exec_lo, 0x%x\ns_mov_b32 exec_hi, 0x%x' % (EM_LO, EM_HI))
    for p in range(4):
        a('v_cos_f32 v36, v35\nv_add_f32 v35, v35, v32\nv_cos_f32 v37, v35')
        a('v_add_f32 v35, v35, v32' if p < 3 else 's_nop 0')
        a('v_cvt_pk_bf16_f32 v%d, v36, v37' % (8 + p))
    a('s_mov_b64 exec, -1')
    for p in range(4): a('v_xor_b32 v%d, v34, v%d' % (12 + p, 8 + p))
    a('''
v_lshlrev_b32 v38, 3, v0
v_and_b32 v38, 0x30, v38
v_and_b32 v39, 0x30, v0
v_add_u32 v40, s32, v39
v_add_u32 v39, s3, v39
v_and_b32 v47, 8, v0
v_cmp_ne_u32 s[56:57], 0, v47
v_cvt_f32_u32 v39, v39
v_cvt_f32_u32 v40, v40
v_cvt_f32_u32 v48, v33
v_sub_u32 v45, -16, v38
v_mul_f32 v39, 0x3a000000, v39
v_mul_f32 v40, 0x3a000000, v40
v_cndmask_b32 v45, v38, v45, s[56:57]
v_mul_f32 v49, 0x3e800000, v48
v_mul_f32 v50, 0.5, v48
v_add_u32 v45, s20, v45
v_add_f32 v43, v49, v50
v_add_u32 v46, 1, v45
v_cndmask_b32 v43, v49, v43, s[56:57]
v_add_f32 v44, v43, v50
v_mov_b32 v41, v43
v_mov_b32 v42, v44
s_cmp_lg_u32 s4, 0
s_cbranch_scc1 L_REG
v_cvt_f32_u32 v51, v6
v_add_u32 v45, v47, v38
v_and_b32 v52, 14, v0
v_add_f32 v41, 0x3e800000, v49
v_cmp_eq_u32 vcc, 0, v52
v_mul_f32 v51, v51, v50
v_cndmask_b32 v41, v49, v41, s[56:57]
s_cmp_eq_u32 s3, 0
s_cselect_b64 s[58:59], vcc, 0
v_cndmask_b32 v41, v41, v51, vcc
v_add_f32 v42, v41, v50
v_cndmask_b32 v42, v42, v41, s[58:59]
L_REG:
v_cvt_f32_i32 v45, v45
v_cvt_f32_i32 v46, v46
''')
    for al in range(2):
        a('v_mul_f32 v47, 0x3d000000, v%d' % (45 + al))
        for win in range(2):
            a('v_fma_f32 v50, v%d, v%d, v%d' % (45 + al, 39 + win, 41 + 2 * al + win))
            a('v_cos_f32 v36, v50\nv_sin_f32 v37, v50\nv_add_f32 v50, v50, v47')
            a('v_cvt_pk_bf16_f32 v%d, v36, v37' % (16 + 4 * al + 2 * win))
            a('v_cos_f32 v36, v50\nv_sin_f32 v37, v50\ns_nop 0')
            a('v_cvt_pk_bf16_f32 v%d, v36, v37' % (17 + 4 * al + 2 * win))
    a('''
s_cmp_lg_u32 s4, 0
s_cbranch_scc1 L_REG2
v_mov_b32 v36, 0xffff
v_not_b32 v37, v36
v_cndmask_b32 v36, v36, v37, s[56:57]
''')
    for p in range(4): a('v_and_b32 v%d, v36, v%d' % (16 + p, 16 + p))
    a('L_REG2:')
    a('''
v_and_b32 v36, 15, v0
v_lshl_add_u32 v37, v6, 2, v36
v_sub_u32 v38, 28, v37
v_sub_u32 v37, 12, v37
v_mov_b32 v41, 0
v_mov_b32 v42, 0x3f80
v_cmp_gt_u32 vcc, 4, v38
v_lshlrev_b32 v38, 4, v38
v_mov_b32 v30, 0
v_cndmask_b32 v40, 0, v42, vcc
v_cmp_gt_u32 vcc, 4, v37
v_lshlrev_b64 v[24:25], v38, v[40:41]
v_lshlrev_b32 v37, 4, v37
v_cndmask_b32 v40, 0, v42, vcc
s_cmp_eq_u32 s6, 0
s_cselect_b32 s21, 0, 0x3f80
v_lshlrev_b64 v[26:27], v37, v[40:41]
v_mov_b32 v31, 0
v_mov_b32 v28, v26
v_mov_b32 v29, v27
v_writelane_b32 v26, s21, 48
v_writelane_b32 v28, 0, 12
''')
    a('''
v_lshlrev_b32 v3, 4, v3
v_and_b32 v4, 3, v0
v_lshl_add_u32 v3, v4, 3, v3
v_and_b32 v7, 0x3c0, v1
v_add_u32 v3, v3, v7
s_mul_i32 s20, s4, 2304
s_add_u32 s20, s20, %d
v_lshrrev_b32 v2, 2, v0
v_mul_u32_u24 v2, 72, v2
v_lshl_add_u32 v2, v4, 4, v2
v_add_u32 v2, s20, v2
v_xor_b32 v4, 32, v3
s_lshl_b32 s21, s6, 4
s_and_b32 s21, s21, 32
s_add_u32 s22, s20, s21
s_xor_b32 s21, s21, 32
s_add_u32 s23, s20, s21
v_mul_u32_u24 v7, 72, v36
v_lshl_add_u32 v7, v6, 3, v7
v_add_u32 v6, s22, v7
v_add_u32 v7, s23, v7
s_cmp_eq_u32 s6, 7
s_cselect_b32 s30, 0xffff, 0
''' % L_STG)
    NONCE = '''
s_waitcnt lgkmcnt(0)
s_or_b32 s34, s34, 0x40000000
s_or_b32 s35, s35, 0x40004000
s_add_u32 s34, s34, 0x2b150000
s_add_u32 s35, s35, 0x1e3739b9
s_and_b32 s34, s34, 0xbfff0000
s_and_b32 s35, s35, 0xbfffbfff
'''
    a(NONCE)
    if opt.get('pre', 0) >= 2:
        for i in range(4): a('v_mov_b32 v%d, 2.0' % (48 + i))
    a('s_mov_b32 s56, 0\ns_mov_b32 s57, 0xffff0000\nv_mov_b32 v54, s34')
    if opt.get('pw2'): a('s_cmp_ge_u32 s4, 2\ns_cbranch_scc1 L_NOXW')
    a('s_waitcnt vmcnt(%d)\nL_NOXW:' % (2 if opt.get('sp') else 0))
    stamp(a, opt, 2)
    if opt.get('stamp') and not opt.get('prof'): a('s_waitcnt lgkmcnt(0)')
    if opt.get('pre') == 3:
        for t in PRE: a(t)
    a('s_barrier')
    pstamp(a, opt, 0)
    if opt.get('pre') == 2:
        pass
    CDL = (PRE if opt.get('pre') == 2 else []) + ([] if opt.get('cde') else CD) + (PW if pw == 1 else [])
    order = [(win, kap, nt, bp) for win in (1, 0) for kap in range(2) for nt in range(2) for bp in range(2)]
    ACC = lambda win, nt, bp: 32 + 4 * (bp + 2 * nt) if win else 112 + 4 * (bp + 2 * nt)
    OPR = lambda i: 56 + 4 * (i % 14) if i < 14 else 56 + 4 * (i - 14)
    def rd(i):
        win, kap, nt, bp = order[i]
        t = ['ds_read_b64_tr_b16 %s, v%d offset:%d' % (vr(OPR(i) + 2 * hh, 2), 3 + nt, (2 * kap + hh) * 4096 + win * 2048 + bp * 1024) for hh in range(2)]
        return [t[0], ('T', i, t[1])]
    def mf(i):
        win, kap, nt, bp = order[i]
        A = ACC(win, nt, bp)
        return '%s %s, %s, %s, %s' % (M32, vr(A), vr(8 + 4 * kap), vr(OPR(i)), vr(A) if kap else '0')
    A2 = lambda al, win, nt: 64 + 2 * (al + 2 * nt) if win else 32 + 2 * (al + 2 * nt)
    def cv(win, nt):
        return ['v_cvt_pk_bf16_f32 v%d, v%d, v%d' % (A2(al, win, nt) + p, ACC(win, nt, p) + 2 * al, ACC(win, nt, p) + 2 * al + 1) for al in range(2) for p in range(2)]
    D2M = lambda al, nt: 32 + 4 * (nt + 2 * al)
    B2 = lambda al: 72 + 4 * al
    D2 = lambda al, nt: (188 if opt.get('sp') else 80) + 4 * (nt + 2 * al)
    def m2m(al, nt): return '%s %s, %s, %s, 0' % (M16, vr(D2M(al, nt)), vr(A2(al, 1, nt), 2), vr(18 + 4 * al, 2))
    def cvm(al): return ['v_cvt_pk_bf16_f32 v%d, v%d, v%d' % (B2(al) + 2 * nt + h, D2M(al, nt) + 2 * h, D2M(al, nt) + 2 * h + 1) for nt in range(2) for h in range(2)]
    def mp(al, nt): return '%s %s, %s, %s, 0' % (M32, vr(D2(al, nt)), vr(24 + 4 * nt), vr(B2(al)))
    def m2(al, nt): return '%s %s, %s, %s, %s' % (M16, vr(D2(al, nt)), vr(A2(al, 0, nt), 2), vr(16 + 4 * al, 2), vr(D2(al, nt)))
    PK = lambda al, nt: 96 + 2 * (nt + 2 * al)
    def pack(al, nt): return ['v_cvt_pk_bf16_f32 v%d, v%d, v%d' % (PK(al, nt) + h, D2(al, nt) + 2 * h, D2(al, nt) + 2 * h + 1) for h in range(2)]
    def wr(al, nt): return 'ds_write_b64 v%d, %s offset:%d' % (6 + nt, vr(PK(al, nt), 2), 1152 * al)
    R = lambda *ii: [x[2] if isinstance(x, tuple) else x for i in ii for x in rd(i)]
    seq = R(*range(14)) + [mf(i) for i in range(8)] + R(14, 15) + CDL + cv(1, 0) + cv(1, 1) + [m2m(0, 0), m2m(0, 1), m2m(1, 0), m2m(1, 1)]
    seq += [mf(i) for i in range(8, 12)] + cvm(0) + cvm(1) + [mp(0, 0), mp(0, 1), mp(1, 0), mp(1, 1)] + [mf(i) for i in range(12, 16)]
    seq += cv(0, 0) + cv(0, 1) + [m2(0, 0), m2(1, 0), m2(0, 1), m2(1, 1)]
    seq += pack(0, 0) + pack(1, 0) + [wr(0, 0), wr(1, 0)] + pack(0, 1) + pack(1, 1)
    bo = cv(1, 0) + cv(1, 1) + [m2m(0, 0), m2m(0, 1), m2m(1, 0), m2m(1, 1)] + [mf(i) for i in range(8)] if not opt.get('nob') else []
    if opt.get('sp'):
        s1 = R(*range(8)) + [mf(i) for i in range(8)] + cv(1, 0) + cv(1, 1) + [m2m(0, 0), m2m(0, 1), m2m(1, 0), m2m(1, 1)]
        s1b = cvm(0) + cvm(1) + [mp(0, 0), mp(0, 1), mp(1, 0), mp(1, 1)]
        if opt['sp'] == 1: s1 += s1b; s1b = []
        s2 = R(*range(8, 16)) + CDL + s1b + [mf(i) for i in range(8, 16)] + cv(0, 0) + cv(0, 1) + [m2(0, 0), m2(1, 0), m2(0, 1), m2(1, 1)]
        s2 += pack(0, 0) + pack(1, 0) + [wr(0, 0), wr(1, 0)] + pack(0, 1) + pack(1, 1)
        for t in schedule(s1, verbose=opt.get('v'), **SO): a(t)
        a('s_waitcnt vmcnt(0)\ns_barrier')
        for t in schedule(s2, boost=CDL, pin=[(CDL[i], R(*range(8, 16))[min(15, 7 + 2 * i)]) for i in range(len(CDL))], verbose=opt.get('v'), **SO): a(t)
    else:
        for t in schedule(seq, boost=bo + CDL, pin=[(CDL[i], R(*range(8))[min(15, opt.get('p0', 7) + 2 * i)]) for i in range(len(CDL))], verbose=opt.get('v'), **SO): a(t)
    pstamp(a, opt, 1)
    a('s_mov_b64 exec, s[56:57]')
    for al in range(2):
        a('v_and_or_b32 v%d, v%d, s30, v54\nv_mov_b32 v%d, s35' % (PK(al, 1), PK(al, 1), PK(al, 1) + 1))
    a('s_mov_b64 exec, -1')
    for al in range(2):
        a(wr(al, 1))
        a('ds_read2_b64 %s, v2 offset0:%d offset1:%d' % (vr(104 + 4 * al), 144 * al, 144 * al + 1))
    pstamp(a, opt, 2)
    if opt.get('prof'): a('s_waitcnt lgkmcnt(0)')
    a('s_waitcnt lgkmcnt(2)' + ('' if opt.get('cde') or opt.get('rs') or opt.get('nv') else ' vmcnt(0)'))
    if opt.get('pw2') or opt.get('bb'): a('s_barrier')
    a('buffer_store_dwordx4 v[104:107], v5, s[12:15], s28 offen %s' % opt.get('k1st', 'sc1'))
    a('s_waitcnt lgkmcnt(0)')
    a('buffer_store_dwordx4 v[108:111], v53, s[12:15], s29 offen %s' % opt.get('k1st', 'sc1'))
    stamp(a, opt, 3)
    pstamp(a, opt, 3)
    if opt.get('xh'):
        a('''s_lshl_b32 s20, s4, 8
s_add_u32 s20, s20, s2
s_cmp_lt_u32 s20, 1008
s_cbranch_scc1 L_P2
s_lshl_b32 s20, s2, 7
s_and_b32 s20, s20, 0x780
s_add_u32 s20, s20, %d
v_lshl_add_u32 v8, v1, 7, s20
v_mov_b32 v9, s35
s_mov_b64 exec, %d
global_store_dword v8, v9, s[12:13] sc1
s_mov_b64 exec, -1
%s
s_branch %s''' % (HINT, 0xff if opt.get('ah') else 1, '' if opt.get('nv') else 's_waitcnt vmcnt(1)' if opt.get('pw2') or opt.get('bb') else 's_barrier\ns_waitcnt vmcnt(1)', 'L_P2' if opt.get('nv') else 'L_P3'))
    else:
        a('s_branch L_P2')
    a('L_CONS:')
    a(NONCE)
    for t in CD: a(t)
    a('L_P2:\ns_waitcnt vmcnt(0)\ns_barrier' if opt.get('nv') else 'L_P2:' if opt.get('rs') else 's_waitcnt vmcnt(0)\ns_barrier\nL_P2:' if opt.get('pw2') or opt.get('bb') else 's_waitcnt vmcnt(0)\nL_P2:\ns_barrier')
    if opt.get('pa') and not opt.get('nv'): a('s_waitcnt vmcnt(0)')
    a('L_P3:')
    if opt.get('ah'):
        a('''s_getreg_b32 s20, hwreg(HW_REG_XCC_ID, 0, 3)
s_lshl_b32 s20, s20, 1
s_add_u32 s20, s20, s5
s_lshl_b32 s20, s20, 10
s_add_u32 s20, s20, %d
v_lshl_add_u32 v8, v1, 3, s20
s_mov_b64 exec, 0xff
global_load_dword v9, v8, s[12:13] sc1
s_mov_b64 exec, -1''' % HINT)
    DB = L_DAT if opt.get('rs') else 0
    a('''
v_lshrrev_b32 v6, 4, v0
v_lshlrev_b32 v{b0}, 12, v6
v_and_b32 v7, 0xc0, v1
v_add_u32 v{b0}, v{b0}, v7
v_and_b32 v6, 1, v6
v_lshl_add_u32 v{b0}, v6, 5, v{b0}
v_and_b32 v6, 3, v0
v_lshl_add_u32 v{b0}, v6, 3, v{b0}
v_add_u32 v{b0}, {db}, v{b0}
v_xor_b32 v{b1}, 32, v{b0}
v_and_b32 v{f}, 31, v0
v_lshrrev_b32 v6, 5, v0
v_lshl_add_u32 v6, v{f}, 1, v6
v_add_u32 v7, 1, v6
v_cmp_ne_u32 vcc, 56, v7
v_mov_b32 v{t}, 0x40000000
v_lshlrev_b32 v6, 4, v6
v_cndmask_b32 v7, 0, v7, vcc
v_cmp_gt_u32 vcc, 28, v{f}
v_sub_u32 v{m}, 880, v6
v_and_b32 v{u}, 1, v7
v_cndmask_b32 v{f}, v{t}, v6, vcc
v_cndmask_b32 v{m}, v{t}, v{m}, vcc
v_lshlrev_b32 v7, 1, v7
v_and_b32 v7, 0x7c, v7
v_lshl_add_u32 v{p}, v{u}, 7, v7
s_lshl_b32 s22, s4, 12
s_add_u32 s22, s22, {db}
s_and_b32 s20, s4, 1
s_lshl_b32 s20, s20, 5
s_sub_u32 s20, 56, s20
s_add_u32 s20, s20, s22
v_and_b32 v{tg}, 0x3c0, v1
v_add_u32 v{tg}, s20, v{tg}
v_lshl_add_u32 v{u}, v1, 2, s20
v_and_b32 v6, 0xf0, v1
v_add_u32 v6, s53, v6
v_add_u32 v7, {cc}, v1
'''.format(cc=L_CONST, db=DB, **V))
    for i in range(16): a('v_mov_b32 v%d, 0' % (CA + i))
    a('''
s_lshl_b32 s21, s4, 8
s_add_u32 s48, s21, s31
s_add_u32 s49, s48, 128
s_cmp_eq_u32 s36, 2
s_cselect_b32 s21, 1023, -1
s_and_b32 s49, s49, s21
s_sub_u32 s50, 2048, s48
s_sub_u32 s51, 2048, s49
s_and_b32 s51, s51, 2047
s_mul_i32 s20, s5, 896
s_mul_i32 s48, s48, 1792
s_mul_i32 s49, s49, 1792
s_mul_i32 s50, s50, 1792
s_mul_i32 s51, s51, 1792
s_add_u32 s48, s48, s20
s_add_u32 s49, s49, s20
s_add_u32 s50, s50, s20
s_add_u32 s51, s51, s20
s_mov_b32 s52, 0xffff
s_mov_b32 s55, 0x40000
s_mov_b32 m0, s22
''')
    def const_reads():
        a('s_mov_b32 exec_lo, 0x%x\ns_mov_b32 exec_hi, 0x%x' % (EM_LO, EM_HI))
        for k in range(4): a('ds_read_b128 %s, v6 offset:%d' % (vr(CA + 4 * k), 2048 + 256 * k))
        a('s_mov_b64 exec, -1')
        for i in range(8): a('ds_read_b128 %s, v7 offset:%d' % (vr(CTW + 4 * i), (i >> 1) * 3072 + (i & 1) * 1024))
    if not opt.get('rs'): const_reads()
    ld = opt.get('k2ld', 'sc1')
    sent = opt.get('sent', 0)
    if not opt.get('early') and sent != 2 and not opt.get('pa'): a('s_waitcnt vmcnt(0)')
    stamp(a, opt, 4)
    if opt.get('slp'): a('s_sleep %d' % opt['slp'])
    if opt.get('ah'):
        a('''s_mov_b64 exec, 0xff
L_SENT:
s_waitcnt vmcnt(0)
v_cmp_ne_u32 vcc, s35, v9
s_and_b64 exec, exec, vcc
s_cbranch_scc0 L_POLL0
global_load_dword v9, v8, s[12:13] sc1
s_sub_u32 s55, s55, 1
s_cbranch_scc0 L_SENT''')
    elif opt.get('xh'):
        a('''s_cmp_lt_u32 s2, 256
s_cbranch_scc1 L_POLL0
s_lshl_b32 s20, s5, 10
s_add_u32 s20, s20, %d
v_lshl_add_u32 v8, v1, 3, s20
s_mov_b64 exec, 0xff
L_SENT:
global_load_dword v9, v8, s[12:13] sc1
s_waitcnt vmcnt(0)
v_cmp_ne_u32 vcc, s35, v9
s_and_b64 exec, exec, vcc
s_cbranch_scc0 L_POLL0
s_sub_u32 s55, s55, 1
s_cbranch_scc0 L_SENT''' % HINT)
    else:
        if sent:
            a('s_mov_b32 exec_lo, 0x%x\ns_mov_b32 exec_hi, 0x%x' % ((opt.get('sm', 0x0f0f0f0f),) * 2))
        else:
            a('s_cmp_lt_u32 s2, 256\ns_cbranch_scc1 L_POLL0\ns_mov_b64 exec, 15')
        a('''
L_SENT:
buffer_load_dwordx4 v1, s[12:15], s54 offen {ld} lds
s_waitcnt vmcnt(0)
ds_read_b64 v[8:9], v{tg}
s_waitcnt lgkmcnt(0)
v_cmp_ne_u32 vcc, s35, v9
s_cbranch_vccz L_POLL0
s_sub_u32 s55, s55, 1
s_cbranch_scc0 L_SENT'''.format(ld=ld, **V))
    a('''
L_POLL0:
s_mov_b64 exec, -1
'''.format(ld=ld, **V))
    for k in range(4): a('buffer_load_dwordx4 v1, s[12:15], s54 offen offset:%d %s lds' % (1024 * k, ld))
    if opt.get('rs'):
        a('s_barrier')
        const_reads()
    a('s_branch L_CHK\nL_POLL:')
    for k in range(4):
        a('s_mov_b64 exec, s[%d:%d]\ns_cbranch_execz L_NO%d' % (56 + 2 * k, 57 + 2 * k, k))
        a('buffer_load_dwordx4 v1, s[12:15], s54 offen offset:%d %s lds' % (1024 * k, ld))
        a('L_NO%d:' % k)
    a('s_mov_b64 exec, -1\nL_CHK:\ns_waitcnt vmcnt(0)')
    if not opt.get('slowchk'):
        a('''ds_read_b64 v[8:9], v{u}
s_waitcnt lgkmcnt(0)
v_and_b32 v8, 0xffff0000, v8
v_cmp_ne_u64 vcc, s[34:35], v[8:9]
s_cbranch_vccz L_GO'''.format(**V))
    for k in range(4): a('ds_read_b64 %s, v%d offset:%d' % (vr(8 + 2 * k, 2), V['tg'], 1024 * k))
    for k in range(4):
        a('s_waitcnt lgkmcnt(%d)' % (3 - k))
        a('v_and_b32 v%d, 0xffff0000, v%d' % (8 + 2 * k, 8 + 2 * k))
        a('v_cmp_ne_u64 s[%d:%d], s[34:35], %s' % (56 + 2 * k, 57 + 2 * k, vr(8 + 2 * k, 2)))
    a('''
s_or_b64 s[64:65], s[56:57], s[58:59]
s_or_b64 s[66:67], s[60:61], s[62:63]
s_or_b64 s[64:65], s[64:65], s[66:67]
s_cbranch_scc0 L_GO
s_sub_u32 s55, s55, 1
s_cbranch_scc0 L_POLL
L_GO:
''')
    stamp(a, opt, 5)
    if opt.get('stamp') and not opt.get('prof'): a('s_waitcnt lgkmcnt(0)')
    a('s_cmp_ge_u32 s2, 256\ns_barrier\ns_cbranch_scc1 L_ONE')
    pstamp(a, opt, 4)
    order = [(ta, kap, sub) for ta in range(2) for kap in range(4) for sub in range(2)]
    DA = lambda ta, sub: 8 + 4 * (sub + 2 * ta)
    OPR = lambda i: 24 + 4 * i
    def rd(i):
        ta, kap, sub = order[i]
        t = ['ds_read_b64_tr_b16 %s, v%d offset:%d' % (vr(OPR(i) + 2 * hh, 2), V['b0'] + ta, (4 * kap + 2 * hh) * 128 + sub * 2048) for hh in range(2)]
        return [t[0], ('T', i, t[1])]
    def mf(i):
        ta, kap, sub = order[i]
        return '%s %s, %s, %s, %s' % (M32, vr(DA(ta, sub)), vr(CA + 4 * kap), vr(OPR(i)), vr(DA(ta, sub)) if kap else '0')
    A1 = lambda tl, ta: 88 + 2 * (tl + 2 * ta)
    def cv(ta):
        return ['v_cvt_pk_bf16_f32 v%d, v%d, v%d' % (A1(tl, ta) + p, DA(ta, p) + 2 * tl, DA(ta, p) + 2 * tl + 1) for tl in range(2) for p in range(2)]
    D1 = lambda tl, ta, c: 96 + 4 * (c + 2 * tl) if ta == 0 else 112 + 4 * (c + 2 * tl)
    def b1(tl, ta, c):
        return '%s %s, %s, %s, 0' % (M16, vr(D1(tl, ta, c)), vr(A1(tl, ta), 2), vr(CB1 + 2 * c, 2))
    HT = lambda tl, ta: 24 + 8 * (tl + 2 * ta)
    HP = lambda tl, ta: 8 + 4 * tl if ta == 0 else 56 + 4 * tl
    def tw(tl, ta):
        r, i, h, co, si = D1(tl, ta, 0), D1(tl, ta, 1), HT(tl, ta), CTW + 8 * ta, CTW + 4 + 8 * ta
        o = []
        for q in range(4):
            o.append('v_mul_f32 v%d, v%d, v%d' % (h + q, co + q, r + q))
        for q in range(4):
            o.append('v_mul_f32 v%d, v%d, v%d' % (h + 4 + q, co + q, i + q))
        for q in range(4):
            o.append('v_fmac_f32 v%d, v%d, v%d' % (h + q, si + q, i + q))
            o.append('v_fma_f32 v%d, -v%d, v%d, v%d' % (h + 4 + q, si + q, r + q, h + 4 + q))
        for q in range(4):
            o.append('v_cvt_pk_bf16_f32 v%d, v%d, v%d' % (HP(tl, ta) + q, h + 2 * q, h + 2 * q + 1))
        return o
    D2 = lambda tl, mu: 64 + 4 * (mu + 2 * tl)
    def b2(tl, mu, ta):
        return '%s %s, %s, %s, %s' % (M32, vr(D2(tl, mu)), vr(HP(tl, ta)), vr(CB2 + 4 * (2 * mu + ta)), vr(D2(tl, mu)) if ta else '0')
    F = lambda tl: 80 + 4 * tl
    M = lambda tl: 96 + 4 * tl
    st = opt.get('k2st', 'sc1')
    def fin(tl):
        o = []
        for mu in range(2):
            for h in range(2):
                o.append('v_cvt_pk_bf16_f32 v%d, v%d, v%d' % (F(tl) + 2 * mu + h, D2(tl, mu) + 2 * h, D2(tl, mu) + 2 * h + 1))
        return o
    def fin2(tl):
        return ['v_permlane16_swap_b32 v%d, v%d' % (F(tl), F(tl) + 2),
                'v_permlane16_swap_b32 v%d, v%d' % (F(tl) + 1, F(tl) + 3),
                'ds_bpermute_b32 v%d, v%d, v%d' % (2 + tl, V['p'], F(tl)),
                'buffer_store_dwordx4 %s, v%d, s[44:47], s%d offen %s' % (vr(F(tl)), V['f'], 48 + tl, st)]
    def mir(tl):
        return ['v_bfi_b32 v%d, s52, v%d, v%d' % (M(tl) + q, F(tl) + 4 - q, F(tl) + 3 - q) for q in (1, 2, 3)]
    def mir2(tl):
        return ['v_bfi_b32 v%d, s52, v%d, v%d' % (M(tl), 2 + tl, F(tl) + 3),
                'buffer_store_dwordx4 %s, v%d, s[44:47], s%d offen %s' % (vr(M(tl)), V['m'], 50 + tl, st)]
    t00, t10, t01, t11 = tw(0, 0), tw(1, 0), tw(0, 1), tw(1, 1)
    seq = R(*range(16)) + [mf(i) for i in range(8)] + cv(0) + [b1(0, 0, 0), b1(0, 0, 1), b1(1, 0, 0), b1(1, 0, 1)]
    seq += [mf(i) for i in range(8, 16)] + t00 + t10 + cv(1) + [b1(0, 1, 0), b1(0, 1, 1), b1(1, 1, 0), b1(1, 1, 1)]
    seq += [b2(0, 0, 0), b2(0, 1, 0), b2(1, 0, 0), b2(1, 1, 0)] + t01 + [b2(0, 0, 1), b2(0, 1, 1)] + t11 + [b2(1, 0, 1), b2(1, 1, 1)]
    seq += fin(0) + fin2(0) + mir(0) + mir2(0) + fin(1) + fin2(1) + mir(1) + mir2(1)
    bo = cv(0) + [b1(0, 0, 0), b1(0, 0, 1), b1(1, 0, 0), b1(1, 0, 1)] + [mf(i) for i in range(8)] if not opt.get('nob') else []
    for t in schedule(seq, boost=bo, verbose=opt.get('v'), **SO): a(t)
    a('s_branch L_FIN\nL_ONE:\ns_cmp_lg_u32 s4, 0\ns_cbranch_scc1 L_FIN')
    seq = R(*range(16)) + [mf(i) for i in range(8)] + cv(0)[:2] + [b1(0, 0, 0), b1(0, 0, 1)]
    seq += [mf(i) for i in range(8, 16)] + t00 + cv(1)[:2] + [b1(0, 1, 0), b1(0, 1, 1), b2(0, 0, 0), b2(0, 1, 0)] + t01 + [b2(0, 0, 1), b2(0, 1, 1)]
    seq += fin(0) + fin2(0)[:2] + fin2(0)[3:]
    for t in schedule(seq, boost=bo, verbose=opt.get('v'), **SO): a(t)
    a('''
s_lshl_b32 s20, s5, 7
s_add_u32 s20, s20, %d
v_mov_b32 v4, s20
v_mov_b32 v6, s34
v_mov_b32 v7, s35
s_mov_b64 exec, 1
global_store_dwordx2 v4, v[6:7], s[12:13]
s_mov_b64 exec, -1
''' % CELL)
    a('L_FIN:')
    stamp_out(a, opt, 8)
    a('L_END:\ns_endpgm')
    return a.finish(opt.get('v'))

def build(opt):
    tabs = d3.build_tables()
    hdr = open('cdna_kernels/%s.s.ref' % NAME).read().split('; Override launch')[0]
    s = hdr
    if opt.get('diag'):
        s += '; @launch kernel=%s grid=(%d,1,1) block=(256,1,1) lds=%d\n' % (KN, NWG, LDS + (16384 if opt.get('rs') else 0))
        s += '; @launch kernel=k3_kernel grid=(1,1,1) block=(64,1,1) lds=0\n'
    else:
        s += '; @launch grid=(%d,1,1) block=(256,1,1) lds=%d\n' % (NWG, LDS + (16384 if opt.get('rs') else 0))
    s += '.amdgcn_target "amdgcn-amd-amdhsa--gfx950"\n.text\n'
    s += '.globl %s\n.p2align 8\n.type %s,@function\n' % (KN, KN) + gen(opt)
    if opt.get('diag'):
        s += '.globl k3_kernel\n.p2align 8\n.type k3_kernel,@function\n' + gen_k3(opt, [opt.get('nw', 1024)])
    s += '.p2align 8\n.type K2_TAB,@object\nK2_TAB:\n' + emit_data(k2_table(tabs))
    s += '.section .rodata,"a"\n' + kd(KN, 204 if opt.get('sp') else 188, 96)
    if opt.get('diag'):
        s += kd('k3_kernel', 8, 32)
    return s

if __name__ == '__main__':
    out = sys.argv[1]
    opt = {}
    for kv in sys.argv[2:]:
        k, _, v = kv.partition('=')
        opt[k] = int(v) if v.lstrip('-').isdigit() else (v.replace('+', ' ') if v else 1)
    s = build(opt)
    open(out, 'w').write(s)
    print(out, len(s), 'bytes')
```

```python
import sys, numpy as np
from asmlib import Asm
from sched import schedule
import design as dz
import design3 as d3
from gen import gen_k3, NAME, XB, OUTB, vr, op_bytes, emit_data, kd

KN = NAME + '_kernel'
NWG = 258
CH = 16384
WSB = 2 * 64 * CH
CELL = WSB
HINT = WSB + 1024
L_CONST = 16384
L_STG = 28672
L_DAT = L_STG + 4 * 2304
LDS = L_DAT
SB = 72
EM_LO, EM_HI = 0x00F0000F, 0xF0000F00
M32 = 'v_mfma_f32_16x16x32_bf16'
M16 = 'v_mfma_f32_16x16x16_bf16'

def pstamp(a, opt, i):
    if opt.get('prof'):
        a('s_memtime s[%d:%d]' % (SB + 2 * i, SB + 1 + 2 * i))

def stamp(a, opt, i):
    if opt.get('stamp') and not opt.get('prof'):
        a('s_memrealtime s[%d:%d]' % (SB + 2 * i, SB + 1 + 2 * i))

def stamp_out(a, opt, n):
    if not opt.get('stamp'):
        return
    stamp(a, opt, n - 2)
    if opt.get('prof'): n = opt['prof']; pstamp(a, opt, n - 1)
    a('s_waitcnt vmcnt(0)')
    stamp(a, opt, n - 1)
    a('s_getreg_b32 s58, hwreg(HW_REG_XCC_ID)')
    a('s_getreg_b32 s59, hwreg(HW_REG_HW_ID)')
    a('s_lshl_b32 s62, s2, 2\ns_add_u32 s62, s62, s4\ns_lshl_b32 s62, s62, 6\ns_add_u32 s62, s62, %d' % (16 << 20))
    a('s_waitcnt lgkmcnt(0)\ns_add_u32 s60, s12, s62\ns_addc_u32 s61, s13, 0')
    a('v_mov_b32 v0, 0')
    for i in range(n):
        a('v_mov_b32 v1, s%d\nglobal_store_dword v0, v1, s[60:61] offset:%d' % (SB + 2 * i, 4 * i))
    a('v_mov_b32 v1, s55\nglobal_store_dword v0, v1, s[60:61] offset:52')
    a('v_mov_b32 v1, s58\nglobal_store_dword v0, v1, s[60:61] offset:56')
    a('v_mov_b32 v1, s59\nglobal_store_dword v0, v1, s[60:61] offset:60')

def k2_table(tabs):
    b = b''
    for ta in range(2):
        for x in tabs['k2tw'][ta]:
            b += x.astype('<f4').tobytes()
    for mu in range(2):
        for ta in range(2):
            b += op_bytes(tabs['k2B2'][mu][ta])
    b += op_bytes(np.concatenate(tabs['k2B1'], axis=1))
    act = [l for l in range(64) if ((l & 15) >> 2) == (l >> 4)]
    for v in range(5):
        for w in range(4):
            for k in range(4):
                b += op_bytes(tabs['k2A'][v][w][k][act])
    return b

CA, CB1, CTW, CB2 = 128, 144, 148, 164
VA = 180

def paired(a, rd, mf, after, n=16, depth=7):
    for i in range(depth): rd(i)
    issued = depth
    for k in range(n // 2):
        a('s_waitcnt lgkmcnt(%d)' % (2 * (issued - 2 * k - 2)))
        mf(2 * k); mf(2 * k + 1)
        for _ in range(2):
            if issued < n:
                rd(issued); issued += 1
        for t in after.get(k, []): a(t)

def emit(a, seq):
    pos = {}; n = 0
    for it in seq:
        if isinstance(it, tuple) and it[0] == 'W':
            a('s_waitcnt lgkmcnt(%d)' % (n - pos[it[1]]))
            continue
        if isinstance(it, tuple):
            _, key, it = it
            pos[key] = n + 1
        if it.startswith('ds_'): n += 1
        a(it)

def zipm(*lists):
    tot = sum(len(l) for l in lists); idx = [0] * len(lists); o = []
    for k in range(tot):
        j = min((j for j in range(len(lists)) if idx[j] < len(lists[j])), key=lambda j: (idx[j] + 0.5) / len(lists[j]))
        o.append(lists[j][idx[j]]); idx[j] += 1
    return o

def mix(xs, ys, step, first=0):
    ys = list(ys); o = []
    for n, x in enumerate(xs):
        if n >= first and (n - first) % step == 0 and ys:
            o.append(ys.pop(0))
        o.append(x)
    return o + ys

def gen(opt):
    a = Asm()
    SO = dict(ds_lat=opt.get('lat', 64), ds_gap=opt.get('gap', 83) / 10., slack=opt.get('slack', -20))
    V = dict(b0=VA, b1=VA + 1, f=VA + 2, m=VA + 3, p=VA + 4, tg=VA + 5, t=VA + 6, u=VA + 7)
    a('''
%s:
s_bfe_u32 s5, s2, 0x10003
s_mul_i32 s7, s5, 40
s_load_dwordx2 s[8:9], s[0:1], s7
s_load_dwordx2 s[12:13], s[0:1], 96
s_load_dwordx2 s[44:45], s[0:1], 80
s_cmp_ge_u32 s2, %d
s_cbranch_scc1 L_END
''' % (KN, NWG))
    stamp(a, opt, 0)
    a('''
v_lshrrev_b32 v6, 6, v0
v_and_b32 v0, 63, v0
v_readfirstlane_b32 s4, v6
s_and_b32 s33, s2, 7
s_lshr_b32 s6, s2, 5
s_sub_u32 s3, 16, s33
s_cmp_eq_u32 s33, 0
s_cselect_b32 s3, 8, s3
s_bfe_u32 s36, s2, 0x10004
s_cselect_b32 s3, s3, s33
s_sub_u32 s32, 16, s3
s_and_b32 s32, s32, 15
v_lshrrev_b32 v6, 4, v0
v_bfe_u32 v7, v0, 2, 2
v_mul_u32_u24 v2, 14336, v6
v_mul_u32_u24 v7, 114688, v7
v_lshrrev_b32 v3, 3, v0
v_and_b32 v3, 2, v3
v_xor_b32 v4, v3, v0
v_and_b32 v4, 3, v4
v_lshlrev_b32 v4, 4, v4
v_add3_u32 v2, v2, v7, v4
s_lshl_b32 s22, s4, %d
s_add_u32 m0, s22, 2048
s_mul_i32 s20, s4, %d
s_mul_i32 s21, s6, 56
s_mul_i32 s24, s3, 896
s_mul_i32 s26, s32, 896
s_add_u32 s24, s24, s20
s_add_u32 s26, s26, s20
s_add_u32 s24, s24, s21
s_sub_u32 s26, s26, s21
s_add_u32 s25, s24, 56320
s_add_u32 s27, s26, %d
s_add_u32 s26, s26, %d
s_mov_b32 s10, %d
s_mov_b32 s11, 0x20000
s_mov_b32 s14, %d
s_mov_b32 s15, 0x20000
s_and_b32 s20, s2, 1
s_cmp_ge_u32 s2, 256
s_cselect_b32 s5, s20, s5
s_lshl_b32 s20, s5, 7
s_add_u32 s20, s20, %d
v_lshlrev_b32 v1, 4, v0
s_cmp_ge_u32 s2, 256
s_waitcnt lgkmcnt(0)
''' % ((13, 917504) if opt.get('pw2') else (12, 458752)).__add__((840 + 56320, 840, XB, WSB, CELL)))
    stamp(a, opt, 1)
    a('s_cbranch_scc1 L_SKIP1')
    XD = '''
buffer_load_dwordx4 v2, s[8:11], s26 offen lds
buffer_load_dwordx4 v2, s[8:11], s27 offen offset:1024 lds
s_mov_b32 m0, s22
buffer_load_dwordx4 v2, s[8:11], s24 offen lds
buffer_load_dwordx4 v2, s[8:11], s25 offen offset:1024 lds
'''.replace(' lds', ' %s lds' % opt.get('xf', ''))
    if opt.get('pw2'):
        a('s_cmp_ge_u32 s4, 2\ns_cbranch_scc1 L_PRE')
        a(XD)
        a('s_add_u32 m0, s22, 6144\ns_add_u32 s22, s22, 4096')
        for r in (24, 25, 26, 27): a('s_add_u32 s%d, s%d, 458752' % (r, r))
        a(XD)
        a('''s_branch L_PRE2
L_PRE:
v_lshrrev_b32 v5, 3, v0
v_lshlrev_b32 v5, 14, v5
v_and_b32 v7, 0x70, v1
v_add_u32 v5, v5, v7
s_lshl_b32 s21, s5, 20
s_lshl_b32 s23, s3, 7
s_add_u32 s21, s21, s23
s_lshl_b32 s23, s6, 11
s_add_u32 s21, s21, s23
s_and_b32 s23, s4, 1
s_lshl_b32 s23, s23, 19
s_add_u32 s24, s21, s23
s_add_u32 s25, s24, 0x20000
s_add_u32 s26, s24, 0x40000
s_add_u32 s27, s24, 0x60000''')
        for i in range(4): a('v_mov_b32 v%d, 2.0' % (48 + i))
        for r in (24, 25, 26, 27): a('buffer_store_dwordx4 v[48:51], v5, s[12:15], s%d offen sc1' % r)
        a('L_PRE2:')
    else:
        a(XD)
    a('''
L_SKIP1:
s_load_dwordx2 s[34:35], s[12:13], s20
s_lshl_b32 s22, s4, 12
s_mov_b32 s46, %d
s_mov_b32 s47, 0x20000
''' % OUTB)
    if opt.get('ah'):
        a('''s_getreg_b32 s20, hwreg(HW_REG_XCC_ID, 0, 3)
s_lshl_b32 s20, s20, 1
s_add_u32 s20, s20, s5
s_lshl_b32 s20, s20, 10
s_add_u32 s20, s20, %d
v_lshl_add_u32 v55, v1, 3, s20''' % HINT)
        if opt.get('aw') == 1:
            a('s_mov_b64 exec, 0xff\nglobal_load_dword v52, v55, s[12:13] sc1\ns_mov_b64 exec, -1')
    a('''
s_getpc_b64 s[16:17]
L_PC:
s_lshl_b32 s20, s6, 3
s_add_u32 s33, s33, s20
s_lshl_b32 s31, s36, 10
s_add_u32 s31, s31, s33
s_lshr_b32 s21, 128, s36
s_cmp_eq_u32 s33, 0
s_cselect_b32 s31, s21, s31
s_cselect_b32 s20, 2, 0
s_add_u32 s36, s20, s36
s_cmp_ge_u32 s2, 256
s_cselect_b32 s33, 0, s33
s_cselect_b32 s36, 4, s36
s_cselect_b32 s31, 1024, s31
s_add_u32 s16, s16, K2_TAB-L_PC
s_addc_u32 s17, s17, 0
s_add_u32 s40, s16, 8192
s_addc_u32 s41, s17, 0
s_lshl_b32 s20, s36, 12
s_lshl_b32 s21, s4, 10
s_add_u32 s20, s20, s21
s_add_u32 s20, s20, 7168
s_add_u32 s18, s16, s20
s_addc_u32 s19, s17, 0
s_lshl_b32 s21, s4, 11
s_add_u32 s16, s16, s21
s_addc_u32 s17, s17, 0
s_mul_i32 s53, s4, 3072
s_add_u32 s53, s53, %d
s_lshl_b32 s20, s5, 6
s_add_u32 s21, s33, s20
s_lshl_b32 s21, s21, 14
s_add_u32 s54, s22, s21
s_cmp_ge_u32 s2, 256
s_cbranch_scc1 L_CONS
''' % L_CONST)
    CD = ['s_mov_b32 m0, s53',
          'global_load_dwordx4 %s, v1, s[40:41]' % vr(CB1),
          'global_load_lds_dwordx4 v1, s[16:17]',
          'global_load_lds_dwordx4 v1, s[16:17] offset:1024',
          'global_load_lds_dwordx4 v1, s[18:19] offset:2048']
    a('''v_bfe_u32 v5, v0, 3, 2
v_lshlrev_b32 v5, 18, v5
v_and_b32 v7, 0x70, v1
v_add_u32 v5, v5, v7
s_lshl_b32 s21, s4, 2
s_sub_u32 s22, 14, s21
s_sub_u32 s21, 16, s21
s_cmp_eq_u32 s4, 0
s_cselect_b32 s21, 8, s21
s_lshl_b32 s21, s21, 14
s_lshl_b32 s22, s22, 14
v_lshrrev_b32 v7, 5, v0
v_mad_u32_u24 v53, v7, s22, v5
v_mad_u32_u24 v5, v7, s21, v5
s_lshl_b32 s20, s5, 20
s_lshl_b32 s21, s3, 7
s_add_u32 s20, s20, s21
s_lshl_b32 s21, s6, 11
s_add_u32 s20, s20, s21
s_lshl_b32 s21, s4, 15
s_add_u32 s28, s20, s21
s_add_u32 s29, s28, %d
''' % CH)
    if opt.get('pre'):
        for i in range(4): a('v_mov_b32 v%d, 2.0' % (48 + i))
        PRE = ['buffer_store_dwordx4 v[48:51], v5, s[12:15], s28 offen %s' % opt.get('prest', 'sc1'),
               'buffer_store_dwordx4 v[48:51], v53, s[12:15], s29 offen %s' % opt.get('prest', 'sc1')]
        if opt['pre'] == 1:
            for t in PRE: a(t)
            a('s_nop 1')
    pw = opt.get('pw', 0)
    PW = []
    if pw:
        if opt.get('pwh'):
            a('s_lshl_b32 s20, s36, 11\ns_add_u32 s37, s54, s20\nv_lshlrev_b32 v55, 5, v0')
        else:
            a('s_mov_b32 s37, s54\nv_lshlrev_b32 v55, 6, v0')
        PW = ['buffer_load_dword v48, v55, s[12:15], s37 offen sc1']
    if opt.get('cde'):
        for t in CD: a(t)
    if pw == 2:
        for t in PW: a(t)
    a('''
s_lshl_b32 s20, s4, 1
v_bfe_u32 v32, v0, 1, 1
v_add_u32 v32, s20, v32
v_and_b32 v33, 1, v0
v_cmp_eq_u32 vcc, 0, v32
v_lshlrev_b32 v34, 3, v33
v_lshlrev_b32 v35, 2, v33
v_cndmask_b32 v32, v32, v34, vcc
v_cndmask_b32 v35, v35, 0, vcc
v_and_b32 v34, 1, v32
v_cvt_f32_u32 v32, v32
v_cvt_f32_u32 v35, v35
v_mul_u32_u24 v34, 0x8000, v34
v_mul_f32 v32, 0x3d800000, v32
v_mul_f32 v35, 0x3d800000, v35
v_lshl_or_b32 v34, v34, 16, v34
''')
    for i in range(8, 12): a('v_mov_b32 v%d, 0' % i)
    a('s_mov_b32 exec_lo, 0x%x\ns_mov_b32 exec_hi, 0x%x' % (EM_LO, EM_HI))
    for p in range(4):
        a('v_cos_f32 v36, v35\nv_add_f32 v35, v35, v32\nv_cos_f32 v37, v35')
        a('v_add_f32 v35, v35, v32' if p < 3 else 's_nop 0')
        a('v_cvt_pk_bf16_f32 v%d, v36, v37' % (8 + p))
    a('s_mov_b64 exec, -1')
    for p in range(4): a('v_xor_b32 v%d, v34, v%d' % (12 + p, 8 + p))
    a('''
v_lshlrev_b32 v38, 3, v0
v_and_b32 v38, 0x30, v38
v_and_b32 v39, 0x30, v0
v_add_u32 v40, s32, v39
v_add_u32 v39, s3, v39
v_and_b32 v47, 8, v0
v_cmp_ne_u32 s[56:57], 0, v47
v_cvt_f32_u32 v39, v39
v_cvt_f32_u32 v40, v40
v_cvt_f32_u32 v48, v33
v_sub_u32 v45, -16, v38
v_mul_f32 v39, 0x3a000000, v39
v_mul_f32 v40, 0x3a000000, v40
v_cndmask_b32 v45, v38, v45, s[56:57]
v_mul_f32 v49, 0x3e800000, v48
v_mul_f32 v50, 0.5, v48
v_add_u32 v45, s20, v45
v_add_f32 v43, v49, v50
v_add_u32 v46, 1, v45
v_cndmask_b32 v43, v49, v43, s[56:57]
v_add_f32 v44, v43, v50
v_mov_b32 v41, v43
v_mov_b32 v42, v44
s_cmp_lg_u32 s4, 0
s_cbranch_scc1 L_REG
v_cvt_f32_u32 v51, v6
v_add_u32 v45, v47, v38
v_and_b32 v56, 14, v0
v_add_f32 v41, 0x3e800000, v49
v_cmp_eq_u32 vcc, 0, v56
v_mul_f32 v51, v51, v50
v_cndmask_b32 v41, v49, v41, s[56:57]
s_cmp_eq_u32 s3, 0
s_cselect_b64 s[58:59], vcc, 0
v_cndmask_b32 v41, v41, v51, vcc
v_add_f32 v42, v41, v50
v_cndmask_b32 v42, v42, v41, s[58:59]
L_REG:
v_cvt_f32_i32 v45, v45
v_cvt_f32_i32 v46, v46
''')
    for al in range(2):
        a('v_mul_f32 v47, 0x3d000000, v%d' % (45 + al))
        for win in range(2):
            a('v_fma_f32 v50, v%d, v%d, v%d' % (45 + al, 39 + win, 41 + 2 * al + win))
            a('v_cos_f32 v36, v50\nv_sin_f32 v37, v50\nv_add_f32 v50, v50, v47')
            a('v_cvt_pk_bf16_f32 v%d, v36, v37' % (16 + 4 * al + 2 * win))
            a('v_cos_f32 v36, v50\nv_sin_f32 v37, v50\ns_nop 0')
            a('v_cvt_pk_bf16_f32 v%d, v36, v37' % (17 + 4 * al + 2 * win))
    a('''
s_cmp_lg_u32 s4, 0
s_cbranch_scc1 L_REG2
v_mov_b32 v36, 0xffff
v_not_b32 v37, v36
v_cndmask_b32 v36, v36, v37, s[56:57]
''')
    for p in range(4): a('v_and_b32 v%d, v36, v%d' % (16 + p, 16 + p))
    a('L_REG2:')
    a('''
v_and_b32 v36, 15, v0
v_lshl_add_u32 v37, v6, 2, v36
v_sub_u32 v38, 28, v37
v_sub_u32 v37, 12, v37
v_mov_b32 v41, 0
v_mov_b32 v42, 0x3f80
v_cmp_gt_u32 vcc, 4, v38
v_lshlrev_b32 v38, 4, v38
v_mov_b32 v30, 0
v_cndmask_b32 v40, 0, v42, vcc
v_cmp_gt_u32 vcc, 4, v37
v_lshlrev_b64 v[24:25], v38, v[40:41]
v_lshlrev_b32 v37, 4, v37
v_cndmask_b32 v40, 0, v42, vcc
s_cmp_eq_u32 s6, 0
s_cselect_b32 s21, 0, 0x3f80
v_lshlrev_b64 v[26:27], v37, v[40:41]
v_mov_b32 v31, 0
v_mov_b32 v28, v26
v_mov_b32 v29, v27
v_writelane_b32 v26, s21, 48
v_writelane_b32 v28, 0, 12
''')
    a('''
v_lshlrev_b32 v3, 4, v3
v_and_b32 v4, 3, v0
v_lshl_add_u32 v3, v4, 3, v3
v_and_b32 v7, 0x3c0, v1
v_add_u32 v3, v3, v7
s_mul_i32 s20, s4, 2304
s_add_u32 s20, s20, %d
v_lshrrev_b32 v2, 2, v0
v_mul_u32_u24 v2, 72, v2
v_lshl_add_u32 v2, v4, 4, v2
v_add_u32 v2, s20, v2
v_xor_b32 v4, 32, v3
s_lshl_b32 s21, s6, 4
s_and_b32 s21, s21, 32
s_add_u32 s22, s20, s21
s_xor_b32 s21, s21, 32
s_add_u32 s23, s20, s21
v_mul_u32_u24 v7, 72, v36
v_lshl_add_u32 v7, v6, 3, v7
v_add_u32 v6, s22, v7
v_add_u32 v7, s23, v7
s_cmp_eq_u32 s6, 7
s_cselect_b32 s30, 0xffff, 0
''' % L_STG)
    NONCE = '''
s_waitcnt lgkmcnt(0)
s_or_b32 s34, s34, 0x40000000
s_or_b32 s35, s35, 0x40004000
s_add_u32 s34, s34, 0x2b150000
s_add_u32 s35, s35, 0x1e3739b9
s_and_b32 s34, s34, 0xbfff0000
s_and_b32 s35, s35, 0xbfffbfff
'''
    a(NONCE)
    if opt.get('pre', 0) >= 2:
        for i in range(4): a('v_mov_b32 v%d, 2.0' % (48 + i))
    a('s_mov_b32 s56, 0\ns_mov_b32 s57, 0xffff0000\nv_mov_b32 v54, s34')
    if opt.get('pw2'): a('s_cmp_ge_u32 s4, 2\ns_cbranch_scc1 L_NOXW')
    a('s_waitcnt vmcnt(%d)\nL_NOXW:' % (2 if opt.get('sp') else 0))
    stamp(a, opt, 2)
    if opt.get('stamp') and not opt.get('prof'): a('s_waitcnt lgkmcnt(0)')
    if opt.get('pre') == 3:
        for t in PRE: a(t)
    a('s_barrier')
    pstamp(a, opt, 0)
    if opt.get('pre') == 2:
        pass
    CDL = (PRE if opt.get('pre') == 2 else []) + ([] if opt.get('cde') else CD) + (PW if pw == 1 else [])
    order = [(win, kap, nt, bp) for win in (1, 0) for kap in range(2) for nt in range(2) for bp in range(2)]
    ACC = lambda win, nt, bp: 32 + 4 * (bp + 2 * nt) if win else 112 + 4 * (bp + 2 * nt)
    OPR = lambda i: 56 + 4 * (i % 14) if i < 14 else 56 + 4 * (i - 14)
    def rd(i):
        win, kap, nt, bp = order[i]
        t = ['ds_read_b64_tr_b16 %s, v%d offset:%d' % (vr(OPR(i) + 2 * hh, 2), 3 + nt, (2 * kap + hh) * 4096 + win * 2048 + bp * 1024) for hh in range(2)]
        return [t[0], ('T', i, t[1])]
    def mf(i):
        win, kap, nt, bp = order[i]
        A = ACC(win, nt, bp)
        return '%s %s, %s, %s, %s' % (M32, vr(A), vr(8 + 4 * kap), vr(OPR(i)), vr(A) if kap else '0')
    A2 = lambda al, win, nt: 64 + 2 * (al + 2 * nt) if win else 32 + 2 * (al + 2 * nt)
    def cv(win, nt):
        return ['v_cvt_pk_bf16_f32 v%d, v%d, v%d' % (A2(al, win, nt) + p, ACC(win, nt, p) + 2 * al, ACC(win, nt, p) + 2 * al + 1) for al in range(2) for p in range(2)]
    D2M = lambda al, nt: 32 + 4 * (nt + 2 * al)
    B2 = lambda al: 72 + 4 * al
    D2 = lambda al, nt: (188 if opt.get('sp') else 80) + 4 * (nt + 2 * al)
    def m2m(al, nt): return '%s %s, %s, %s, 0' % (M16, vr(D2M(al, nt)), vr(A2(al, 1, nt), 2), vr(18 + 4 * al, 2))
    def cvm(al): return ['v_cvt_pk_bf16_f32 v%d, v%d, v%d' % (B2(al) + 2 * nt + h, D2M(al, nt) + 2 * h, D2M(al, nt) + 2 * h + 1) for nt in range(2) for h in range(2)]
    def mp(al, nt): return '%s %s, %s, %s, 0' % (M32, vr(D2(al, nt)), vr(24 + 4 * nt), vr(B2(al)))
    def m2(al, nt): return '%s %s, %s, %s, %s' % (M16, vr(D2(al, nt)), vr(A2(al, 0, nt), 2), vr(16 + 4 * al, 2), vr(D2(al, nt)))
    PK = lambda al, nt: 96 + 2 * (nt + 2 * al)
    def pack(al, nt): return ['v_cvt_pk_bf16_f32 v%d, v%d, v%d' % (PK(al, nt) + h, D2(al, nt) + 2 * h, D2(al, nt) + 2 * h + 1) for h in range(2)]
    def wr(al, nt): return 'ds_write_b64 v%d, %s offset:%d' % (6 + nt, vr(PK(al, nt), 2), 1152 * al)
    R = lambda *ii: [x[2] if isinstance(x, tuple) else x for i in ii for x in rd(i)]
    seq = R(*range(14)) + [mf(i) for i in range(8)] + R(14, 15) + CDL + cv(1, 0) + cv(1, 1) + [m2m(0, 0), m2m(0, 1), m2m(1, 0), m2m(1, 1)]
    seq += [mf(i) for i in range(8, 12)] + cvm(0) + cvm(1) + [mp(0, 0), mp(0, 1), mp(1, 0), mp(1, 1)] + [mf(i) for i in range(12, 16)]
    seq += cv(0, 0) + cv(0, 1) + [m2(0, 0), m2(1, 0), m2(0, 1), m2(1, 1)]
    seq += pack(0, 0) + pack(1, 0) + [wr(0, 0), wr(1, 0)] + pack(0, 1) + pack(1, 1)
    bo = cv(1, 0) + cv(1, 1) + [m2m(0, 0), m2m(0, 1), m2m(1, 0), m2m(1, 1)] + [mf(i) for i in range(8)] if not opt.get('nob') else []
    if opt.get('sp'):
        s1 = R(*range(8)) + [mf(i) for i in range(8)] + cv(1, 0) + cv(1, 1) + [m2m(0, 0), m2m(0, 1), m2m(1, 0), m2m(1, 1)]
        s1b = cvm(0) + cvm(1) + [mp(0, 0), mp(0, 1), mp(1, 0), mp(1, 1)]
        if opt['sp'] == 1: s1 += s1b; s1b = []
        s2 = R(*range(8, 16)) + CDL + s1b + [mf(i) for i in range(8, 16)] + cv(0, 0) + cv(0, 1) + [m2(0, 0), m2(1, 0), m2(0, 1), m2(1, 1)]
        s2 += pack(0, 0) + pack(1, 0) + [wr(0, 0), wr(1, 0)] + pack(0, 1) + pack(1, 1)
        for t in schedule(s1, verbose=opt.get('v'), **SO): a(t)
        a('s_waitcnt vmcnt(0)\ns_barrier')
        for t in schedule(s2, boost=CDL, pin=[(CDL[i], R(*range(8, 16))[min(15, 7 + 2 * i)]) for i in range(len(CDL))], verbose=opt.get('v'), **SO): a(t)
    else:
        for t in schedule(seq, boost=bo + CDL, pin=[(CDL[i], R(*range(8))[min(15, opt.get('p0', 7) + 2 * i)]) for i in range(len(CDL))], verbose=opt.get('v'), **SO): a(t)
    pstamp(a, opt, 1)
    a('s_mov_b64 exec, s[56:57]')
    for al in range(2):
        a('v_and_or_b32 v%d, v%d, s30, v54\nv_mov_b32 v%d, s35' % (PK(al, 1), PK(al, 1), PK(al, 1) + 1))
    a('s_mov_b64 exec, -1')
    for al in range(2):
        a(wr(al, 1))
        a('ds_read2_b64 %s, v2 offset0:%d offset1:%d' % (vr(104 + 4 * al), 144 * al, 144 * al + 1))
    pstamp(a, opt, 2)
    if opt.get('prof'): a('s_waitcnt lgkmcnt(0)')
    a('s_waitcnt lgkmcnt(2)' + ('' if opt.get('cde') or opt.get('rs') or opt.get('nv') else ' vmcnt(0)'))
    if opt.get('pw2') or opt.get('bb'): a('s_barrier')
    a('buffer_store_dwordx4 v[104:107], v5, s[12:15], s28 offen %s' % opt.get('k1st', 'sc1'))
    a('s_waitcnt lgkmcnt(0)')
    a('buffer_store_dwordx4 v[108:111], v53, s[12:15], s29 offen %s' % opt.get('k1st', 'sc1'))
    stamp(a, opt, 3)
    pstamp(a, opt, 3)
    if opt.get('xh'):
        a('''s_lshl_b32 s20, s4, 8
s_add_u32 s20, s20, s2
s_cmp_lt_u32 s20, 1008
s_cbranch_scc1 L_P2
s_lshl_b32 s20, s2, 7
s_and_b32 s20, s20, 0x780
s_add_u32 s20, s20, %d
v_lshl_add_u32 v8, v1, 7, s20
v_mov_b32 v9, s35
s_mov_b64 exec, %d
global_store_dword v8, v9, s[12:13] sc1
s_mov_b64 exec, -1
%s
s_branch %s''' % (HINT, 0xff if opt.get('ah') else 1, '' if opt.get('nv') else 's_waitcnt vmcnt(1)' if opt.get('pw2') or opt.get('bb') else 's_barrier\ns_waitcnt vmcnt(1)', 'L_P2' if opt.get('nv') else 'L_P3'))
    else:
        a('s_branch L_P2')
    a('L_CONS:')
    if opt.get('aw') == 2:
        a('''s_lshl_b32 s20, s5, 10
s_add_u32 s20, s20, %d
v_lshrrev_b32 v8, 3, v0
v_lshlrev_b32 v8, 11, v8
v_and_b32 v9, 7, v0
v_lshl_add_u32 v8, v9, 7, v8
v_add_u32 v8, s20, v8
global_load_dword v9, v8, s[12:13] sc1''' % HINT)
    a(NONCE)
    for t in CD: a(t)
    a('L_P2:\ns_waitcnt vmcnt(0)\ns_barrier' if opt.get('nv') else 'L_P2:' if opt.get('rs') else 's_waitcnt vmcnt(0)\ns_barrier\nL_P2:' if opt.get('pw2') or opt.get('bb') else 's_waitcnt vmcnt(0)\nL_P2:\ns_barrier')
    if opt.get('pa') and not opt.get('nv'): a('s_waitcnt vmcnt(0)')
    a('L_P3:')
    if opt.get('ah'):
        a('s_mov_b64 exec, 0xff\nglobal_load_dword v9, v55, s[12:13] sc1\ns_mov_b64 exec, -1')
    DB = L_DAT if opt.get('rs') else 0
    a('''
v_lshrrev_b32 v6, 4, v0
v_lshlrev_b32 v{b0}, 12, v6
v_and_b32 v7, 0xc0, v1
v_add_u32 v{b0}, v{b0}, v7
v_and_b32 v6, 1, v6
v_lshl_add_u32 v{b0}, v6, 5, v{b0}
v_and_b32 v6, 3, v0
v_lshl_add_u32 v{b0}, v6, 3, v{b0}
v_add_u32 v{b0}, {db}, v{b0}
v_xor_b32 v{b1}, 32, v{b0}
v_and_b32 v{f}, 31, v0
v_lshrrev_b32 v6, 5, v0
v_lshl_add_u32 v6, v{f}, 1, v6
v_add_u32 v7, 1, v6
v_cmp_ne_u32 vcc, 56, v7
v_mov_b32 v{t}, 0x40000000
v_lshlrev_b32 v6, 4, v6
v_cndmask_b32 v7, 0, v7, vcc
v_cmp_gt_u32 vcc, 28, v{f}
v_sub_u32 v{m}, 880, v6
v_and_b32 v{u}, 1, v7
v_cndmask_b32 v{f}, v{t}, v6, vcc
v_cndmask_b32 v{m}, v{t}, v{m}, vcc
v_lshlrev_b32 v7, 1, v7
v_and_b32 v7, 0x7c, v7
v_lshl_add_u32 v{p}, v{u}, 7, v7
s_lshl_b32 s22, s4, 12
s_add_u32 s22, s22, {db}
s_and_b32 s20, s4, 1
s_lshl_b32 s20, s20, 5
s_sub_u32 s20, 56, s20
s_add_u32 s20, s20, s22
v_and_b32 v{tg}, 0x3c0, v1
v_add_u32 v{tg}, s20, v{tg}
v_lshl_add_u32 v{u}, v1, 2, s20
v_and_b32 v6, 0xf0, v1
v_add_u32 v6, s53, v6
v_add_u32 v7, {cc}, v1
'''.format(cc=L_CONST, db=DB, **V))
    for i in range(16): a('v_mov_b32 v%d, 0' % (CA + i))
    a('''
s_lshl_b32 s21, s4, 8
s_add_u32 s48, s21, s31
s_add_u32 s49, s48, 128
s_cmp_eq_u32 s36, 2
s_cselect_b32 s21, 1023, -1
s_and_b32 s49, s49, s21
s_sub_u32 s50, 2048, s48
s_sub_u32 s51, 2048, s49
s_and_b32 s51, s51, 2047
s_mul_i32 s20, s5, 896
s_mul_i32 s48, s48, 1792
s_mul_i32 s49, s49, 1792
s_mul_i32 s50, s50, 1792
s_mul_i32 s51, s51, 1792
s_add_u32 s48, s48, s20
s_add_u32 s49, s49, s20
s_add_u32 s50, s50, s20
s_add_u32 s51, s51, s20
s_mov_b32 s52, 0xffff
s_mov_b32 s55, 0x40000
s_mov_b32 m0, s22
''')
    def const_reads():
        a('s_mov_b32 exec_lo, 0x%x\ns_mov_b32 exec_hi, 0x%x' % (EM_LO, EM_HI))
        for k in range(4): a('ds_read_b128 %s, v6 offset:%d' % (vr(CA + 4 * k), 2048 + 256 * k))
        a('s_mov_b64 exec, -1')
        for i in range(8): a('ds_read_b128 %s, v7 offset:%d' % (vr(CTW + 4 * i), (i >> 1) * 3072 + (i & 1) * 1024))
    if not opt.get('rs'): const_reads()
    ld = opt.get('k2ld', 'sc1')
    sent = opt.get('sent', 0)
    if not opt.get('early') and sent != 2 and not opt.get('pa'): a('s_waitcnt vmcnt(0)')
    stamp(a, opt, 4)
    if opt.get('slp'): a('s_sleep %d' % opt['slp'])
    if opt.get('ah'):
        a('''s_mov_b64 exec, 0xff
L_SENT:
s_waitcnt vmcnt(0)
v_cmp_ne_u32 vcc, s35, v9
s_and_b64 exec, exec, vcc
s_cbranch_scc0 L_POLL0
global_load_dword v9, v55, s[12:13] sc1
s_sub_u32 s55, s55, 1
s_cbranch_scc0 L_SENT''')
    elif opt.get('xh'):
        a('''s_cmp_lt_u32 s2, 256
s_cbranch_scc1 L_POLL0
s_lshl_b32 s20, s5, 10
s_add_u32 s20, s20, %d
v_lshl_add_u32 v8, v1, 3, s20
s_mov_b64 exec, 0xff
L_SENT:
global_load_dword v9, v8, s[12:13] sc1
s_waitcnt vmcnt(0)
v_cmp_ne_u32 vcc, s35, v9
s_and_b64 exec, exec, vcc
s_cbranch_scc0 L_POLL0
s_sub_u32 s55, s55, 1
s_cbranch_scc0 L_SENT''' % HINT)
    else:
        if sent:
            a('s_mov_b32 exec_lo, 0x%x\ns_mov_b32 exec_hi, 0x%x' % ((opt.get('sm', 0x0f0f0f0f),) * 2))
        else:
            a('s_cmp_lt_u32 s2, 256\ns_cbranch_scc1 L_POLL0\ns_mov_b64 exec, 15')
        a('''
L_SENT:
buffer_load_dwordx4 v1, s[12:15], s54 offen {ld} lds
s_waitcnt vmcnt(0)
ds_read_b64 v[8:9], v{tg}
s_waitcnt lgkmcnt(0)
v_cmp_ne_u32 vcc, s35, v9
s_cbranch_vccz L_POLL0
s_sub_u32 s55, s55, 1
s_cbranch_scc0 L_SENT'''.format(ld=ld, **V))
    a('''
L_POLL0:
s_mov_b64 exec, -1
'''.format(ld=ld, **V))
    for k in range(4): a('buffer_load_dwordx4 v1, s[12:15], s54 offen offset:%d %s lds' % (1024 * k, ld))
    if opt.get('rs'):
        a('s_barrier')
        const_reads()
    a('s_branch L_CHK\nL_POLL:')
    for k in range(4):
        a('s_mov_b64 exec, s[%d:%d]\ns_cbranch_execz L_NO%d' % (56 + 2 * k, 57 + 2 * k, k))
        a('buffer_load_dwordx4 v1, s[12:15], s54 offen offset:%d %s lds' % (1024 * k, ld))
        a('L_NO%d:' % k)
    a('s_mov_b64 exec, -1\nL_CHK:\ns_waitcnt vmcnt(0)')
    if not opt.get('slowchk'):
        a('''ds_read_b64 v[8:9], v{u}
s_waitcnt lgkmcnt(0)
v_and_b32 v8, 0xffff0000, v8
v_cmp_ne_u64 vcc, s[34:35], v[8:9]
s_cbranch_vccz L_GO'''.format(**V))
    for k in range(4): a('ds_read_b64 %s, v%d offset:%d' % (vr(8 + 2 * k, 2), V['tg'], 1024 * k))
    for k in range(4):
        a('s_waitcnt lgkmcnt(%d)' % (3 - k))
        a('v_and_b32 v%d, 0xffff0000, v%d' % (8 + 2 * k, 8 + 2 * k))
        a('v_cmp_ne_u64 s[%d:%d], s[34:35], %s' % (56 + 2 * k, 57 + 2 * k, vr(8 + 2 * k, 2)))
    a('''
s_or_b64 s[64:65], s[56:57], s[58:59]
s_or_b64 s[66:67], s[60:61], s[62:63]
s_or_b64 s[64:65], s[64:65], s[66:67]
s_cbranch_scc0 L_GO
s_sub_u32 s55, s55, 1
s_cbranch_scc0 L_POLL
L_GO:
''')
    stamp(a, opt, 5)
    if opt.get('stamp') and not opt.get('prof'): a('s_waitcnt lgkmcnt(0)')
    a('s_cmp_ge_u32 s2, 256\ns_barrier\ns_cbranch_scc1 L_ONE')
    pstamp(a, opt, 4)
    order = [(ta, kap, sub) for ta in range(2) for kap in range(4) for sub in range(2)]
    DA = lambda ta, sub: 8 + 4 * (sub + 2 * ta)
    OPR = lambda i: 24 + 4 * i
    def rd(i):
        ta, kap, sub = order[i]
        t = ['ds_read_b64_tr_b16 %s, v%d offset:%d' % (vr(OPR(i) + 2 * hh, 2), V['b0'] + ta, (4 * kap + 2 * hh) * 128 + sub * 2048) for hh in range(2)]
        return [t[0], ('T', i, t[1])]
    def mf(i):
        ta, kap, sub = order[i]
        return '%s %s, %s, %s, %s' % (M32, vr(DA(ta, sub)), vr(CA + 4 * kap), vr(OPR(i)), vr(DA(ta, sub)) if kap else '0')
    A1 = lambda tl, ta: 88 + 2 * (tl + 2 * ta)
    def cv(ta):
        return ['v_cvt_pk_bf16_f32 v%d, v%d, v%d' % (A1(tl, ta) + p, DA(ta, p) + 2 * tl, DA(ta, p) + 2 * tl + 1) for tl in range(2) for p in range(2)]
    D1 = lambda tl, ta, c: 96 + 4 * (c + 2 * tl) if ta == 0 else 112 + 4 * (c + 2 * tl)
    def b1(tl, ta, c):
        return '%s %s, %s, %s, 0' % (M16, vr(D1(tl, ta, c)), vr(A1(tl, ta), 2), vr(CB1 + 2 * c, 2))
    HT = lambda tl, ta: 24 + 8 * (tl + 2 * ta)
    HP = lambda tl, ta: 8 + 4 * tl if ta == 0 else 56 + 4 * tl
    def tw(tl, ta):
        r, i, h, co, si = D1(tl, ta, 0), D1(tl, ta, 1), HT(tl, ta), CTW + 8 * ta, CTW + 4 + 8 * ta
        o = []
        for q in range(4):
            o.append('v_mul_f32 v%d, v%d, v%d' % (h + q, co + q, r + q))
        for q in range(4):
            o.append('v_mul_f32 v%d, v%d, v%d' % (h + 4 + q, co + q, i + q))
        for q in range(4):
            o.append('v_fmac_f32 v%d, v%d, v%d' % (h + q, si + q, i + q))
            o.append('v_fma_f32 v%d, -v%d, v%d, v%d' % (h + 4 + q, si + q, r + q, h + 4 + q))
        for q in range(4):
            o.append('v_cvt_pk_bf16_f32 v%d, v%d, v%d' % (HP(tl, ta) + q, h + 2 * q, h + 2 * q + 1))
        return o
    D2 = lambda tl, mu: 64 + 4 * (mu + 2 * tl)
    def b2(tl, mu, ta):
        return '%s %s, %s, %s, %s' % (M32, vr(D2(tl, mu)), vr(HP(tl, ta)), vr(CB2 + 4 * (2 * mu + ta)), vr(D2(tl, mu)) if ta else '0')
    F = lambda tl: 80 + 4 * tl
    M = lambda tl: 96 + 4 * tl
    st = opt.get('k2st', 'sc1')
    def fin(tl):
        o = []
        for mu in range(2):
            for h in range(2):
                o.append('v_cvt_pk_bf16_f32 v%d, v%d, v%d' % (F(tl) + 2 * mu + h, D2(tl, mu) + 2 * h, D2(tl, mu) + 2 * h + 1))
        return o
    def fin2(tl):
        return ['v_permlane16_swap_b32 v%d, v%d' % (F(tl), F(tl) + 2),
                'v_permlane16_swap_b32 v%d, v%d' % (F(tl) + 1, F(tl) + 3),
                'ds_bpermute_b32 v%d, v%d, v%d' % (2 + tl, V['p'], F(tl)),
                'buffer_store_dwordx4 %s, v%d, s[44:47], s%d offen %s' % (vr(F(tl)), V['f'], 48 + tl, st)]
    def mir(tl):
        return ['v_bfi_b32 v%d, s52, v%d, v%d' % (M(tl) + q, F(tl) + 4 - q, F(tl) + 3 - q) for q in (1, 2, 3)]
    def mir2(tl):
        return ['v_bfi_b32 v%d, s52, v%d, v%d' % (M(tl), 2 + tl, F(tl) + 3),
                'buffer_store_dwordx4 %s, v%d, s[44:47], s%d offen %s' % (vr(M(tl)), V['m'], 50 + tl, st)]
    t00, t10, t01, t11 = tw(0, 0), tw(1, 0), tw(0, 1), tw(1, 1)
    seq = R(*range(16)) + [mf(i) for i in range(8)] + cv(0) + [b1(0, 0, 0), b1(0, 0, 1), b1(1, 0, 0), b1(1, 0, 1)]
    seq += [mf(i) for i in range(8, 16)] + t00 + t10 + cv(1) + [b1(0, 1, 0), b1(0, 1, 1), b1(1, 1, 0), b1(1, 1, 1)]
    seq += [b2(0, 0, 0), b2(0, 1, 0), b2(1, 0, 0), b2(1, 1, 0)] + t01 + [b2(0, 0, 1), b2(0, 1, 1)] + t11 + [b2(1, 0, 1), b2(1, 1, 1)]
    seq += fin(0) + fin2(0) + mir(0) + mir2(0) + fin(1) + fin2(1) + mir(1) + mir2(1)
    bo = cv(0) + [b1(0, 0, 0), b1(0, 0, 1), b1(1, 0, 0), b1(1, 0, 1)] + [mf(i) for i in range(8)] if not opt.get('nob') else []
    for t in schedule(seq, boost=bo, verbose=opt.get('v'), **SO): a(t)
    a('s_branch L_FIN\nL_ONE:\ns_cmp_lg_u32 s4, 0\ns_cbranch_scc1 L_FIN')
    seq = R(*range(16)) + [mf(i) for i in range(8)] + cv(0)[:2] + [b1(0, 0, 0), b1(0, 0, 1)]
    seq += [mf(i) for i in range(8, 16)] + t00 + cv(1)[:2] + [b1(0, 1, 0), b1(0, 1, 1), b2(0, 0, 0), b2(0, 1, 0)] + t01 + [b2(0, 0, 1), b2(0, 1, 1)]
    seq += fin(0) + fin2(0)[:2] + fin2(0)[3:]
    for t in schedule(seq, boost=bo, verbose=opt.get('v'), **SO): a(t)
    a('''
s_lshl_b32 s20, s5, 7
s_add_u32 s20, s20, %d
v_mov_b32 v4, s20
v_mov_b32 v6, s34
v_mov_b32 v7, s35
s_mov_b64 exec, 1
global_store_dwordx2 v4, v[6:7], s[12:13]
s_mov_b64 exec, -1
''' % CELL)
    a('L_FIN:')
    stamp_out(a, opt, 8)
    a('L_END:\ns_endpgm')
    return a.finish(opt.get('v'))

def build(opt):
    tabs = d3.build_tables()
    hdr = open('cdna_kernels/%s.s.ref' % NAME).read().split('; Override launch')[0]
    s = hdr
    if opt.get('diag'):
        s += '; @launch kernel=%s grid=(%d,1,1) block=(256,1,1) lds=%d\n' % (KN, NWG, LDS + (16384 if opt.get('rs') else 0))
        s += '; @launch kernel=k3_kernel grid=(1,1,1) block=(64,1,1) lds=0\n'
    else:
        s += '; @launch grid=(%d,1,1) block=(256,1,1) lds=%d\n' % (NWG, LDS + (16384 if opt.get('rs') else 0))
    s += '.amdgcn_target "amdgcn-amd-amdhsa--gfx950"\n.text\n'
    s += '.globl %s\n.p2align 8\n.type %s,@function\n' % (KN, KN) + gen(opt)
    if opt.get('diag'):
        s += '.globl k3_kernel\n.p2align 8\n.type k3_kernel,@function\n' + gen_k3(opt, [opt.get('nw', 1024)])
    s += '.p2align 8\n.type K2_TAB,@object\nK2_TAB:\n' + emit_data(k2_table(tabs))
    s += '.section .rodata,"a"\n' + kd(KN, 204 if opt.get('sp') else 188, 96)
    if opt.get('diag'):
        s += kd('k3_kernel', 8, 32)
    return s

if __name__ == '__main__':
    out = sys.argv[1]
    opt = {}
    for kv in sys.argv[2:]:
        k, _, v = kv.partition('=')
        opt[k] = int(v) if v.lstrip('-').isdigit() else (v.replace('+', ' ') if v else 1)
    s = build(opt)
    open(out, 'w').write(s)
    print(out, len(s), 'bytes')
```

```python
import numpy as np
from design import bf16_bits, bf16_val, rb, cs, mfma, swap16, tr_read, k1_stage1, k2_tw, L, LN, LG
S, D = 2048, 448
CH = 16384

def mfma16(A, B, C=None):
    Am = np.zeros((16, 16)); Bm = np.zeros((16, 16))
    for l in range(64):
        Am[l & 15, 4 * (l >> 4):4 * (l >> 4) + 4] = A[l]
        Bm[4 * (l >> 4):4 * (l >> 4) + 4, l & 15] = B[l]
    Dm = Am @ Bm
    Dl = np.zeros((64, 4))
    for l in range(64):
        Dl[l] = Dm[4 * (l >> 4):4 * (l >> 4) + 4, l & 15]
    if C is not None:
        Dl = Dl + C
    return Dl.astype(np.float32)

def t1_of(sig, bi):
    bl = bi & 3
    if bi < 4:
        return sig + 16 * bl
    return 16 * bl + (8 if sig == 0 else 16 - sig)

def k1_stage2(cls, sig, win):
    T = np.zeros((64, 4))
    for l in range(64):
        n, g = l & 15, l >> 4
        bi, c2 = n >> 1, n & 1
        bl = bi & 3
        for i in range(4):
            bp, c = i >> 1, i & 1
            b = 4 * bp + g
            sarg = 16 * b + cls
            if sig >= 1:
                t = sig + 16 * bl if bi < 4 else sig - 16 * (bl + 1)
                co, si = cs(t * sarg, 2048)
                if c2 == 0:
                    v = co if c == 0 else si
                else:
                    v = -si if c == 0 else co
                    if t < 0: v = -v
                    if win: v = -v
            elif bi < 4:
                if c == 1:
                    v = 0.0
                elif bi == 0:
                    v = 1.0 if c2 == 0 else (-1.0) ** b * (-1.0 if (win and cls != 0) else 1.0)
                else:
                    co, si = cs(16 * bl * sarg, 2048)
                    v = co if c2 == 0 else (-si if not win else si)
            else:
                if c == 0:
                    v = 0.0
                else:
                    co, si = cs((8 + 16 * bl) * sarg, 2048)
                    v = co if c2 == 0 else (-si if not win else si)
            T[l, i] = v
    return T

def k1_perm(jp, nu):
    T = np.zeros((64, 8))
    for l in range(64):
        m, g = l & 15, l >> 4
        k = 16 * nu + m
        if k > 28 or (k == 28 and not jp & 1) or (k == 0 and not jp & 1):
            continue
        for i in range(8):
            k2 = 16 * (i >> 2) + 4 * g + (i & 3)
            if k2 == 28 - k:
                T[l, i] = 1.0
    return T

def slot_t2(var, w, tl):
    q = 2 * w + tl
    if var < 2: return 8 * var + q
    if var == 2: return (q + 1) & 7
    if var == 3: return q
    return 8 if q == 0 else None

def k2_stageA(var, w, kap):
    T = np.zeros((64, 8))
    for l in range(64):
        m, g = l & 15, l >> 4
        if (m >> 2) != g:
            continue
        tl, c1 = (m & 3) >> 1, m & 1
        t2 = slot_t2(var, w, tl)
        if t2 is None:
            continue
        for i in range(8):
            cl, c = 4 * kap + (i >> 1), i & 1
            if var < 2:
                co, si = cs(t2 * cl, 16)
                v = (co if c == 0 else si) if c1 == 0 else (-si if c == 0 else co)
            elif var != 3:
                co, si = cs(t2 * cl, 16)
                v = 0.0 if c == 1 else (co if c1 == 0 else -si)
            else:
                co, si = cs((2 * t2 + 1) * cl, 32)
                v = 0.0 if c == 0 else (co if c1 == 0 else -si)
            T[l, i] = v
    return T

def k2_B1(c2):
    T = np.zeros((64, 4))
    for l in range(64):
        eb, g = l & 15, l >> 4
        for i in range(4):
            sub, c1 = i >> 1, i & 1
            co, si = cs(eb * (2 * g + sub), 16)
            T[l, i] = (co if c1 == 0 else si) if c2 == 0 else (-si if c1 == 0 else co)
    return T

def k2_B2(mu, ta):
    T = np.zeros((64, 8))
    for l in range(64):
        n, g = l & 15, l >> 4
        ea = 16 * mu + n
        for i in range(8):
            c2, ii = i >> 2, i & 3
            da = 16 * ta + 4 * g + ii
            if ea >= 28 or da > 28:
                continue
            co, si = cs(ea * da, 28)
            T[l, i] = co if c2 == 0 else si
    return T

def build_tables():
    tabs = {}
    tabs['k1s1'] = [[rb(k1_stage1(w, k)) for k in range(2)] for w in range(4)]
    tabs['k2A'] = [[[rb(k2_stageA(v, w, k)) for k in range(4)] for w in range(4)] for v in range(5)]
    tabs['k2B1'] = [rb(k2_B1(c)) for c in range(2)]
    tabs['k2tw'] = [k2_tw(ta) for ta in range(2)]
    tabs['k2B2'] = [[rb(k2_B2(mu, ta)) for ta in range(2)] for mu in range(2)]
    return tabs

def emu_k1(x, ws, cls, jp, tabs):
    xf = np.concatenate([x.reshape(-1), np.zeros(64, dtype=np.float32)])
    clsw = [cls, (16 - cls) % 16]
    sh = [jp & 1, 1 - (jp & 1)]
    col = [28 * jp - 4 * sh[0], 420 - 28 * jp - 4 * sh[1]]
    lds = np.zeros(8192, dtype=np.float32)
    for w in range(4):
        for k in range(4):
            win, bp = k >> 1, k & 1
            for l in range(64):
                g, al, q = l >> 4, (l >> 2) & 3, l & 3
                s = 128 * (4 * w + al) + 16 * (4 * bp + g) + clsw[win]
                src = s * 448 + col[win] + (q ^ ((g & 1) << 1)) * 8
                dst = (w * 4096 + k * 1024 + l * 16) // 2
                lds[dst:dst + 8] = xf[src:src + 8]
    r_, cc = (L >> 2) & 3, L & 3
    sw = (jp >> 1) & 1
    for w in range(4):
        D1 = {}
        for win in range(2):
            for bp in range(2):
                for nt in range(2):
                    base = LG * 256 + r_ * 64 + (((4 * nt + cc + sh[win]) * 8 & 63) ^ ((LG & 1) * 32))
                    acc = None
                    for kap in range(2):
                        op = np.concatenate([tr_read(lds, base + (2 * kap + hh) * 4096 + win * 2048 + bp * 1024) for hh in range(2)], axis=1)
                        acc = mfma(tabs['k1s1'][w][kap], op, acc)
                    D1[win, bp, nt] = acc
        for al in range(2):
            sig = 2 * w + al
            D2 = {}
            for win in range(2):
                Bc = rb(k1_stage2(clsw[win], sig, win))
                for nt in range(2):
                    A = rb(np.concatenate([D1[win, p, nt][:, 2 * al:2 * al + 2] for p in range(2)], axis=1))
                    D2[win, nt] = mfma16(A, Bc)
            B2 = rb(np.concatenate([D2[1, 0], D2[1, 1]], axis=1))
            for nt in range(2):
                pm = mfma(k1_perm(jp, nt), B2)
                v = rb(pm + D2[0, nt])
                for l in range(64):
                    n, g = l & 15, l >> 4
                    vv = v[l].copy()
                    if nt == 1 and g == 3:
                        vv[1:] = 1.25
                        vv[0] = rb(pm[l])[0] if jp & 1 else 0
                    off = t1_of(sig, n >> 1) * CH + jp * 2048 + cls * 128 + (n & 1) * 64 + (nt ^ sw) * 32 + g * 8
                    ws[off // 2:off // 2 + 4] = vv

def emu_k2(ws, out, ch, var, tabs):
    tau = 64 if var == 3 else ch
    lds = ws[ch * CH // 2:(ch + 1) * CH // 2]
    r_, cc = (L >> 2) & 3, L & 3
    for w in range(4):
        DA = {}
        for ta in range(2):
            base = LG * 4096 + r_ * 64 + (ta ^ (LG & 1)) * 32 + cc * 8
            for sub in range(2):
                acc = None
                for kap in range(4):
                    op = np.concatenate([tr_read(lds, base + (4 * kap + 2 * hh) * 128 + sub * 2048) for hh in range(2)], axis=1)
                    acc = mfma(tabs['k2A'][var][w][kap], op, acc)
                DA[ta, sub] = acc
        for tl in range(2):
            H = []
            for ta in range(2):
                A = rb(np.concatenate([DA[ta, p][:, 2 * tl:2 * tl + 2] for p in range(2)], axis=1))
                Gr = mfma16(A, tabs['k2B1'][0]); Gi = mfma16(A, tabs['k2B1'][1])
                co, si = tabs['k2tw'][ta]
                H.append(rb(np.concatenate([co * Gr + si * Gi, co * Gi - si * Gr], axis=1)))
            pk = []
            for mu in range(2):
                pk.append(rb(mfma(H[1], tabs['k2B2'][mu][1], mfma(H[0], tabs['k2B2'][mu][0]))))
            X0, Y0 = swap16(pk[0][:, 0:2], pk[1][:, 0:2])
            X1, Y1 = swap16(pk[0][:, 2:4], pk[1][:, 2:4])
            F = np.concatenate([X0, X1, Y0, Y1], axis=1)
            ea = LN + 16 * (LG & 1)
            p = 2 * ea + (LG >> 1)
            valid = ea < 28
            if slot_t2(var, w, tl) is None: continue
            t = tau + 128 * slot_t2(var, w, tl)
            lane_of = {int(p[l]): l for l in range(64) if valid[l]}
            for l in range(64):
                if not valid[l]:
                    continue
                out[t, 8 * p[l]: 8 * p[l] + 8] = F[l]
                if t % 1024 != 0:
                    nx = F[lane_of[(int(p[l]) + 1) % 56]]
                    pp = 55 - p[l]
                    out[2048 - t, 8 * pp: 8 * pp + 8] = np.concatenate([[nx[0]], F[l][7:0:-1]])

if __name__ == '__main__':
    rng = np.random.default_rng(0)
    x = rb(rng.standard_normal((S, D)) * 0.05)
    tabs = build_tables()
    ws = np.full(64 * CH // 2, np.nan, dtype=np.float32)
    for cls in range(16):
        for jp in range(8):
            emu_k1(x, ws, cls, jp, tabs)
    print('k1 nan', np.isnan(ws).sum())
    out = np.full((S, D), np.nan, dtype=np.float32)
    for tau in range(64):
        for h in range(2):
            emu_k2(ws, out, tau, h + (2 if tau == 0 else 0), tabs)
    emu_k2(ws, out, 0, 4, tabs)
    ref = np.fft.fft2(x.astype(np.float64)).real
    e = np.abs(out - ref)
    print('nan', np.isnan(out).sum(), 'maxerr', np.nanmax(e), 'rms', np.sqrt(np.nanmean(e ** 2)), 'worst rows', np.argsort(-np.nanmax(e, axis=1))[:8])
```

```python
from asmlib import Ins, need

def cost(i):
    if i.kind == 'mfma': return 8
    if i.kind == 'vmem': return 8
    if i.kind == 'ds': return 5
    if i.kind == 'valu': return 4.4 if i.mn in ('v_mul_f32', 'v_fmac_f32', 'v_mov_b32', 'v_permlane16_swap_b32') else 5.1
    return 4

def schedule(texts, ds_lat=80, ds_gap=8.3, slack=40, late=(), boost=(), pin=(), head=0, verbose=False):
    ins = [Ins(t) for t in texts]
    n = len(ins)
    pred = [[] for _ in range(n)]; succ = [[] for _ in range(n)]
    def edge(p, c, lat):
        pred[c].append((p, lat)); succ[p].append((c, lat))
    states = {}
    lastds = None; laststore = None
    for c in range(n):
        C = ins[c]
        for p in range(c):
            P = ins[p]
            raw = P.w & C.r; waw = P.w & C.w; war = P.r & C.w
            if raw or waw or war:
                lat = cost(P)
                k = need(P, C)
                if k: lat = max(lat, cost(P) + 4 * k); states[p, c] = k
                if raw and P.kind == 'ds': lat = ds_lat
                if raw and P.kind == 'mfma' and C.kind == 'mfma' and not k: lat = 16
                edge(p, c, lat)
        if C.kind == 'ds':
            if lastds is not None: edge(lastds, c, 5)
            lastds = c
        if C.kind == 'vmem':
            if laststore is not None: edge(laststore, c, 8)
            laststore = c
    for x, y in pin:
        edge(texts.index(y), texts.index(x), 5)
    prio = [0] * n
    for c in reversed(range(n)):
        prio[c] = max([cost(ins[c])] + [l + prio[s] for s, l in succ[c]])
    for c in range(n):
        if ins[c].text in boost: prio[c] += 1000
    idx = {}
    islate = [any(x in ins[c].text for x in late) for c in range(n)]
    done = {}; dsdone = {}; order = []; t = 0; pipe = 0; dsfree = 0
    left = set(range(n)); cnt = [0]; pkend = [0]
    def ready(c):
        r = 0
        for p, l in pred[c]:
            if p not in done: return None
            if (p, c) in states:
                r = max(r, t + 4 * (states[p, c] - (cnt[0] - idx[p] - 1)), done[p] + min(l, 28))
            else:
                r = max(r, done[p] + l)
            if p in dsdone and (ins[p].w & ins[c].r): r = max(r, dsdone[p])
        if ins[c].kind == 'mfma': r = max(r, pipe, pkend[0])
        if ins[c].mn.startswith('v_pk_'): r = max(r, pipe)
        if ins[c].kind == 'ds': r = max(r, dsfree - 3 * ds_gap)
        return r
    for c in range(head):
        done[c] = -60 + 5 * c; idx[c] = -100; dsdone[c] = 10; order.append(c); left.remove(c)
    while left:
        cand = [(c, ready(c)) for c in left]
        cand = [(c, r) for c, r in cand if r is not None]
        now = [c for c, r in cand if r <= t]
        if now:
            m = [c for c in now if ins[c].kind == 'mfma']
            pk = [c for c in now if ins[c].mn.startswith('v_pk_')] if pkend[0] > t else []
            pool = pk or m or [c for c in now if not islate[c]] or now
            c = max(pool, key=lambda c: (prio[c], -c))
        else:
            c, r = min(cand, key=lambda x: (x[1], -prio[x[0]]))
            k = int((r - t) // 4)
            if k >= 1 and any((p, x) in states and states[p, x] > cnt[0] - idx[p] - 1 for x, _ in cand for p, _l in pred[x]):
                order.append(-k); cnt[0] += k; t += 4 * k
                continue
            t = r
        done[c] = t; idx[c] = cnt[0]; cnt[0] += 1
        if ins[c].kind == 'mfma': pipe = t + 16
        if ins[c].mn.startswith('v_pk_'): pkend[0] = t + 16
        if ins[c].kind == 'ds':
            dsfree = max(dsfree, t) + ds_gap
            dsdone[c] = max(t + ds_lat, dsfree + ds_lat - ds_gap)
        t += cost(ins[c])
        order.append(c); left.remove(c)
    out = []; dsl = []; covered = -1
    for c in order:
        if c < 0:
            out.append('s_nop %d' % (-c - 1)); continue
        C = ins[c]
        needk = -1
        for k, p in enumerate(dsl):
            if k > covered and ins[p].w & (C.r | C.w): needk = k
        if needk >= 0:
            while needk + 1 < len(dsl) and dsdone[dsl[needk + 1]] + slack <= done[c]: needk += 1
            out.append('s_waitcnt lgkmcnt(%d)' % min(15, len(dsl) - 1 - needk)); covered = needk
        if C.kind == 'ds': dsl.append(c)
        out.append(C.text)
    if verbose: print('model length', t, 'instrs', len(out))
    return out
```

```python
import sys, numpy as np
from asmlib import Asm
from sched import schedule
import design as dz
import design3 as d3
from gen import gen_k3, NAME, XB, OUTB, vr, op_bytes, emit_data, kd

KN = NAME + '_kernel'
NWG = 258
CH = 16384
WSB = 2 * 72 * CH
CELL = WSB
HINT = WSB + 1024
L_CONST = 16384
L_STG = 28672
L_DAT = L_STG + 4 * 2304
LDS = L_DAT
SB = 72
EM_LO, EM_HI = 0x00F0000F, 0xF0000F00
M32 = 'v_mfma_f32_16x16x32_bf16'
M16 = 'v_mfma_f32_16x16x16_bf16'

def pstamp(a, opt, i):
    if opt.get('prof'):
        a('s_memtime s[%d:%d]' % (SB + 2 * i, SB + 1 + 2 * i))

def stamp(a, opt, i):
    if opt.get('stamp') and not opt.get('prof'):
        a('s_memrealtime s[%d:%d]' % (SB + 2 * i, SB + 1 + 2 * i))

def stamp_out(a, opt, n):
    if not opt.get('stamp'):
        return
    stamp(a, opt, n - 2)
    if opt.get('prof'): n = opt['prof']; pstamp(a, opt, n - 1)
    a('s_waitcnt vmcnt(0)')
    stamp(a, opt, n - 1)
    a('s_getreg_b32 s58, hwreg(HW_REG_XCC_ID)')
    a('s_getreg_b32 s59, hwreg(HW_REG_HW_ID)')
    a('s_lshl_b32 s62, s2, 2\ns_add_u32 s62, s62, s4\ns_lshl_b32 s62, s62, 6\ns_add_u32 s62, s62, %d' % (16 << 20))
    a('s_waitcnt lgkmcnt(0)\ns_add_u32 s60, s12, s62\ns_addc_u32 s61, s13, 0')
    a('v_mov_b32 v0, 0')
    for i in range(n):
        a('v_mov_b32 v1, s%d\nglobal_store_dword v0, v1, s[60:61] offset:%d' % (SB + 2 * i, 4 * i))
    a('v_mov_b32 v1, s55\nglobal_store_dword v0, v1, s[60:61] offset:52')
    a('v_mov_b32 v1, s58\nglobal_store_dword v0, v1, s[60:61] offset:56')
    a('v_mov_b32 v1, s59\nglobal_store_dword v0, v1, s[60:61] offset:60')

def k2_table(tabs):
    b = b''
    for ta in range(2):
        for x in tabs['k2tw'][ta]:
            b += x.astype('<f4').tobytes()
    for mu in range(2):
        for ta in range(2):
            b += op_bytes(tabs['k2B2'][mu][ta])
    b += op_bytes(np.concatenate(tabs['k2B1'], axis=1))
    act = [l for l in range(64) if ((l & 15) >> 2) == (l >> 4)]
    for v in range(5):
        for w in range(4):
            for k in range(4):
                b += op_bytes(tabs['k2A'][v][w][k][act])
    return b

CA, CB1, CTW, CB2 = 128, 144, 148, 164
VA = 180

def paired(a, rd, mf, after, n=16, depth=7):
    for i in range(depth): rd(i)
    issued = depth
    for k in range(n // 2):
        a('s_waitcnt lgkmcnt(%d)' % (2 * (issued - 2 * k - 2)))
        mf(2 * k); mf(2 * k + 1)
        for _ in range(2):
            if issued < n:
                rd(issued); issued += 1
        for t in after.get(k, []): a(t)

def emit(a, seq):
    pos = {}; n = 0
    for it in seq:
        if isinstance(it, tuple) and it[0] == 'W':
            a('s_waitcnt lgkmcnt(%d)' % (n - pos[it[1]]))
            continue
        if isinstance(it, tuple):
            _, key, it = it
            pos[key] = n + 1
        if it.startswith('ds_'): n += 1
        a(it)

def zipm(*lists):
    tot = sum(len(l) for l in lists); idx = [0] * len(lists); o = []
    for k in range(tot):
        j = min((j for j in range(len(lists)) if idx[j] < len(lists[j])), key=lambda j: (idx[j] + 0.5) / len(lists[j]))
        o.append(lists[j][idx[j]]); idx[j] += 1
    return o

def mix(xs, ys, step, first=0):
    ys = list(ys); o = []
    for n, x in enumerate(xs):
        if n >= first and (n - first) % step == 0 and ys:
            o.append(ys.pop(0))
        o.append(x)
    return o + ys

def gen(opt):
    a = Asm()
    SO = dict(ds_lat=opt.get('lat', 64), ds_gap=opt.get('gap', 83) / 10., slack=opt.get('slack', -20))
    CP = CH + opt.get('cp', 0); SK = opt.get('sk', 0); BR = 72 * CH if CP != CH or SK else 64 * CH
    assert 64 * CP + 4 * SK <= BR
    V = dict(b0=VA, b1=VA + 1, f=VA + 2, m=VA + 3, p=VA + 4, tg=VA + 5, t=VA + 6, u=VA + 7)
    a('''
%s:
s_bfe_u32 s5, s2, 0x10003
s_mul_i32 s7, s5, 40
s_load_dwordx2 s[8:9], s[0:1], s7
s_load_dwordx2 s[12:13], s[0:1], 96
s_load_dwordx2 s[44:45], s[0:1], 80
s_cmp_ge_u32 s2, %d
s_cbranch_scc1 L_END
''' % (KN, NWG))
    stamp(a, opt, 0)
    a('''
v_lshrrev_b32 v6, 6, v0
v_and_b32 v0, 63, v0
v_readfirstlane_b32 s4, v6
s_and_b32 s33, s2, 7
s_lshr_b32 s6, s2, 5
s_sub_u32 s3, 16, s33
s_cmp_eq_u32 s33, 0
s_cselect_b32 s3, 8, s3
s_bfe_u32 s36, s2, 0x10004
s_cselect_b32 s3, s3, s33
s_sub_u32 s32, 16, s3
s_and_b32 s32, s32, 15
v_lshrrev_b32 v6, 4, v0
v_bfe_u32 v7, v0, 2, 2
v_mul_u32_u24 v2, 14336, v6
v_mul_u32_u24 v7, 114688, v7
v_lshrrev_b32 v3, 3, v0
v_and_b32 v3, 2, v3
v_xor_b32 v4, v3, v0
v_and_b32 v4, 3, v4
v_lshlrev_b32 v4, 4, v4
v_add3_u32 v2, v2, v7, v4
s_lshl_b32 s22, s4, %d
s_add_u32 m0, s22, 2048
s_mul_i32 s20, s4, %d
s_and_b32 s37, s6, 1
s_mul_i32 s21, s6, 7
s_sub_u32 s21, s21, s37
s_lshl_b32 s21, s21, 3
s_mul_i32 s24, s3, 896
s_mul_i32 s26, s32, 896
s_add_u32 s24, s24, s20
s_add_u32 s26, s26, s20
s_add_u32 s24, s24, s21
s_sub_u32 s26, s26, s21
s_add_u32 s25, s24, 56320
s_add_u32 s27, s26, %d
s_add_u32 s26, s26, %d
''' % ((13, 917504) if opt.get('pw2') else (12, 458752)).__add__((832 + 56320, 832)))
    if opt.get('al'):
        for r in (24, 25, 26, 27): a('s_and_b32 s%d, s%d, %d' % (r, r, -opt['al']))
    if opt.get('pf'):
        a('''v_cmp_le_u32 vcc, 28, v0
v_lshlrev_b32 v9, 5, v0
v_add_u32 v8, 13440, v9
v_cndmask_b32 v9, v9, v8, vcc
v_cmp_gt_u32 vcc, 56, v0
v_mov_b32 v8, 0x40000000
s_lshl_b32 s23, s6, 2
s_add_u32 s23, s23, s4
s_lshl_b32 s23, s23, 6
s_add_u32 s23, s23, s3
s_mul_i32 s23, s23, 896
s_add_u32 s37, s23, 28672
v_cndmask_b32 v9, v8, v9, vcc''')
    a('''
s_mov_b32 s10, %d
s_mov_b32 s11, 0x20000
s_mov_b32 s14, %d
s_mov_b32 s15, 0x20000
s_and_b32 s20, s2, 1
s_cmp_ge_u32 s2, 256
s_cselect_b32 s5, s20, s5
s_lshl_b32 s20, s5, 7
s_add_u32 s20, s20, %d
v_lshlrev_b32 v1, 4, v0
s_cmp_ge_u32 s2, 256
s_waitcnt lgkmcnt(0)
''' % (XB, WSB, CELL))
    stamp(a, opt, 1)
    a('s_cbranch_scc1 L_SKIP1')
    if opt.get('pf'):
        a('buffer_load_dword v57, v9, s[8:11], s23 offen %s\nbuffer_load_dword v58, v9, s[8:11], s37 offen %s' % ((opt.get('pff', ''),) * 2))
        if opt['pf'] == 2: a('s_barrier')
    XD = '''
buffer_load_dwordx4 v2, s[8:11], s26 offen lds
buffer_load_dwordx4 v2, s[8:11], s27 offen offset:1024 lds
s_mov_b32 m0, s22
buffer_load_dwordx4 v2, s[8:11], s24 offen lds
buffer_load_dwordx4 v2, s[8:11], s25 offen offset:1024 lds
'''.replace(' lds', ' %s lds' % opt.get('xf', ''))
    if opt.get('pw2'):
        a('s_cmp_ge_u32 s4, 2\ns_cbranch_scc1 L_PRE')
        a(XD)
        a('s_add_u32 m0, s22, 6144\ns_add_u32 s22, s22, 4096')
        for r in (24, 25, 26, 27): a('s_add_u32 s%d, s%d, 458752' % (r, r))
        a(XD)
        a('''s_branch L_PRE2
L_PRE:
v_lshrrev_b32 v5, 3, v0
v_lshlrev_b32 v5, 14, v5
v_and_b32 v7, 0x70, v1
v_add_u32 v5, v5, v7
s_lshl_b32 s21, s5, 20
s_lshl_b32 s23, s3, 7
s_add_u32 s21, s21, s23
s_lshl_b32 s23, s6, 11
s_add_u32 s21, s21, s23
s_and_b32 s23, s4, 1
s_lshl_b32 s23, s23, 19
s_add_u32 s24, s21, s23
s_add_u32 s25, s24, 0x20000
s_add_u32 s26, s24, 0x40000
s_add_u32 s27, s24, 0x60000''')
        for i in range(4): a('v_mov_b32 v%d, 2.0' % (48 + i))
        for r in (24, 25, 26, 27): a('buffer_store_dwordx4 v[48:51], v5, s[12:15], s%d offen sc1' % r)
        a('L_PRE2:')
    else:
        a(XD)
    a('''
L_SKIP1:
s_load_dwordx2 s[34:35], s[12:13], s20
s_lshl_b32 s22, s4, 12
s_mov_b32 s46, %d
s_mov_b32 s47, 0x20000
''' % OUTB)
    if opt.get('ah'):
        a('''s_getreg_b32 s20, hwreg(HW_REG_XCC_ID, 0, 3)
s_lshl_b32 s20, s20, 1
s_add_u32 s20, s20, s5
s_lshl_b32 s20, s20, 10
s_add_u32 s20, s20, %d
v_lshl_add_u32 v55, v1, 3, s20''' % HINT)
        if opt.get('aw') == 1:
            a('s_mov_b64 exec, 0xff\nglobal_load_dword v52, v55, s[12:13] sc1\ns_mov_b64 exec, -1')
    a('''
s_getpc_b64 s[16:17]
L_PC:
s_lshl_b32 s20, s6, 3
s_add_u32 s33, s33, s20
s_lshl_b32 s31, s36, 10
s_add_u32 s31, s31, s33
s_lshr_b32 s21, 128, s36
s_cmp_eq_u32 s33, 0
s_cselect_b32 s31, s21, s31
s_cselect_b32 s20, 2, 0
s_add_u32 s36, s20, s36
s_cmp_ge_u32 s2, 256
s_cselect_b32 s33, 0, s33
s_cselect_b32 s36, 4, s36
s_cselect_b32 s31, 1024, s31
s_add_u32 s16, s16, K2_TAB-L_PC
s_addc_u32 s17, s17, 0
s_add_u32 s40, s16, 8192
s_addc_u32 s41, s17, 0
s_lshl_b32 s20, s36, 12
s_lshl_b32 s21, s4, 10
s_add_u32 s20, s20, s21
s_add_u32 s20, s20, 7168
s_add_u32 s18, s16, s20
s_addc_u32 s19, s17, 0
s_lshl_b32 s21, s4, 11
s_add_u32 s16, s16, s21
s_addc_u32 s17, s17, 0
s_mul_i32 s53, s4, 3072
s_add_u32 s53, s53, %d
s_mul_i32 s20, s5, %d
s_mul_i32 s21, s33, %d
s_add_u32 s54, s20, s21
s_lshr_b32 s21, s33, 4
s_mul_i32 s21, s21, %d
s_add_u32 s54, s54, s21
s_add_u32 s54, s54, s22
s_cmp_ge_u32 s2, 256
s_cbranch_scc1 L_CONS
''' % (L_CONST, BR, CP, SK))
    CD = ['s_mov_b32 m0, s53',
          'global_load_dwordx4 %s, v1, s[40:41]' % vr(CB1),
          'global_load_lds_dwordx4 v1, s[16:17]',
          'global_load_lds_dwordx4 v1, s[16:17] offset:1024',
          'global_load_lds_dwordx4 v1, s[18:19] offset:2048']
    a('''v_bfe_u32 v5, v0, 3, 2
v_mul_u32_u24 v5, {c16}, v5
v_and_b32 v7, 0x70, v1
v_add_u32 v5, v5, v7
s_lshl_b32 s21, s4, 2
s_sub_u32 s22, 14, s21
s_sub_u32 s21, 16, s21
s_cmp_eq_u32 s4, 0
s_cselect_b32 s21, 8, s21
s_mul_i32 s21, s21, {cp}
s_mul_i32 s22, s22, {cp}
v_lshrrev_b32 v7, 5, v0
v_mad_u32_u24 v53, v7, s22, v5
v_mad_u32_u24 v5, v7, s21, v5
s_mul_i32 s20, s5, {br}
s_lshl_b32 s21, s3, 7
s_add_u32 s20, s20, s21
s_lshl_b32 s21, s6, 11
s_add_u32 s20, s20, s21
s_mul_i32 s21, s4, {c2}
s_add_u32 s28, s20, s21
s_add_u32 s29, s28, {cp}
'''.format(c16=16 * CP + SK, cp=CP, c2=2 * CP, br=BR))
    if opt.get('pre'):
        for i in range(4): a('v_mov_b32 v%d, 2.0' % (48 + i))
        PRE = ['buffer_store_dwordx4 v[48:51], v5, s[12:15], s28 offen %s' % opt.get('prest', 'sc1'),
               'buffer_store_dwordx4 v[48:51], v53, s[12:15], s29 offen %s' % opt.get('prest', 'sc1')]
        if opt['pre'] == 1:
            for t in PRE: a(t)
            a('s_nop 1')
    pw = opt.get('pw', 0)
    PW = []
    if pw:
        if opt.get('pwh'):
            a('s_lshl_b32 s20, s36, 11\ns_add_u32 s37, s54, s20\nv_lshlrev_b32 v55, 5, v0')
        else:
            a('s_mov_b32 s37, s54\nv_lshlrev_b32 v55, 6, v0')
        PW = ['buffer_load_dword v48, v55, s[12:15], s37 offen sc1']
    if opt.get('cde'):
        for t in CD: a(t)
    if pw == 2:
        for t in PW: a(t)
    a('''
s_lshl_b32 s20, s4, 1
v_bfe_u32 v32, v0, 1, 1
v_add_u32 v32, s20, v32
v_and_b32 v33, 1, v0
v_cmp_eq_u32 vcc, 0, v32
v_lshlrev_b32 v34, 3, v33
v_lshlrev_b32 v35, 2, v33
v_cndmask_b32 v32, v32, v34, vcc
v_cndmask_b32 v35, v35, 0, vcc
v_and_b32 v34, 1, v32
v_cvt_f32_u32 v32, v32
v_cvt_f32_u32 v35, v35
v_mul_u32_u24 v34, 0x8000, v34
v_mul_f32 v32, 0x3d800000, v32
v_mul_f32 v35, 0x3d800000, v35
v_lshl_or_b32 v34, v34, 16, v34
''')
    for i in range(8, 12): a('v_mov_b32 v%d, 0' % i)
    a('s_mov_b32 exec_lo, 0x%x\ns_mov_b32 exec_hi, 0x%x' % (EM_LO, EM_HI))
    for p in range(4):
        a('v_cos_f32 v36, v35\nv_add_f32 v35, v35, v32\nv_cos_f32 v37, v35')
        a('v_add_f32 v35, v35, v32' if p < 3 else 's_nop 0')
        a('v_cvt_pk_bf16_f32 v%d, v36, v37' % (8 + p))
    a('s_mov_b64 exec, -1')
    for p in range(4): a('v_xor_b32 v%d, v34, v%d' % (12 + p, 8 + p))
    a('''
v_lshlrev_b32 v38, 3, v0
v_and_b32 v38, 0x30, v38
v_and_b32 v39, 0x30, v0
v_add_u32 v40, s32, v39
v_add_u32 v39, s3, v39
v_and_b32 v47, 8, v0
v_cmp_ne_u32 s[56:57], 0, v47
v_cvt_f32_u32 v39, v39
v_cvt_f32_u32 v40, v40
v_cvt_f32_u32 v48, v33
v_sub_u32 v45, -16, v38
v_mul_f32 v39, 0x3a000000, v39
v_mul_f32 v40, 0x3a000000, v40
v_cndmask_b32 v45, v38, v45, s[56:57]
v_mul_f32 v49, 0x3e800000, v48
v_mul_f32 v50, 0.5, v48
v_add_u32 v45, s20, v45
v_add_f32 v43, v49, v50
v_add_u32 v46, 1, v45
v_cndmask_b32 v43, v49, v43, s[56:57]
v_add_f32 v44, v43, v50
v_mov_b32 v41, v43
v_mov_b32 v42, v44
s_cmp_lg_u32 s4, 0
s_cbranch_scc1 L_REG
v_cvt_f32_u32 v51, v6
v_add_u32 v45, v47, v38
v_and_b32 v56, 14, v0
v_add_f32 v41, 0x3e800000, v49
v_cmp_eq_u32 vcc, 0, v56
v_mul_f32 v51, v51, v50
v_cndmask_b32 v41, v49, v41, s[56:57]
s_cmp_eq_u32 s3, 0
s_cselect_b64 s[58:59], vcc, 0
v_cndmask_b32 v41, v41, v51, vcc
v_add_f32 v42, v41, v50
v_cndmask_b32 v42, v42, v41, s[58:59]
L_REG:
v_cvt_f32_i32 v45, v45
v_cvt_f32_i32 v46, v46
''')
    for al in range(2):
        a('v_mul_f32 v47, 0x3d000000, v%d' % (45 + al))
        for win in range(2):
            a('v_fma_f32 v50, v%d, v%d, v%d' % (45 + al, 39 + win, 41 + 2 * al + win))
            a('v_cos_f32 v36, v50\nv_sin_f32 v37, v50\nv_add_f32 v50, v50, v47')
            a('v_cvt_pk_bf16_f32 v%d, v36, v37' % (16 + 4 * al + 2 * win))
            a('v_cos_f32 v36, v50\nv_sin_f32 v37, v50\ns_nop 0')
            a('v_cvt_pk_bf16_f32 v%d, v36, v37' % (17 + 4 * al + 2 * win))
    a('''
s_cmp_lg_u32 s4, 0
s_cbranch_scc1 L_REG2
v_mov_b32 v36, 0xffff
v_not_b32 v37, v36
v_cndmask_b32 v36, v36, v37, s[56:57]
''')
    for p in range(4): a('v_and_b32 v%d, v36, v%d' % (16 + p, 16 + p))
    a('L_REG2:')
    a('''
v_and_b32 v36, 15, v0
v_lshl_add_u32 v37, v6, 2, v36
v_sub_u32 v38, 28, v37
v_sub_u32 v37, 12, v37
v_mov_b32 v41, 0
v_mov_b32 v42, 0x3f80
v_cmp_gt_u32 vcc, 4, v38
v_lshlrev_b32 v38, 4, v38
v_mov_b32 v30, 0
v_cndmask_b32 v40, 0, v42, vcc
v_cmp_gt_u32 vcc, 4, v37
v_lshlrev_b64 v[24:25], v38, v[40:41]
v_lshlrev_b32 v37, 4, v37
v_cndmask_b32 v40, 0, v42, vcc
s_mul_i32 s21, s37, 0x3f80
v_lshlrev_b64 v[26:27], v37, v[40:41]
v_mov_b32 v31, 0
v_mov_b32 v28, v26
v_mov_b32 v29, v27
v_writelane_b32 v26, s21, 48
v_writelane_b32 v28, s21, 12
''')
    a('''
v_lshlrev_b32 v3, 4, v3
v_and_b32 v4, 3, v0
v_and_b32 v7, 0x3c0, v1
s_xor_b32 s21, s37, 1
v_add_lshl_u32 v48, v4, s21, 3
v_add_lshl_u32 v49, v4, s37, 3
v_xor_b32 v48, v48, v3
v_xor_b32 v3, v49, v3
v_add_u32 v48, v48, v7
v_add_u32 v3, v3, v7
v_xor_b32 v49, 32, v48
s_mul_i32 s20, s4, 2304
s_add_u32 s20, s20, %d
v_lshrrev_b32 v2, 2, v0
v_mul_u32_u24 v2, 72, v2
v_lshl_add_u32 v2, v4, 4, v2
v_add_u32 v2, s20, v2
v_xor_b32 v4, 32, v3
s_lshl_b32 s21, s6, 4
s_and_b32 s21, s21, 32
s_add_u32 s22, s20, s21
s_xor_b32 s21, s21, 32
s_add_u32 s23, s20, s21
v_mul_u32_u24 v7, 72, v36
v_lshl_add_u32 v7, v6, 3, v7
v_add_u32 v6, s22, v7
v_add_u32 v7, s23, v7
s_mul_i32 s30, s37, 0xffff
''' % L_STG)
    NONCE = '''
s_waitcnt lgkmcnt(0)
s_or_b32 s34, s34, 0x40000000
s_or_b32 s35, s35, 0x40004000
s_add_u32 s34, s34, 0x2b150000
s_add_u32 s35, s35, 0x1e3739b9
s_and_b32 s34, s34, 0xbfff0000
s_and_b32 s35, s35, 0xbfffbfff
'''
    a(NONCE)
    if opt.get('pre', 0) >= 2:
        for i in range(4): a('v_mov_b32 v%d, 2.0' % (48 + i))
    a('s_mov_b32 s56, 0\ns_mov_b32 s57, 0xffff0000\nv_mov_b32 v54, s34')
    if opt.get('pw2'): a('s_cmp_ge_u32 s4, 2\ns_cbranch_scc1 L_NOXW')
    a('s_waitcnt vmcnt(%d)\nL_NOXW:' % (2 if opt.get('sp') else 0))
    stamp(a, opt, 2)
    if opt.get('stamp') and not opt.get('prof'): a('s_waitcnt lgkmcnt(0)')
    if opt.get('pre') == 3:
        for t in PRE: a(t)
    a('s_barrier')
    pstamp(a, opt, 0)
    if opt.get('pre') == 2:
        pass
    CDL = (PRE if opt.get('pre') == 2 else []) + ([] if opt.get('cde') else CD) + (PW if pw == 1 else [])
    order = [(win, kap, nt, bp) for win in (1, 0) for kap in range(2) for nt in range(2) for bp in range(2)]
    ACC = lambda win, nt, bp: 32 + 4 * (bp + 2 * nt) if win else 112 + 4 * (bp + 2 * nt)
    OPR = lambda i: 56 + 4 * (i % 14) if i < 14 else 56 + 4 * (i - 14)
    def rd(i):
        win, kap, nt, bp = order[i]
        t = ['ds_read_b64_tr_b16 %s, v%d offset:%d' % (vr(OPR(i) + 2 * hh, 2), (48 if win else 3) + nt, (2 * kap + hh) * 4096 + win * 2048 + bp * 1024) for hh in range(2)]
        return [t[0], ('T', i, t[1])]
    def mf(i):
        win, kap, nt, bp = order[i]
        A = ACC(win, nt, bp)
        return '%s %s, %s, %s, %s' % (M32, vr(A), vr(8 + 4 * kap), vr(OPR(i)), vr(A) if kap else '0')
    A2 = lambda al, win, nt: 64 + 2 * (al + 2 * nt) if win else 32 + 2 * (al + 2 * nt)
    def cv(win, nt):
        return ['v_cvt_pk_bf16_f32 v%d, v%d, v%d' % (A2(al, win, nt) + p, ACC(win, nt, p) + 2 * al, ACC(win, nt, p) + 2 * al + 1) for al in range(2) for p in range(2)]
    D2M = lambda al, nt: 32 + 4 * (nt + 2 * al)
    B2 = lambda al: 72 + 4 * al
    D2 = lambda al, nt: (188 if opt.get('sp') else 80) + 4 * (nt + 2 * al)
    def m2m(al, nt): return '%s %s, %s, %s, 0' % (M16, vr(D2M(al, nt)), vr(A2(al, 1, nt), 2), vr(18 + 4 * al, 2))
    def cvm(al): return ['v_cvt_pk_bf16_f32 v%d, v%d, v%d' % (B2(al) + 2 * nt + h, D2M(al, nt) + 2 * h, D2M(al, nt) + 2 * h + 1) for nt in range(2) for h in range(2)]
    def mp(al, nt): return '%s %s, %s, %s, 0' % (M32, vr(D2(al, nt)), vr(24 + 4 * nt), vr(B2(al)))
    D3 = lambda al, nt: (204 if opt.get('sp') else 188) + 4 * al if nt else D2(al, 0)
    def m2(al, nt): return '%s %s, %s, %s, %s' % (M16, vr(D3(al, nt)), vr(A2(al, 0, nt), 2), vr(16 + 4 * al, 2), vr(D2(al, nt)))
    XT = ['v_cvt_pk_bf16_f32 v%d, v%d, v%d' % (50 + al, D2(al, 1), D2(al, 1)) for al in range(2)]
    PK = lambda al, nt: 96 + 2 * (nt + 2 * al)
    def pack(al, nt): return ['v_cvt_pk_bf16_f32 v%d, v%d, v%d' % (PK(al, nt) + h, D3(al, nt) + 2 * h, D3(al, nt) + 2 * h + 1) for h in range(2)]
    def wr(al, nt): return 'ds_write_b64 v%d, %s offset:%d' % (6 + nt, vr(PK(al, nt), 2), 1152 * al)
    R = lambda *ii: [x[2] if isinstance(x, tuple) else x for i in ii for x in rd(i)]
    seq = R(*range(14)) + [mf(i) for i in range(8)] + R(14, 15) + CDL + cv(1, 0) + cv(1, 1) + [m2m(0, 0), m2m(0, 1), m2m(1, 0), m2m(1, 1)]
    seq += [mf(i) for i in range(8, 12)] + cvm(0) + cvm(1) + [mp(0, 0), mp(0, 1), mp(1, 0), mp(1, 1)] + [mf(i) for i in range(12, 16)]
    seq += cv(0, 0) + cv(0, 1) + [m2(0, 0), m2(1, 0), m2(0, 1), m2(1, 1)] + XT
    seq += pack(0, 0) + pack(1, 0) + [wr(0, 0), wr(1, 0)] + pack(0, 1) + pack(1, 1)
    bo = cv(1, 0) + cv(1, 1) + [m2m(0, 0), m2m(0, 1), m2m(1, 0), m2m(1, 1)] + [mf(i) for i in range(8)] if not opt.get('nob') else []
    if opt.get('sp'):
        s1 = R(*range(8)) + [mf(i) for i in range(8)] + cv(1, 0) + cv(1, 1) + [m2m(0, 0), m2m(0, 1), m2m(1, 0), m2m(1, 1)]
        s1b = cvm(0) + cvm(1) + [mp(0, 0), mp(0, 1), mp(1, 0), mp(1, 1)]
        if opt['sp'] == 1: s1 += s1b; s1b = []
        s2 = R(*range(8, 16)) + CDL + s1b + [mf(i) for i in range(8, 16)] + cv(0, 0) + cv(0, 1) + [m2(0, 0), m2(1, 0), m2(0, 1), m2(1, 1)] + XT
        s2 += pack(0, 0) + pack(1, 0) + [wr(0, 0), wr(1, 0)] + pack(0, 1) + pack(1, 1)
        for t in schedule(s1, verbose=opt.get('v'), **SO): a(t)
        a('s_waitcnt vmcnt(0)\ns_barrier')
        for t in schedule(s2, boost=CDL, pin=[(CDL[i], R(*range(8, 16))[min(15, 7 + 2 * i)]) for i in range(len(CDL))], verbose=opt.get('v'), **SO): a(t)
    else:
        for t in schedule(seq, boost=bo + CDL, pin=[(CDL[i], R(*range(8))[min(15, opt.get('p0', 7) + 2 * i)]) for i in range(len(CDL))], verbose=opt.get('v'), **SO): a(t)
    pstamp(a, opt, 1)
    a('s_mov_b64 exec, s[56:57]')
    for al in range(2):
        a('v_and_or_b32 v%d, v%d, s30, v54\nv_mov_b32 v%d, s35' % (PK(al, 1), 50 + al, PK(al, 1) + 1))
    a('s_mov_b64 exec, -1')
    for al in range(2):
        a(wr(al, 1))
        a('ds_read2_b64 %s, v2 offset0:%d offset1:%d' % (vr(104 + 4 * al), 144 * al, 144 * al + 1))
    pstamp(a, opt, 2)
    if opt.get('prof'): a('s_waitcnt lgkmcnt(0)')
    a('s_waitcnt lgkmcnt(2)' + ('' if opt.get('cde') or opt.get('rs') or opt.get('nv') else ' vmcnt(0)'))
    if opt.get('pw2') or opt.get('bb'): a('s_barrier')
    a('buffer_store_dwordx4 v[104:107], v5, s[12:15], s28 offen %s' % opt.get('k1st', 'sc1'))
    a('s_waitcnt lgkmcnt(0)')
    a('buffer_store_dwordx4 v[108:111], v53, s[12:15], s29 offen %s' % opt.get('k1st', 'sc1'))
    stamp(a, opt, 3)
    pstamp(a, opt, 3)
    if opt.get('xh'):
        a('''s_lshl_b32 s20, s4, 8
s_add_u32 s20, s20, s2
s_cmp_lt_u32 s20, 1008
s_cbranch_scc1 L_P2
s_lshl_b32 s20, s2, 7
s_and_b32 s20, s20, 0x780
s_add_u32 s20, s20, %d
v_lshl_add_u32 v8, v1, 7, s20
v_mov_b32 v9, s35
s_mov_b64 exec, %d
global_store_dword v8, v9, s[12:13] sc1
s_mov_b64 exec, -1
%s
s_branch %s''' % (HINT, 0xff if opt.get('ah') else 1, '' if opt.get('nv') else 's_waitcnt vmcnt(1)' if opt.get('pw2') or opt.get('bb') else 's_barrier\ns_waitcnt vmcnt(1)', 'L_P2' if opt.get('nv') else 'L_P3'))
    else:
        a('s_branch L_P2')
    a('L_CONS:')
    if opt.get('aw') == 2:
        a('''s_lshl_b32 s20, s5, 10
s_add_u32 s20, s20, %d
v_lshrrev_b32 v8, 3, v0
v_lshlrev_b32 v8, 11, v8
v_and_b32 v9, 7, v0
v_lshl_add_u32 v8, v9, 7, v8
v_add_u32 v8, s20, v8
global_load_dword v9, v8, s[12:13] sc1''' % HINT)
    a(NONCE)
    for t in CD: a(t)
    a('L_P2:\ns_waitcnt vmcnt(0)\ns_barrier' if opt.get('nv') else 'L_P2:' if opt.get('rs') else 's_waitcnt vmcnt(0)\ns_barrier\nL_P2:' if opt.get('pw2') or opt.get('bb') else 's_waitcnt vmcnt(0)\nL_P2:\ns_barrier')
    if opt.get('pa') and not opt.get('nv'): a('s_waitcnt vmcnt(0)')
    a('L_P3:')
    if opt.get('ah'):
        a('s_mov_b64 exec, 0xff\nglobal_load_dword v9, v55, s[12:13] sc1\ns_mov_b64 exec, -1')
    DB = L_DAT if opt.get('rs') else 0
    a('''
v_lshrrev_b32 v6, 4, v0
v_lshlrev_b32 v{b0}, 12, v6
v_and_b32 v7, 0xc0, v1
v_add_u32 v{b0}, v{b0}, v7
v_and_b32 v6, 1, v6
v_lshl_add_u32 v{b0}, v6, 5, v{b0}
v_and_b32 v6, 3, v0
v_lshl_add_u32 v{b0}, v6, 3, v{b0}
v_add_u32 v{b0}, {db}, v{b0}
v_xor_b32 v{b1}, 32, v{b0}
v_and_b32 v{f}, 31, v0
v_lshrrev_b32 v6, 5, v0
v_lshl_add_u32 v6, v{f}, 1, v6
v_add_u32 v7, 1, v6
v_cmp_ne_u32 vcc, 56, v7
v_mov_b32 v{t}, 0x40000000
v_lshlrev_b32 v6, 4, v6
v_cndmask_b32 v7, 0, v7, vcc
v_cmp_gt_u32 vcc, 28, v{f}
v_sub_u32 v{m}, 880, v6
v_and_b32 v{u}, 1, v7
v_cndmask_b32 v{f}, v{t}, v6, vcc
v_cndmask_b32 v{m}, v{t}, v{m}, vcc
v_lshlrev_b32 v7, 1, v7
v_and_b32 v7, 0x7c, v7
v_lshl_add_u32 v{p}, v{u}, 7, v7
s_lshl_b32 s22, s4, 12
s_add_u32 s22, s22, {db}
s_and_b32 s20, s4, 1
s_lshl_b32 s20, s20, 5
s_sub_u32 s20, 56, s20
s_add_u32 s20, s20, s22
v_and_b32 v{tg}, 0x3c0, v1
v_add_u32 v{tg}, s20, v{tg}
v_lshl_add_u32 v{u}, v1, 2, s20
v_and_b32 v6, 0xf0, v1
v_add_u32 v6, s53, v6
v_add_u32 v7, {cc}, v1
'''.format(cc=L_CONST, db=DB, **V))
    if opt.get('lin2'):
        a('''v_cmp_gt_u32 vcc, 56, v0
s_nop 1
v_cndmask_b32 v{f}, v{t}, v1, vcc
v_cndmask_b32 v{m}, v{t}, v1, vcc'''.format(**V))
    for i in range(16): a('v_mov_b32 v%d, 0' % (CA + i))
    a('''
s_lshl_b32 s21, s4, 8
s_add_u32 s48, s21, s31
s_add_u32 s49, s48, 128
s_cmp_eq_u32 s36, 2
s_cselect_b32 s21, 1023, -1
s_and_b32 s49, s49, s21
s_sub_u32 s50, 2048, s48
s_sub_u32 s51, 2048, s49
s_and_b32 s51, s51, 2047
s_mul_i32 s20, s5, 896
s_mul_i32 s48, s48, 1792
s_mul_i32 s49, s49, 1792
s_mul_i32 s50, s50, 1792
s_mul_i32 s51, s51, 1792
s_add_u32 s48, s48, s20
s_add_u32 s49, s49, s20
s_add_u32 s50, s50, s20
s_add_u32 s51, s51, s20
s_mov_b32 s52, 0xffff
s_mov_b32 s55, 0x40000
s_mov_b32 m0, s22
''')
    def const_reads():
        a('s_mov_b32 exec_lo, 0x%x\ns_mov_b32 exec_hi, 0x%x' % (EM_LO, EM_HI))
        for k in range(4): a('ds_read_b128 %s, v6 offset:%d' % (vr(CA + 4 * k), 2048 + 256 * k))
        a('s_mov_b64 exec, -1')
        for i in range(8): a('ds_read_b128 %s, v7 offset:%d' % (vr(CTW + 4 * i), (i >> 1) * 3072 + (i & 1) * 1024))
    if not opt.get('rs'): const_reads()
    ld = opt.get('k2ld', 'sc1')
    sent = opt.get('sent', 0)
    if not opt.get('early') and sent != 2 and not opt.get('pa'): a('s_waitcnt vmcnt(0)')
    stamp(a, opt, 4)
    if opt.get('slp'): a('s_sleep %d' % opt['slp'])
    if opt.get('ah'):
        a('''s_mov_b64 exec, 0xff
L_SENT:
s_waitcnt vmcnt(0)
v_cmp_ne_u32 vcc, s35, v9
s_and_b64 exec, exec, vcc
s_cbranch_scc0 L_POLL0
global_load_dword v9, v55, s[12:13] sc1
s_sub_u32 s55, s55, 1
s_cbranch_scc0 L_SENT''')
    elif opt.get('xh'):
        a('''s_cmp_lt_u32 s2, 256
s_cbranch_scc1 L_POLL0
s_lshl_b32 s20, s5, 10
s_add_u32 s20, s20, %d
v_lshl_add_u32 v8, v1, 3, s20
s_mov_b64 exec, 0xff
L_SENT:
global_load_dword v9, v8, s[12:13] sc1
s_waitcnt vmcnt(0)
v_cmp_ne_u32 vcc, s35, v9
s_and_b64 exec, exec, vcc
s_cbranch_scc0 L_POLL0
s_sub_u32 s55, s55, 1
s_cbranch_scc0 L_SENT''' % HINT)
    else:
        if sent:
            a('s_mov_b32 exec_lo, 0x%x\ns_mov_b32 exec_hi, 0x%x' % ((opt.get('sm', 0x0f0f0f0f),) * 2))
        else:
            a('s_cmp_lt_u32 s2, 256\ns_cbranch_scc1 L_POLL0\ns_mov_b64 exec, 15')
        a('''
L_SENT:
buffer_load_dwordx4 v1, s[12:15], s54 offen {ld} lds
s_waitcnt vmcnt(0)
ds_read_b64 v[8:9], v{tg}
s_waitcnt lgkmcnt(0)
v_cmp_ne_u32 vcc, s35, v9
s_cbranch_vccz L_POLL0
s_sub_u32 s55, s55, 1
s_cbranch_scc0 L_SENT'''.format(ld=ld, **V))
    a('''
L_POLL0:
s_mov_b64 exec, -1
'''.format(ld=ld, **V))
    for k in range(4): a('buffer_load_dwordx4 v1, s[12:15], s54 offen offset:%d %s lds' % (1024 * k, ld))
    if opt.get('rs'):
        a('s_barrier')
        const_reads()
    a('s_branch L_CHK\nL_POLL:')
    for k in range(4):
        a('s_mov_b64 exec, s[%d:%d]\ns_cbranch_execz L_NO%d' % (56 + 2 * k, 57 + 2 * k, k))
        a('buffer_load_dwordx4 v1, s[12:15], s54 offen offset:%d %s lds' % (1024 * k, ld))
        a('L_NO%d:' % k)
    a('s_mov_b64 exec, -1\nL_CHK:\ns_waitcnt vmcnt(0)')
    if not opt.get('slowchk'):
        a('''ds_read_b64 v[8:9], v{u}
s_waitcnt lgkmcnt(0)
v_and_b32 v8, 0xffff0000, v8
v_cmp_ne_u64 vcc, s[34:35], v[8:9]
s_cbranch_vccz L_GO'''.format(**V))
    for k in range(4): a('ds_read_b64 %s, v%d offset:%d' % (vr(8 + 2 * k, 2), V['tg'], 1024 * k))
    for k in range(4):
        a('s_waitcnt lgkmcnt(%d)' % (3 - k))
        a('v_and_b32 v%d, 0xffff0000, v%d' % (8 + 2 * k, 8 + 2 * k))
        a('v_cmp_ne_u64 s[%d:%d], s[34:35], %s' % (56 + 2 * k, 57 + 2 * k, vr(8 + 2 * k, 2)))
    a('''
s_or_b64 s[64:65], s[56:57], s[58:59]
s_or_b64 s[66:67], s[60:61], s[62:63]
s_or_b64 s[64:65], s[64:65], s[66:67]
s_cbranch_scc0 L_GO
s_sub_u32 s55, s55, 1
s_cbranch_scc0 L_POLL
L_GO:
''')
    stamp(a, opt, 5)
    if opt.get('stamp') and not opt.get('prof'): a('s_waitcnt lgkmcnt(0)')
    a('s_cmp_ge_u32 s2, 256\ns_barrier\ns_cbranch_scc1 L_ONE')
    pstamp(a, opt, 4)
    order = [(ta, kap, sub) for ta in range(2) for kap in range(4) for sub in range(2)]
    DA = lambda ta, sub: 8 + 4 * (sub + 2 * ta)
    OPR = lambda i: 24 + 4 * i
    def rd(i):
        ta, kap, sub = order[i]
        t = ['ds_read_b64_tr_b16 %s, v%d offset:%d' % (vr(OPR(i) + 2 * hh, 2), V['b0'] + ta, (4 * kap + 2 * hh) * 128 + sub * 2048) for hh in range(2)]
        return [t[0], ('T', i, t[1])]
    def mf(i):
        ta, kap, sub = order[i]
        return '%s %s, %s, %s, %s' % (M32, vr(DA(ta, sub)), vr(CA + 4 * kap), vr(OPR(i)), vr(DA(ta, sub)) if kap else '0')
    A1 = lambda tl, ta: 88 + 2 * (tl + 2 * ta)
    def cv(ta):
        return ['v_cvt_pk_bf16_f32 v%d, v%d, v%d' % (A1(tl, ta) + p, DA(ta, p) + 2 * tl, DA(ta, p) + 2 * tl + 1) for tl in range(2) for p in range(2)]
    D1 = lambda tl, ta, c: 96 + 4 * (c + 2 * tl) if ta == 0 else 112 + 4 * (c + 2 * tl)
    def b1(tl, ta, c):
        return '%s %s, %s, %s, 0' % (M16, vr(D1(tl, ta, c)), vr(A1(tl, ta), 2), vr(CB1 + 2 * c, 2))
    HT = lambda tl, ta: 24 + 8 * (tl + 2 * ta)
    HP = lambda tl, ta: 8 + 4 * tl if ta == 0 else 56 + 4 * tl
    def tw(tl, ta):
        r, i, h, co, si = D1(tl, ta, 0), D1(tl, ta, 1), HT(tl, ta), CTW + 8 * ta, CTW + 4 + 8 * ta
        o = []
        if '%d%d' % (tl, ta) in str(opt.get('pk', '')).split(','):
            for q in (0, 2):
                o.append('v_pk_mul_f32 %s, %s, %s' % (vr(h + q, 2), vr(co + q, 2), vr(r + q, 2)))
                o.append('v_pk_mul_f32 %s, %s, %s' % (vr(h + 4 + q, 2), vr(co + q, 2), vr(i + q, 2)))
            for q in (0, 2):
                o.append('v_pk_fma_f32 %s, %s, %s, %s' % (vr(h + q, 2), vr(si + q, 2), vr(i + q, 2), vr(h + q, 2)))
                o.append('v_pk_fma_f32 %s, %s, %s, %s neg_lo:[1,0,0] neg_hi:[1,0,0]' % (vr(h + 4 + q, 2), vr(si + q, 2), vr(r + q, 2), vr(h + 4 + q, 2)))
        else:
            for q in range(4):
                o.append('v_mul_f32 v%d, v%d, v%d' % (h + q, co + q, r + q))
            for q in range(4):
                o.append('v_mul_f32 v%d, v%d, v%d' % (h + 4 + q, co + q, i + q))
            for q in range(4):
                o.append('v_fmac_f32 v%d, v%d, v%d' % (h + q, si + q, i + q))
                o.append('v_fma_f32 v%d, -v%d, v%d, v%d' % (h + 4 + q, si + q, r + q, h + 4 + q))
        for q in range(4):
            o.append('v_cvt_pk_bf16_f32 v%d, v%d, v%d' % (HP(tl, ta) + q, h + 2 * q, h + 2 * q + 1))
        return o
    D2 = lambda tl, mu: 64 + 4 * (mu + 2 * tl)
    def b2(tl, mu, ta):
        return '%s %s, %s, %s, %s' % (M32, vr(D2(tl, mu)), vr(HP(tl, ta)), vr(CB2 + 4 * (2 * mu + ta)), vr(D2(tl, mu)) if ta else '0')
    F = lambda tl: 80 + 4 * tl
    M = lambda tl: 96 + 4 * tl
    st = opt.get('k2st', 'sc1')
    def fin(tl):
        o = []
        for mu in range(2):
            for h in range(2):
                o.append('v_cvt_pk_bf16_f32 v%d, v%d, v%d' % (F(tl) + 2 * mu + h, D2(tl, mu) + 2 * h, D2(tl, mu) + 2 * h + 1))
        return o
    def fin2(tl):
        return ['v_permlane16_swap_b32 v%d, v%d' % (F(tl), F(tl) + 2),
                'v_permlane16_swap_b32 v%d, v%d' % (F(tl) + 1, F(tl) + 3),
                'ds_bpermute_b32 v%d, v%d, v%d' % (2 + tl, V['p'], F(tl)),
                'buffer_store_dwordx4 %s, v%d, s[44:47], s%d offen %s' % (vr(F(tl)), V['f'], 48 + tl, st)]
    def mir(tl):
        return ['v_bfi_b32 v%d, s52, v%d, v%d' % (M(tl) + q, F(tl) + 4 - q, F(tl) + 3 - q) for q in (1, 2, 3)]
    def mir2(tl):
        return ['v_bfi_b32 v%d, s52, v%d, v%d' % (M(tl), 2 + tl, F(tl) + 3),
                'buffer_store_dwordx4 %s, v%d, s[44:47], s%d offen %s' % (vr(M(tl)), V['m'], 50 + tl, st)]
    t00, t10, t01, t11 = tw(0, 0), tw(1, 0), tw(0, 1), tw(1, 1)
    seq = R(*range(16)) + [mf(i) for i in range(8)] + cv(0) + [b1(0, 0, 0), b1(0, 0, 1), b1(1, 0, 0), b1(1, 0, 1)]
    seq += [mf(i) for i in range(8, 16)] + t00 + t10 + cv(1) + [b1(0, 1, 0), b1(0, 1, 1), b1(1, 1, 0), b1(1, 1, 1)]
    seq += [b2(0, 0, 0), b2(0, 1, 0), b2(1, 0, 0), b2(1, 1, 0)] + t01 + [b2(0, 0, 1), b2(0, 1, 1)] + t11 + [b2(1, 0, 1), b2(1, 1, 1)]
    seq += fin(0) + fin2(0) + mir(0) + mir2(0) + fin(1) + fin2(1) + mir(1) + mir2(1)
    bo = cv(0) + [b1(0, 0, 0), b1(0, 0, 1), b1(1, 0, 0), b1(1, 0, 1)] + [mf(i) for i in range(8)] if not opt.get('nob') else []
    for t in schedule(seq, boost=bo, verbose=opt.get('v'), **SO): a(t)
    a('s_branch L_FIN\nL_ONE:\ns_cmp_lg_u32 s4, 0\ns_cbranch_scc1 L_FIN')
    seq = R(*range(16)) + [mf(i) for i in range(8)] + cv(0)[:2] + [b1(0, 0, 0), b1(0, 0, 1)]
    seq += [mf(i) for i in range(8, 16)] + t00 + cv(1)[:2] + [b1(0, 1, 0), b1(0, 1, 1), b2(0, 0, 0), b2(0, 1, 0)] + t01 + [b2(0, 0, 1), b2(0, 1, 1)]
    seq += fin(0) + fin2(0)[:2] + fin2(0)[3:]
    for t in schedule(seq, boost=bo, verbose=opt.get('v'), **SO): a(t)
    a('''
s_lshl_b32 s20, s5, 7
s_add_u32 s20, s20, %d
v_mov_b32 v4, s20
v_mov_b32 v6, s34
v_mov_b32 v7, s35
s_mov_b64 exec, 1
global_store_dwordx2 v4, v[6:7], s[12:13]
s_mov_b64 exec, -1
''' % CELL)
    a('L_FIN:')
    stamp_out(a, opt, 8)
    a('L_END:\ns_endpgm')
    return a.finish(opt.get('v'))

def build(opt):
    tabs = d3.build_tables()
    hdr = open('cdna_kernels/%s.s.ref' % NAME).read().split('; Override launch')[0]
    s = hdr
    if opt.get('diag'):
        s += '; @launch kernel=%s grid=(%d,1,1) block=(256,1,1) lds=%d\n' % (KN, NWG, LDS + (16384 if opt.get('rs') else 0))
        s += '; @launch kernel=k3_kernel grid=(1,1,1) block=(64,1,1) lds=0\n'
    else:
        s += '; @launch grid=(%d,1,1) block=(256,1,1) lds=%d\n' % (NWG, LDS + (16384 if opt.get('rs') else 0))
    s += '.amdgcn_target "amdgcn-amd-amdhsa--gfx950"\n.text\n'
    s += '.globl %s\n.p2align 8\n.type %s,@function\n' % (KN, KN) + gen(opt)
    if opt.get('diag'):
        s += '.globl k3_kernel\n.p2align 8\n.type k3_kernel,@function\n' + gen_k3(opt, [opt.get('nw', 1024)])
    s += '.p2align 8\n.type K2_TAB,@object\nK2_TAB:\n' + emit_data(k2_table(tabs))
    s += '.section .rodata,"a"\n' + kd(KN, 212 if opt.get('sp') else 196, 96)
    if opt.get('diag'):
        s += kd('k3_kernel', 8, 32)
    return s

if __name__ == '__main__':
    out = sys.argv[1]
    opt = {}
    for kv in sys.argv[2:]:
        k, _, v = kv.partition('=')
        opt[k] = int(v) if v.lstrip('-').isdigit() else (v.replace('+', ' ') if v else 1)
    s = build(opt)
    open(out, 'w').write(s)
    print(out, len(s), 'bytes')
```

```python
import sys, numpy as np
from asmlib import Asm
from sched import schedule
import design as dz
import design3 as d3
from gen import gen_k3, NAME, XB, OUTB, vr, op_bytes, emit_data, kd

KN = NAME + '_kernel'
NWG = 258
CH = 16384
WSB = 2 * 72 * CH
CELL = WSB
HINT = WSB + 1024
L_CONST = 16384
L_STG = 28672
L_DAT = L_STG + 4 * 2304
LDS = L_DAT
SB = 72
EM_LO, EM_HI = 0x00F0000F, 0xF0000F00
M32 = 'v_mfma_f32_16x16x32_bf16'
M16 = 'v_mfma_f32_16x16x16_bf16'


DOC = """;
;
"""

def pstamp(a, opt, i):
    if opt.get('prof'):
        a('s_memtime s[%d:%d]' % (SB + 2 * i, SB + 1 + 2 * i))

def stamp(a, opt, i):
    if opt.get('stamp') and not opt.get('prof'):
        a('s_memrealtime s[%d:%d]' % (SB + 2 * i, SB + 1 + 2 * i))

def stamp_out(a, opt, n):
    if not opt.get('stamp'):
        return
    stamp(a, opt, n - 2)
    if opt.get('prof'): n = opt['prof']; pstamp(a, opt, n - 1)
    a('s_waitcnt vmcnt(0)')
    stamp(a, opt, n - 1)
    a('s_getreg_b32 s58, hwreg(HW_REG_XCC_ID)')
    a('s_getreg_b32 s59, hwreg(HW_REG_HW_ID)')
    a('s_lshl_b32 s62, s2, 2\ns_add_u32 s62, s62, s4\ns_lshl_b32 s62, s62, 6\ns_add_u32 s62, s62, %d' % (16 << 20))
    a('s_waitcnt lgkmcnt(0)\ns_add_u32 s60, s12, s62\ns_addc_u32 s61, s13, 0')
    a('v_mov_b32 v0, 0')
    for i in range(n):
        a('v_mov_b32 v1, s%d\nglobal_store_dword v0, v1, s[60:61] offset:%d' % (SB + 2 * i, 4 * i))
    a('v_mov_b32 v1, s55\nglobal_store_dword v0, v1, s[60:61] offset:52')
    a('v_mov_b32 v1, s58\nglobal_store_dword v0, v1, s[60:61] offset:56')
    a('v_mov_b32 v1, s59\nglobal_store_dword v0, v1, s[60:61] offset:60')

def k2_table(tabs):
    b = b''
    for ta in range(2):
        for x in tabs['k2tw'][ta]:
            b += x.astype('<f4').tobytes()
    for mu in range(2):
        for ta in range(2):
            b += op_bytes(tabs['k2B2'][mu][ta])
    b += op_bytes(np.concatenate(tabs['k2B1'], axis=1))
    act = [l for l in range(64) if ((l & 15) >> 2) == (l >> 4)]
    for v in range(5):
        for w in range(4):
            for k in range(4):
                b += op_bytes(tabs['k2A'][v][w][k][act])
    return b

CA, CB1, CTW, CB2 = 128, 144, 148, 164
VA = 180

def paired(a, rd, mf, after, n=16, depth=7):
    for i in range(depth): rd(i)
    issued = depth
    for k in range(n // 2):
        a('s_waitcnt lgkmcnt(%d)' % (2 * (issued - 2 * k - 2)))
        mf(2 * k); mf(2 * k + 1)
        for _ in range(2):
            if issued < n:
                rd(issued); issued += 1
        for t in after.get(k, []): a(t)

def emit(a, seq):
    pos = {}; n = 0
    for it in seq:
        if isinstance(it, tuple) and it[0] == 'W':
            a('s_waitcnt lgkmcnt(%d)' % (n - pos[it[1]]))
            continue
        if isinstance(it, tuple):
            _, key, it = it
            pos[key] = n + 1
        if it.startswith('ds_'): n += 1
        a(it)

def zipm(*lists):
    tot = sum(len(l) for l in lists); idx = [0] * len(lists); o = []
    for k in range(tot):
        j = min((j for j in range(len(lists)) if idx[j] < len(lists[j])), key=lambda j: (idx[j] + 0.5) / len(lists[j]))
        o.append(lists[j][idx[j]]); idx[j] += 1
    return o

def mix(xs, ys, step, first=0):
    ys = list(ys); o = []
    for n, x in enumerate(xs):
        if n >= first and (n - first) % step == 0 and ys:
            o.append(ys.pop(0))
        o.append(x)
    return o + ys

def gen(opt):
    a = Asm()
    SO = dict(ds_lat=opt.get('lat', 64), ds_gap=opt.get('gap', 83) / 10., slack=opt.get('slack', -20))
    CP = CH + opt.get('cp', 0); SK = opt.get('sk', 0); BR = 72 * CH if CP != CH or SK else 64 * CH
    assert 64 * CP + 4 * SK <= BR
    V = dict(b0=VA, b1=VA + 1, f=VA + 2, m=VA + 3, p=VA + 4, tg=VA + 5, t=VA + 6, u=VA + 7)
    a('''
%s:
s_bfe_u32 s5, s2, 0x10003
s_mul_i32 s7, s5, 40
s_load_dwordx2 s[8:9], s[0:1], s7
s_load_dwordx2 s[12:13], s[0:1], 96
s_load_dwordx2 s[44:45], s[0:1], 80
s_cmp_ge_u32 s2, %d
s_cbranch_scc1 L_END
''' % (KN, NWG))
    stamp(a, opt, 0)
    a('''
v_lshrrev_b32 v6, 6, v0
v_and_b32 v0, 63, v0
v_readfirstlane_b32 s4, v6
s_and_b32 s33, s2, 7
s_lshr_b32 s6, s2, 5
s_sub_u32 s3, 16, s33
s_cmp_eq_u32 s33, 0
s_cselect_b32 s3, 8, s3
s_bfe_u32 s36, s2, 0x10004
s_cselect_b32 s3, s3, s33
s_sub_u32 s32, 16, s3
s_and_b32 s32, s32, 15
v_lshrrev_b32 v6, 4, v0
v_bfe_u32 v7, v0, 2, 2
v_mul_u32_u24 v2, 14336, v6
v_mul_u32_u24 v7, 114688, v7
v_lshrrev_b32 v3, 3, v0
v_and_b32 v3, 2, v3
v_xor_b32 v4, v3, v0
v_and_b32 v4, 3, v4
v_lshlrev_b32 v4, 4, v4
v_add3_u32 v2, v2, v7, v4
s_lshl_b32 s22, s4, %d
s_add_u32 m0, s22, 2048
s_mul_i32 s20, s4, %d
s_and_b32 s37, s6, 1
s_mul_i32 s21, s6, 7
s_sub_u32 s21, s21, s37
s_lshl_b32 s21, s21, 3
s_mul_i32 s24, s3, 896
s_mul_i32 s26, s32, 896
s_add_u32 s24, s24, s20
s_add_u32 s26, s26, s20
s_add_u32 s24, s24, s21
s_sub_u32 s26, s26, s21
s_add_u32 s25, s24, 56320
s_add_u32 s27, s26, %d
s_add_u32 s26, s26, %d
''' % ((13, 917504) if opt.get('pw2') else (12, 458752)).__add__((832 + 56320, 832)))
    if opt.get('al'):
        for r in (24, 25, 26, 27): a('s_and_b32 s%d, s%d, %d' % (r, r, -opt['al']))
    if opt.get('pf'):
        a('''v_cmp_le_u32 vcc, 28, v0
v_lshlrev_b32 v9, 5, v0
v_add_u32 v8, 13440, v9
v_cndmask_b32 v9, v9, v8, vcc
v_cmp_gt_u32 vcc, 56, v0
v_mov_b32 v8, 0x40000000
s_lshl_b32 s23, s6, 2
s_add_u32 s23, s23, s4
s_lshl_b32 s23, s23, 6
s_add_u32 s23, s23, s3
s_mul_i32 s23, s23, 896
s_add_u32 s37, s23, 28672
v_cndmask_b32 v9, v8, v9, vcc''')
    a('''
s_mov_b32 s10, %d
s_mov_b32 s11, 0x20000
s_mov_b32 s14, %d
s_mov_b32 s15, 0x20000
s_and_b32 s20, s2, 1
s_cmp_ge_u32 s2, 256
s_cselect_b32 s5, s20, s5
s_lshl_b32 s20, s5, 7
s_add_u32 s20, s20, %d
v_lshlrev_b32 v1, 4, v0
s_cmp_ge_u32 s2, 256
s_waitcnt lgkmcnt(0)
''' % (XB, WSB, CELL))
    stamp(a, opt, 1)
    a('s_cbranch_scc1 L_SKIP1')
    if opt.get('pf'):
        a('buffer_load_dword v57, v9, s[8:11], s23 offen %s\nbuffer_load_dword v58, v9, s[8:11], s37 offen %s' % ((opt.get('pff', ''),) * 2))
        if opt['pf'] == 2: a('s_barrier')
    XD = '''
buffer_load_dwordx4 v2, s[8:11], s26 offen lds
buffer_load_dwordx4 v2, s[8:11], s27 offen offset:1024 lds
s_mov_b32 m0, s22
buffer_load_dwordx4 v2, s[8:11], s24 offen lds
buffer_load_dwordx4 v2, s[8:11], s25 offen offset:1024 lds
'''.replace(' lds', ' %s lds' % opt.get('xf', ''))
    if opt.get('pw2'):
        a('s_cmp_ge_u32 s4, 2\ns_cbranch_scc1 L_PRE')
        a(XD)
        a('s_add_u32 m0, s22, 6144\ns_add_u32 s22, s22, 4096')
        for r in (24, 25, 26, 27): a('s_add_u32 s%d, s%d, 458752' % (r, r))
        a(XD)
        a('''s_branch L_PRE2
L_PRE:
v_lshrrev_b32 v5, 3, v0
v_lshlrev_b32 v5, 14, v5
v_and_b32 v7, 0x70, v1
v_add_u32 v5, v5, v7
s_lshl_b32 s21, s5, 20
s_lshl_b32 s23, s3, 7
s_add_u32 s21, s21, s23
s_lshl_b32 s23, s6, 11
s_add_u32 s21, s21, s23
s_and_b32 s23, s4, 1
s_lshl_b32 s23, s23, 19
s_add_u32 s24, s21, s23
s_add_u32 s25, s24, 0x20000
s_add_u32 s26, s24, 0x40000
s_add_u32 s27, s24, 0x60000''')
        for i in range(4): a('v_mov_b32 v%d, 2.0' % (48 + i))
        for r in (24, 25, 26, 27): a('buffer_store_dwordx4 v[48:51], v5, s[12:15], s%d offen sc1' % r)
        a('L_PRE2:')
    else:
        a(XD)
    a('''
L_SKIP1:
s_load_dwordx2 s[34:35], s[12:13], s20
s_lshl_b32 s22, s4, 12
s_mov_b32 s46, %d
s_mov_b32 s47, 0x20000
''' % OUTB)
    if opt.get('ah'):
        a('''s_getreg_b32 s20, hwreg(HW_REG_XCC_ID, 0, 3)
s_lshl_b32 s20, s20, 1
s_add_u32 s20, s20, s5
s_lshl_b32 s20, s20, 10
s_add_u32 s20, s20, %d
v_lshl_add_u32 v55, v1, 3, s20''' % HINT)
        if opt.get('aw') == 1:
            a('s_mov_b64 exec, 0xff\nglobal_load_dword v52, v55, s[12:13] sc1\ns_mov_b64 exec, -1')
    a('''
s_getpc_b64 s[16:17]
L_PC:
s_lshl_b32 s20, s6, 3
s_add_u32 s33, s33, s20
s_lshl_b32 s31, s36, 10
s_add_u32 s31, s31, s33
s_lshr_b32 s21, 128, s36
s_cmp_eq_u32 s33, 0
s_cselect_b32 s31, s21, s31
s_cselect_b32 s20, 2, 0
s_add_u32 s36, s20, s36
s_cmp_ge_u32 s2, 256
s_cselect_b32 s33, 0, s33
s_cselect_b32 s36, 4, s36
s_cselect_b32 s31, 1024, s31
s_add_u32 s16, s16, K2_TAB-L_PC
s_addc_u32 s17, s17, 0
s_add_u32 s40, s16, 8192
s_addc_u32 s41, s17, 0
s_lshl_b32 s20, s36, 12
s_lshl_b32 s21, s4, 10
s_add_u32 s20, s20, s21
s_add_u32 s20, s20, 7168
s_add_u32 s18, s16, s20
s_addc_u32 s19, s17, 0
s_lshl_b32 s21, s4, 11
s_add_u32 s16, s16, s21
s_addc_u32 s17, s17, 0
s_mul_i32 s53, s4, 3072
s_add_u32 s53, s53, %d
s_mul_i32 s20, s5, %d
s_mul_i32 s21, s33, %d
s_add_u32 s54, s20, s21
s_lshr_b32 s21, s33, 4
s_mul_i32 s21, s21, %d
s_add_u32 s54, s54, s21
s_add_u32 s54, s54, s22
s_cmp_ge_u32 s2, 256
s_cbranch_scc1 L_CONS
''' % (L_CONST, BR, CP, SK))
    CD = ['s_mov_b32 m0, s53',
          'global_load_dwordx4 %s, v1, s[40:41]' % vr(CB1),
          'global_load_lds_dwordx4 v1, s[16:17]',
          'global_load_lds_dwordx4 v1, s[16:17] offset:1024',
          'global_load_lds_dwordx4 v1, s[18:19] offset:2048']
    a('''v_bfe_u32 v5, v0, 3, 2
v_mul_u32_u24 v5, {c16}, v5
v_and_b32 v7, 0x70, v1
v_add_u32 v5, v5, v7
s_lshl_b32 s21, s4, 2
s_sub_u32 s22, 14, s21
s_sub_u32 s21, 16, s21
s_cmp_eq_u32 s4, 0
s_cselect_b32 s21, 8, s21
s_mul_i32 s21, s21, {cp}
s_mul_i32 s22, s22, {cp}
v_lshrrev_b32 v7, 5, v0
v_mad_u32_u24 v53, v7, s22, v5
v_mad_u32_u24 v5, v7, s21, v5
s_mul_i32 s20, s5, {br}
s_lshl_b32 s21, s3, 7
s_add_u32 s20, s20, s21
s_lshl_b32 s21, s6, 11
s_add_u32 s20, s20, s21
s_mul_i32 s21, s4, {c2}
s_add_u32 s28, s20, s21
s_add_u32 s29, s28, {cp}
'''.format(c16=16 * CP + SK, cp=CP, c2=2 * CP, br=BR))
    if opt.get('pre'):
        for i in range(4): a('v_mov_b32 v%d, 2.0' % (48 + i))
        PRE = ['buffer_store_dwordx4 v[48:51], v5, s[12:15], s28 offen %s' % opt.get('prest', 'sc1'),
               'buffer_store_dwordx4 v[48:51], v53, s[12:15], s29 offen %s' % opt.get('prest', 'sc1')]
        if opt['pre'] == 1:
            for t in PRE: a(t)
            a('s_nop 1')
    pw = opt.get('pw', 0)
    PW = []
    if pw:
        if opt.get('pwh'):
            a('s_lshl_b32 s20, s36, 11\ns_add_u32 s37, s54, s20\nv_lshlrev_b32 v55, 5, v0')
        else:
            a('s_mov_b32 s37, s54\nv_lshlrev_b32 v55, 6, v0')
        PW = ['buffer_load_dword v48, v55, s[12:15], s37 offen sc1']
    if opt.get('cde'):
        for t in CD: a(t)
    if pw == 2:
        for t in PW: a(t)
    a('''
s_lshl_b32 s20, s4, 1
v_bfe_u32 v32, v0, 1, 1
v_add_u32 v32, s20, v32
v_and_b32 v33, 1, v0
v_cmp_eq_u32 vcc, 0, v32
v_lshlrev_b32 v34, 3, v33
v_lshlrev_b32 v35, 2, v33
v_cndmask_b32 v32, v32, v34, vcc
v_cndmask_b32 v35, v35, 0, vcc
v_and_b32 v34, 1, v32
v_cvt_f32_u32 v32, v32
v_cvt_f32_u32 v35, v35
v_mul_u32_u24 v34, 0x8000, v34
v_mul_f32 v32, 0x3d800000, v32
v_mul_f32 v35, 0x3d800000, v35
v_lshl_or_b32 v34, v34, 16, v34
''')
    for i in range(8, 12): a('v_mov_b32 v%d, 0' % i)
    a('s_mov_b32 exec_lo, 0x%x\ns_mov_b32 exec_hi, 0x%x' % (EM_LO, EM_HI))
    for p in range(4):
        a('v_cos_f32 v36, v35\nv_add_f32 v35, v35, v32\nv_cos_f32 v37, v35')
        a('v_add_f32 v35, v35, v32' if p < 3 else 's_nop 0')
        a('v_cvt_pk_bf16_f32 v%d, v36, v37' % (8 + p))
    a('s_mov_b64 exec, -1')
    for p in range(4): a('v_xor_b32 v%d, v34, v%d' % (12 + p, 8 + p))
    a('''
v_lshlrev_b32 v38, 3, v0
v_and_b32 v38, 0x30, v38
v_and_b32 v39, 0x30, v0
v_add_u32 v40, s32, v39
v_add_u32 v39, s3, v39
v_and_b32 v47, 8, v0
v_cmp_ne_u32 s[56:57], 0, v47
v_cvt_f32_u32 v39, v39
v_cvt_f32_u32 v40, v40
v_cvt_f32_u32 v48, v33
v_sub_u32 v45, -16, v38
v_mul_f32 v39, 0x3a000000, v39
v_mul_f32 v40, 0x3a000000, v40
v_cndmask_b32 v45, v38, v45, s[56:57]
v_mul_f32 v49, 0x3e800000, v48
v_mul_f32 v50, 0.5, v48
v_add_u32 v45, s20, v45
v_add_f32 v43, v49, v50
v_add_u32 v46, 1, v45
v_cndmask_b32 v43, v49, v43, s[56:57]
v_add_f32 v44, v43, v50
v_mov_b32 v41, v43
v_mov_b32 v42, v44
s_cmp_lg_u32 s4, 0
s_cbranch_scc1 L_REG
v_cvt_f32_u32 v51, v6
v_add_u32 v45, v47, v38
v_and_b32 v56, 14, v0
v_add_f32 v41, 0x3e800000, v49
v_cmp_eq_u32 vcc, 0, v56
v_mul_f32 v51, v51, v50
v_cndmask_b32 v41, v49, v41, s[56:57]
s_cmp_eq_u32 s3, 0
s_cselect_b64 s[58:59], vcc, 0
v_cndmask_b32 v41, v41, v51, vcc
v_add_f32 v42, v41, v50
v_cndmask_b32 v42, v42, v41, s[58:59]
L_REG:
v_cvt_f32_i32 v45, v45
v_cvt_f32_i32 v46, v46
''')
    for al in range(2):
        a('v_mul_f32 v47, 0x3d000000, v%d' % (45 + al))
        for win in range(2):
            a('v_fma_f32 v50, v%d, v%d, v%d' % (45 + al, 39 + win, 41 + 2 * al + win))
            a('v_cos_f32 v36, v50\nv_sin_f32 v37, v50\nv_add_f32 v50, v50, v47')
            a('v_cvt_pk_bf16_f32 v%d, v36, v37' % (16 + 4 * al + 2 * win))
            a('v_cos_f32 v36, v50\nv_sin_f32 v37, v50\ns_nop 0')
            a('v_cvt_pk_bf16_f32 v%d, v36, v37' % (17 + 4 * al + 2 * win))
    a('''
s_cmp_lg_u32 s4, 0
s_cbranch_scc1 L_REG2
v_mov_b32 v36, 0xffff
v_not_b32 v37, v36
v_cndmask_b32 v36, v36, v37, s[56:57]
''')
    for p in range(4): a('v_and_b32 v%d, v36, v%d' % (16 + p, 16 + p))
    a('L_REG2:')
    a('''
v_and_b32 v36, 15, v0
v_lshl_add_u32 v37, v6, 2, v36
v_sub_u32 v38, 28, v37
v_sub_u32 v37, 12, v37
v_mov_b32 v41, 0
v_mov_b32 v42, 0x3f80
v_cmp_gt_u32 vcc, 4, v38
v_lshlrev_b32 v38, 4, v38
v_mov_b32 v30, 0
v_cndmask_b32 v40, 0, v42, vcc
v_cmp_gt_u32 vcc, 4, v37
v_lshlrev_b64 v[24:25], v38, v[40:41]
v_lshlrev_b32 v37, 4, v37
v_cndmask_b32 v40, 0, v42, vcc
s_mul_i32 s21, s37, 0x3f80
v_lshlrev_b64 v[26:27], v37, v[40:41]
v_mov_b32 v31, 0
v_mov_b32 v28, v26
v_mov_b32 v29, v27
v_writelane_b32 v26, s21, 48
v_writelane_b32 v28, s21, 12
''')
    a('''
v_lshlrev_b32 v3, 4, v3
v_and_b32 v4, 3, v0
v_and_b32 v7, 0x3c0, v1
s_xor_b32 s21, s37, 1
v_add_lshl_u32 v48, v4, s21, 3
v_add_lshl_u32 v49, v4, s37, 3
v_xor_b32 v48, v48, v3
v_xor_b32 v3, v49, v3
v_add_u32 v48, v48, v7
v_add_u32 v3, v3, v7
v_xor_b32 v49, 32, v48
s_mul_i32 s20, s4, 2304
s_add_u32 s20, s20, %d
v_lshrrev_b32 v2, 2, v0
v_mul_u32_u24 v2, 72, v2
v_lshl_add_u32 v2, v4, 4, v2
v_add_u32 v2, s20, v2
v_xor_b32 v4, 32, v3
s_lshl_b32 s21, s6, 4
s_and_b32 s21, s21, 32
s_add_u32 s22, s20, s21
s_xor_b32 s21, s21, 32
s_add_u32 s23, s20, s21
v_mul_u32_u24 v7, 72, v36
v_lshl_add_u32 v7, v6, 3, v7
v_add_u32 v6, s22, v7
v_add_u32 v7, s23, v7
s_mul_i32 s30, s37, 0xffff
''' % L_STG)
    NONCE = '''
s_waitcnt lgkmcnt(0)
s_or_b32 s34, s34, 0x40000000
s_or_b32 s35, s35, 0x40004000
s_add_u32 s34, s34, 0x2b150000
s_add_u32 s35, s35, 0x1e3739b9
s_and_b32 s34, s34, 0xbfff0000
s_and_b32 s35, s35, 0xbfffbfff
'''
    a(NONCE)
    if opt.get('pre', 0) >= 2:
        for i in range(4): a('v_mov_b32 v%d, 2.0' % (48 + i))
    a('s_mov_b32 s56, 0\ns_mov_b32 s57, 0xffff0000\nv_mov_b32 v54, s34')
    if opt.get('pw2'): a('s_cmp_ge_u32 s4, 2\ns_cbranch_scc1 L_NOXW')
    a('s_waitcnt vmcnt(%d)\nL_NOXW:' % (2 if opt.get('sp') else 0))
    stamp(a, opt, 2)
    if opt.get('stamp') and not opt.get('prof'): a('s_waitcnt lgkmcnt(0)')
    if opt.get('pre') == 3:
        for t in PRE: a(t)
    a('s_barrier')
    if opt.get('eh'):
        a('''s_lshl_b32 s20, s4, 8
s_add_u32 s20, s20, s2
s_cmp_lt_u32 s20, 1008
s_cbranch_scc1 L_NOEH
s_lshl_b32 s20, s2, 7
s_and_b32 s20, s20, 0x780
s_add_u32 s20, s20, %d
v_lshl_add_u32 v56, v1, 7, s20
v_mov_b32 v57, s35
s_mov_b64 exec, 0xff
global_store_dword v56, v57, s[12:13] sc1
s_mov_b64 exec, -1
L_NOEH:''' % HINT)
    pstamp(a, opt, 0)
    if opt.get('pre') == 2:
        pass
    CDL = (PRE if opt.get('pre') == 2 else []) + ([] if opt.get('cde') else CD) + (PW if pw == 1 else [])
    a('; phase 1')
    order = [(win, kap, nt, bp) for win in (1, 0) for kap in range(2) for nt in range(2) for bp in range(2)]
    ACC = lambda win, nt, bp: 32 + 4 * (bp + 2 * nt) if win else 112 + 4 * (bp + 2 * nt)
    OPR = lambda i: 56 + 4 * (i % 14) if i < 14 else 56 + 4 * (i - 14)
    def rd(i):
        win, kap, nt, bp = order[i]
        t = ['ds_read_b64_tr_b16 %s, v%d offset:%d' % (vr(OPR(i) + 2 * hh, 2), (48 if win else 3) + nt, (2 * kap + hh) * 4096 + win * 2048 + bp * 1024) for hh in range(2)]
        return [t[0], ('T', i, t[1])]
    def mf(i):
        win, kap, nt, bp = order[i]
        A = ACC(win, nt, bp)
        return '%s %s, %s, %s, %s' % (M32, vr(A), vr(8 + 4 * kap), vr(OPR(i)), vr(A) if kap else '0')
    A2 = lambda al, win, nt: 64 + 2 * (al + 2 * nt) if win else 32 + 2 * (al + 2 * nt)
    def cv(win, nt):
        return ['v_cvt_pk_bf16_f32 v%d, v%d, v%d' % (A2(al, win, nt) + p, ACC(win, nt, p) + 2 * al, ACC(win, nt, p) + 2 * al + 1) for al in range(2) for p in range(2)]
    D2M = lambda al, nt: 32 + 4 * (nt + 2 * al)
    B2 = lambda al: 72 + 4 * al
    D2 = lambda al, nt: (188 if opt.get('sp') else 80) + 4 * (nt + 2 * al)
    def m2m(al, nt): return '%s %s, %s, %s, 0' % (M16, vr(D2M(al, nt)), vr(A2(al, 1, nt), 2), vr(18 + 4 * al, 2))
    def cvm(al): return ['v_cvt_pk_bf16_f32 v%d, v%d, v%d' % (B2(al) + 2 * nt + h, D2M(al, nt) + 2 * h, D2M(al, nt) + 2 * h + 1) for nt in range(2) for h in range(2)]
    def mp(al, nt): return '%s %s, %s, %s, 0' % (M32, vr(D2(al, nt)), vr(24 + 4 * nt), vr(B2(al)))
    D3 = lambda al, nt: (204 if opt.get('sp') else 188) + 4 * al if nt else D2(al, 0)
    def m2(al, nt): return '%s %s, %s, %s, %s' % (M16, vr(D3(al, nt)), vr(A2(al, 0, nt), 2), vr(16 + 4 * al, 2), vr(D2(al, nt)))
    XT = ['v_cvt_pk_bf16_f32 v%d, v%d, v%d' % (50 + al, D2(al, 1), D2(al, 1)) for al in range(2)]
    PK = lambda al, nt: 96 + 2 * (nt + 2 * al)
    def pack(al, nt): return ['v_cvt_pk_bf16_f32 v%d, v%d, v%d' % (PK(al, nt) + h, D3(al, nt) + 2 * h, D3(al, nt) + 2 * h + 1) for h in range(2)]
    def wr(al, nt): return 'ds_write_b64 v%d, %s offset:%d' % (6 + nt, vr(PK(al, nt), 2), 1152 * al)
    R = lambda *ii: [x[2] if isinstance(x, tuple) else x for i in ii for x in rd(i)]
    seq = R(*range(14)) + [mf(i) for i in range(8)] + R(14, 15) + CDL + cv(1, 0) + cv(1, 1) + [m2m(0, 0), m2m(0, 1), m2m(1, 0), m2m(1, 1)]
    seq += [mf(i) for i in range(8, 12)] + cvm(0) + cvm(1) + [mp(0, 0), mp(0, 1), mp(1, 0), mp(1, 1)] + [mf(i) for i in range(12, 16)]
    seq += cv(0, 0) + cv(0, 1) + [m2(0, 0), m2(1, 0), m2(0, 1), m2(1, 1)] + XT
    seq += pack(0, 0) + pack(1, 0) + [wr(0, 0), wr(1, 0)] + pack(0, 1) + pack(1, 1)
    bo = cv(1, 0) + cv(1, 1) + [m2m(0, 0), m2m(0, 1), m2m(1, 0), m2m(1, 1)] + [mf(i) for i in range(8)] if not opt.get('nob') else []
    if opt.get('sp'):
        s1 = R(*range(8)) + [mf(i) for i in range(8)] + cv(1, 0) + cv(1, 1) + [m2m(0, 0), m2m(0, 1), m2m(1, 0), m2m(1, 1)]
        s1b = cvm(0) + cvm(1) + [mp(0, 0), mp(0, 1), mp(1, 0), mp(1, 1)]
        if opt['sp'] == 1: s1 += s1b; s1b = []
        s2 = R(*range(8, 16)) + CDL + s1b + [mf(i) for i in range(8, 16)] + cv(0, 0) + cv(0, 1) + [m2(0, 0), m2(1, 0), m2(0, 1), m2(1, 1)] + XT
        s2 += pack(0, 0) + pack(1, 0) + [wr(0, 0), wr(1, 0)] + pack(0, 1) + pack(1, 1)
        for t in schedule(s1, verbose=opt.get('v'), **SO): a(t)
        a('s_waitcnt vmcnt(0)\ns_barrier')
        for t in schedule(s2, boost=CDL, pin=[(CDL[i], R(*range(8, 16))[min(15, 7 + 2 * i)]) for i in range(len(CDL))], verbose=opt.get('v'), **SO): a(t)
    else:
        for t in schedule(seq, boost=bo + CDL, pin=[(CDL[i], R(*range(8))[min(15, opt.get('p0', 7) + 2 * i)]) for i in range(len(CDL))], verbose=opt.get('v'), **SO): a(t)
    pstamp(a, opt, 1)
    a('s_mov_b64 exec, s[56:57]')
    for al in range(2):
        a('v_and_or_b32 v%d, v%d, s30, v54\nv_mov_b32 v%d, s35' % (PK(al, 1), 50 + al, PK(al, 1) + 1))
    a('s_mov_b64 exec, -1')
    for al in range(2):
        a(wr(al, 1))
        a('ds_read2_b64 %s, v2 offset0:%d offset1:%d' % (vr(104 + 4 * al), 144 * al, 144 * al + 1))
    pstamp(a, opt, 2)
    if opt.get('prof'): a('s_waitcnt lgkmcnt(0)')
    a('s_waitcnt lgkmcnt(2)' + ('' if opt.get('cde') or opt.get('rs') or opt.get('nv') else ' vmcnt(0)'))
    if opt.get('pw2') or opt.get('bb'): a('s_barrier')
    a('buffer_store_dwordx4 v[104:107], v5, s[12:15], s28 offen %s' % opt.get('k1st', 'sc1'))
    a('s_waitcnt lgkmcnt(0)')
    a('buffer_store_dwordx4 v[108:111], v53, s[12:15], s29 offen %s' % opt.get('k1st', 'sc1'))
    stamp(a, opt, 3)
    pstamp(a, opt, 3)
    if opt.get('xh') and not opt.get('eh'):
        a('''s_lshl_b32 s20, s4, 8
s_add_u32 s20, s20, s2
s_cmp_lt_u32 s20, 1008
s_cbranch_scc1 L_P2
s_lshl_b32 s20, s2, 7
s_and_b32 s20, s20, 0x780
s_add_u32 s20, s20, %d
v_lshl_add_u32 v8, v1, 7, s20
v_mov_b32 v9, s35
s_mov_b64 exec, %d
global_store_dword v8, v9, s[12:13] sc1
s_mov_b64 exec, -1
%s
s_branch %s''' % (HINT, 0xff if opt.get('ah') else 1, '' if opt.get('nv') else 's_waitcnt vmcnt(1)' if opt.get('pw2') or opt.get('bb') else 's_barrier\ns_waitcnt vmcnt(1)', 'L_P2' if opt.get('nv') else 'L_P3'))
    else:
        a('s_branch L_P2')
    a('L_CONS:')
    if opt.get('aw') == 2:
        a('''s_lshl_b32 s20, s5, 10
s_add_u32 s20, s20, %d
v_lshrrev_b32 v8, 3, v0
v_lshlrev_b32 v8, 11, v8
v_and_b32 v9, 7, v0
v_lshl_add_u32 v8, v9, 7, v8
v_add_u32 v8, s20, v8
global_load_dword v9, v8, s[12:13] sc1''' % HINT)
    a(NONCE)
    for t in CD: a(t)
    a('L_P2:\ns_waitcnt vmcnt(0)\ns_barrier' if opt.get('nv') else 'L_P2:' if opt.get('rs') else 's_waitcnt vmcnt(0)\ns_barrier\nL_P2:' if opt.get('pw2') or opt.get('bb') else 's_waitcnt vmcnt(0)\nL_P2:\ns_barrier')
    if opt.get('pa') and not opt.get('nv'): a('s_waitcnt vmcnt(0)')
    a('L_P3:')
    if opt.get('ah'):
        a('s_mov_b64 exec, 0xff\nglobal_load_dword v9, v55, s[12:13] sc1\ns_mov_b64 exec, -1')
    DB = L_DAT if opt.get('rs') else 0
    a('''
v_lshrrev_b32 v6, 4, v0
v_lshlrev_b32 v{b0}, 12, v6
v_and_b32 v7, 0xc0, v1
v_add_u32 v{b0}, v{b0}, v7
v_and_b32 v6, 1, v6
v_lshl_add_u32 v{b0}, v6, 5, v{b0}
v_and_b32 v6, 3, v0
v_lshl_add_u32 v{b0}, v6, 3, v{b0}
v_add_u32 v{b0}, {db}, v{b0}
v_xor_b32 v{b1}, 32, v{b0}
v_and_b32 v{f}, 31, v0
v_lshrrev_b32 v6, 5, v0
v_lshl_add_u32 v6, v{f}, 1, v6
v_add_u32 v7, 1, v6
v_cmp_ne_u32 vcc, 56, v7
v_mov_b32 v{t}, 0x40000000
v_lshlrev_b32 v6, 4, v6
v_cndmask_b32 v7, 0, v7, vcc
v_cmp_gt_u32 vcc, 28, v{f}
v_sub_u32 v{m}, 880, v6
v_and_b32 v{u}, 1, v7
v_cndmask_b32 v{f}, v{t}, v6, vcc
v_cndmask_b32 v{m}, v{t}, v{m}, vcc
v_lshlrev_b32 v7, 1, v7
v_and_b32 v7, 0x7c, v7
v_lshl_add_u32 v{p}, v{u}, 7, v7
s_lshl_b32 s22, s4, 12
s_add_u32 s22, s22, {db}
s_and_b32 s20, s4, 1
s_lshl_b32 s20, s20, 5
s_sub_u32 s20, 56, s20
s_add_u32 s20, s20, s22
v_and_b32 v{tg}, 0x3c0, v1
v_add_u32 v{tg}, s20, v{tg}
v_lshl_add_u32 v{u}, v1, 2, s20
v_and_b32 v6, 0xf0, v1
v_add_u32 v6, s53, v6
v_add_u32 v7, {cc}, v1
'''.format(cc=L_CONST, db=DB, **V))
    if opt.get('lin2'):
        a('''v_cmp_gt_u32 vcc, 56, v0
s_nop 1
v_cndmask_b32 v{f}, v{t}, v1, vcc
v_cndmask_b32 v{m}, v{t}, v1, vcc'''.format(**V))
    for i in range(16): a('v_mov_b32 v%d, 0' % (CA + i))
    a('''
s_lshl_b32 s21, s4, 8
s_add_u32 s48, s21, s31
s_add_u32 s49, s48, 128
s_cmp_eq_u32 s36, 2
s_cselect_b32 s21, 1023, -1
s_and_b32 s49, s49, s21
s_sub_u32 s50, 2048, s48
s_sub_u32 s51, 2048, s49
s_and_b32 s51, s51, 2047
s_mul_i32 s20, s5, 896
s_mul_i32 s48, s48, 1792
s_mul_i32 s49, s49, 1792
s_mul_i32 s50, s50, 1792
s_mul_i32 s51, s51, 1792
s_add_u32 s48, s48, s20
s_add_u32 s49, s49, s20
s_add_u32 s50, s50, s20
s_add_u32 s51, s51, s20
s_mov_b32 s52, 0xffff
s_mov_b32 s55, %s
s_mov_b32 m0, s22
''' % ('0x40000' if opt.get('stamp') else '0x400000'))
    def const_reads():
        a('s_mov_b32 exec_lo, 0x%x\ns_mov_b32 exec_hi, 0x%x' % (EM_LO, EM_HI))
        for k in range(4): a('ds_read_b128 %s, v6 offset:%d' % (vr(CA + 4 * k), 2048 + 256 * k))
        a('s_mov_b64 exec, -1')
        for i in range(8): a('ds_read_b128 %s, v7 offset:%d' % (vr(CTW + 4 * i), (i >> 1) * 3072 + (i & 1) * 1024))
    if not opt.get('rs'): const_reads()
    ld = opt.get('k2ld', 'sc1')
    sent = opt.get('sent', 0)
    if not opt.get('early') and sent != 2 and not opt.get('pa'): a('s_waitcnt vmcnt(0)')
    stamp(a, opt, 4)
    if opt.get('slp'): a('s_sleep %d' % opt['slp'])
    if opt.get('lw'): a('s_waitcnt lgkmcnt(0)')
    if opt.get('lw') == 2: a('s_barrier')
    if opt.get('eh'):
        a('''s_mov_b64 exec, 0xff
s_waitcnt vmcnt(0)
v_cmp_ne_u32 vcc, s35, v9
s_cbranch_vccz L_POLL0
L_SENT:
global_load_dword v9, v55, s[12:13] sc1
s_waitcnt vmcnt(0)
v_cmp_ne_u32 vcc, s35, v9
s_cbranch_vccz L_SENT2
s_sub_u32 s55, s55, 1
s_cbranch_scc0 L_SENT
L_SENT2:''')
        for i in range(opt['eh'] - 1): a('global_load_dword v9, v55, s[12:13] sc1\ns_waitcnt vmcnt(0)')
    elif opt.get('ah'):
        a('''s_mov_b64 exec, 0xff
L_SENT:
s_waitcnt vmcnt(0)
v_cmp_ne_u32 vcc, s35, v9
s_and_b64 exec, exec, vcc
s_cbranch_scc0 L_POLL0
global_load_dword v9, v55, s[12:13] sc1
s_sub_u32 s55, s55, 1
s_cbranch_scc0 L_SENT''')
    elif opt.get('xh'):
        a('''s_cmp_lt_u32 s2, 256
s_cbranch_scc1 L_POLL0
s_lshl_b32 s20, s5, 10
s_add_u32 s20, s20, %d
v_lshl_add_u32 v8, v1, 3, s20
s_mov_b64 exec, 0xff
L_SENT:
global_load_dword v9, v8, s[12:13] sc1
s_waitcnt vmcnt(0)
v_cmp_ne_u32 vcc, s35, v9
s_and_b64 exec, exec, vcc
s_cbranch_scc0 L_POLL0
s_sub_u32 s55, s55, 1
s_cbranch_scc0 L_SENT''' % HINT)
    else:
        if sent:
            a('s_mov_b32 exec_lo, 0x%x\ns_mov_b32 exec_hi, 0x%x' % ((opt.get('sm', 0x0f0f0f0f),) * 2))
        else:
            a('s_cmp_lt_u32 s2, 256\ns_cbranch_scc1 L_POLL0\ns_mov_b64 exec, 15')
        a('''
L_SENT:
buffer_load_dwordx4 v1, s[12:15], s54 offen {ld} lds
s_waitcnt vmcnt(0)
ds_read_b64 v[8:9], v{tg}
s_waitcnt lgkmcnt(0)
v_cmp_ne_u32 vcc, s35, v9
s_cbranch_vccz L_POLL0
s_sub_u32 s55, s55, 1
s_cbranch_scc0 L_SENT'''.format(ld=ld, **V))
    a('''
L_POLL0:
s_mov_b64 exec, -1
'''.format(ld=ld, **V))
    for k in range(4): a('buffer_load_dwordx4 v1, s[12:15], s54 offen offset:%d %s lds' % (1024 * k, opt.get('ld1', ld)))
    if opt.get('rs'):
        a('s_barrier')
        const_reads()
    a('s_branch L_CHK\nL_POLL:')
    for k in range(4):
        a('s_mov_b64 exec, s[%d:%d]\ns_cbranch_execz L_NO%d' % (56 + 2 * k, 57 + 2 * k, k))
        a('buffer_load_dwordx4 v1, s[12:15], s54 offen offset:%d %s lds' % (1024 * k, ld))
        a('L_NO%d:' % k)
    a('s_mov_b64 exec, -1\nL_CHK:\ns_waitcnt vmcnt(0)')
    if not opt.get('slowchk'):
        a('''ds_read_b64 v[8:9], v{u}
s_waitcnt lgkmcnt(0)
v_and_b32 v8, 0xffff0000, v8
v_cmp_ne_u64 vcc, s[34:35], v[8:9]
s_cbranch_vccz L_GO'''.format(**V))
    for k in range(4): a('ds_read_b64 %s, v%d offset:%d' % (vr(8 + 2 * k, 2), V['tg'], 1024 * k))
    for k in range(4):
        a('s_waitcnt lgkmcnt(%d)' % (3 - k))
        a('v_and_b32 v%d, 0xffff0000, v%d' % (8 + 2 * k, 8 + 2 * k))
        a('v_cmp_ne_u64 s[%d:%d], s[34:35], %s' % (56 + 2 * k, 57 + 2 * k, vr(8 + 2 * k, 2)))
    a('''
s_or_b64 s[64:65], s[56:57], s[58:59]
s_or_b64 s[66:67], s[60:61], s[62:63]
s_or_b64 s[64:65], s[64:65], s[66:67]
s_cbranch_scc0 L_GO
s_sub_u32 s55, s55, 1
s_cbranch_scc0 L_POLL
L_GO:
''')
    stamp(a, opt, 5)
    if opt.get('stamp') and not opt.get('prof'): a('s_waitcnt lgkmcnt(0)')
    a('s_cmp_ge_u32 s2, 256\ns_barrier\ns_cbranch_scc1 L_ONE')
    pstamp(a, opt, 4)
    a('; phase 2')
    order = [(ta, kap, sub) for ta in range(2) for kap in range(4) for sub in range(2)]
    DA = lambda ta, sub: 8 + 4 * (sub + 2 * ta)
    OPR = lambda i: 24 + 4 * i
    def rd(i):
        ta, kap, sub = order[i]
        t = ['ds_read_b64_tr_b16 %s, v%d offset:%d' % (vr(OPR(i) + 2 * hh, 2), V['b0'] + ta, (4 * kap + 2 * hh) * 128 + sub * 2048) for hh in range(2)]
        return [t[0], ('T', i, t[1])]
    def mf(i):
        ta, kap, sub = order[i]
        return '%s %s, %s, %s, %s' % (M32, vr(DA(ta, sub)), vr(CA + 4 * kap), vr(OPR(i)), vr(DA(ta, sub)) if kap else '0')
    A1 = lambda tl, ta: 88 + 2 * (tl + 2 * ta)
    def cv(ta):
        return ['v_cvt_pk_bf16_f32 v%d, v%d, v%d' % (A1(tl, ta) + p, DA(ta, p) + 2 * tl, DA(ta, p) + 2 * tl + 1) for tl in range(2) for p in range(2)]
    D1 = lambda tl, ta, c: 96 + 4 * (c + 2 * tl) if ta == 0 else 112 + 4 * (c + 2 * tl)
    def b1(tl, ta, c):
        return '%s %s, %s, %s, 0' % (M16, vr(D1(tl, ta, c)), vr(A1(tl, ta), 2), vr(CB1 + 2 * c, 2))
    HT = lambda tl, ta: 24 + 8 * (tl + 2 * ta)
    HP = lambda tl, ta: 8 + 4 * tl if ta == 0 else 56 + 4 * tl
    def tw(tl, ta):
        r, i, h, co, si = D1(tl, ta, 0), D1(tl, ta, 1), HT(tl, ta), CTW + 8 * ta, CTW + 4 + 8 * ta
        o = []
        if '%d%d' % (tl, ta) in str(opt.get('pk', '')).split(','):
            for q in (0, 2):
                o.append('v_pk_mul_f32 %s, %s, %s' % (vr(h + q, 2), vr(co + q, 2), vr(r + q, 2)))
                o.append('v_pk_mul_f32 %s, %s, %s' % (vr(h + 4 + q, 2), vr(co + q, 2), vr(i + q, 2)))
            for q in (0, 2):
                o.append('v_pk_fma_f32 %s, %s, %s, %s' % (vr(h + q, 2), vr(si + q, 2), vr(i + q, 2), vr(h + q, 2)))
                o.append('v_pk_fma_f32 %s, %s, %s, %s neg_lo:[1,0,0] neg_hi:[1,0,0]' % (vr(h + 4 + q, 2), vr(si + q, 2), vr(r + q, 2), vr(h + 4 + q, 2)))
        else:
            for q in range(4):
                o.append('v_mul_f32 v%d, v%d, v%d' % (h + q, co + q, r + q))
            for q in range(4):
                o.append('v_mul_f32 v%d, v%d, v%d' % (h + 4 + q, co + q, i + q))
            for q in range(4):
                o.append('v_fmac_f32 v%d, v%d, v%d' % (h + q, si + q, i + q))
                o.append('v_fma_f32 v%d, -v%d, v%d, v%d' % (h + 4 + q, si + q, r + q, h + 4 + q))
        for q in range(4):
            o.append('v_cvt_pk_bf16_f32 v%d, v%d, v%d' % (HP(tl, ta) + q, h + 2 * q, h + 2 * q + 1))
        return o
    D2 = lambda tl, mu: 64 + 4 * (mu + 2 * tl)
    def b2(tl, mu, ta):
        return '%s %s, %s, %s, %s' % (M32, vr(D2(tl, mu)), vr(HP(tl, ta)), vr(CB2 + 4 * (2 * mu + ta)), vr(D2(tl, mu)) if ta else '0')
    F = lambda tl: 80 + 4 * tl
    M = lambda tl: 96 + 4 * tl
    st = opt.get('k2st', 'sc1')
    def fin(tl):
        o = []
        for mu in range(2):
            for h in range(2):
                o.append('v_cvt_pk_bf16_f32 v%d, v%d, v%d' % (F(tl) + 2 * mu + h, D2(tl, mu) + 2 * h, D2(tl, mu) + 2 * h + 1))
        return o
    def fin2(tl):
        return ['v_permlane16_swap_b32 v%d, v%d' % (F(tl), F(tl) + 2),
                'v_permlane16_swap_b32 v%d, v%d' % (F(tl) + 1, F(tl) + 3),
                'ds_bpermute_b32 v%d, v%d, v%d' % (2 + tl, V['p'], F(tl)),
                'buffer_store_dwordx4 %s, v%d, s[44:47], s%d offen %s' % (vr(F(tl)), V['f'], 48 + tl, st)]
    def mir(tl):
        return ['v_bfi_b32 v%d, s52, v%d, v%d' % (M(tl) + q, F(tl) + 4 - q, F(tl) + 3 - q) for q in (1, 2, 3)]
    def mir2(tl):
        return ['v_bfi_b32 v%d, s52, v%d, v%d' % (M(tl), 2 + tl, F(tl) + 3),
                'buffer_store_dwordx4 %s, v%d, s[44:47], s%d offen %s' % (vr(M(tl)), V['m'], 50 + tl, st)]
    t00, t10, t01, t11 = tw(0, 0), tw(1, 0), tw(0, 1), tw(1, 1)
    seq = R(*range(16)) + [mf(i) for i in range(8)] + cv(0) + [b1(0, 0, 0), b1(0, 0, 1), b1(1, 0, 0), b1(1, 0, 1)]
    seq += [mf(i) for i in range(8, 16)] + t00 + t10 + cv(1) + [b1(0, 1, 0), b1(0, 1, 1), b1(1, 1, 0), b1(1, 1, 1)]
    seq += [b2(0, 0, 0), b2(0, 1, 0), b2(1, 0, 0), b2(1, 1, 0)] + t01 + [b2(0, 0, 1), b2(0, 1, 1)] + t11 + [b2(1, 0, 1), b2(1, 1, 1)]
    seq += fin(0) + fin2(0) + mir(0) + mir2(0) + fin(1) + fin2(1) + mir(1) + mir2(1)
    bo = cv(0) + [b1(0, 0, 0), b1(0, 0, 1), b1(1, 0, 0), b1(1, 0, 1)] + [mf(i) for i in range(8)] if not opt.get('nob') else []
    bo2 = bo
    if opt.get('t0') == 1:
        bo2 = bo + t00 + cv(1)[:2] + [b1(0, 1, 0), b1(0, 1, 1), b2(0, 0, 0), b2(0, 1, 0)] + t01 + [b2(0, 0, 1), b2(0, 1, 1)] + fin(0) + fin2(0) + mir(0) + mir2(0)
    if opt.get('t0') == 2:
        bo2 = bo + t01 + [b2(0, 0, 1), b2(0, 1, 1)] + fin(0) + fin2(0) + mir(0) + mir2(0)
    for t in schedule(seq, boost=bo2, verbose=opt.get('v'), **SO): a(t)
    a('s_branch L_FIN\nL_ONE:\ns_cmp_lg_u32 s4, 0\ns_cbranch_scc1 L_FIN')
    seq = R(*range(16)) + [mf(i) for i in range(8)] + cv(0)[:2] + [b1(0, 0, 0), b1(0, 0, 1)]
    seq += [mf(i) for i in range(8, 16)] + t00 + cv(1)[:2] + [b1(0, 1, 0), b1(0, 1, 1), b2(0, 0, 0), b2(0, 1, 0)] + t01 + [b2(0, 0, 1), b2(0, 1, 1)]
    seq += fin(0) + fin2(0)[:2] + fin2(0)[3:]
    for t in schedule(seq, boost=bo, verbose=opt.get('v'), **SO): a(t)
    a('''
s_lshl_b32 s20, s5, 7
s_add_u32 s20, s20, %d
v_mov_b32 v4, s20
v_mov_b32 v6, s34
v_mov_b32 v7, s35
s_mov_b64 exec, 1
global_store_dwordx2 v4, v[6:7], s[12:13]
s_mov_b64 exec, -1
''' % CELL)
    a('L_FIN:')
    stamp_out(a, opt, 8)
    a('L_END:\ns_endpgm')
    return a.finish(opt.get('v'))

def build(opt):
    tabs = d3.build_tables()
    hdr = open('cdna_kernels/%s.s.ref' % NAME).read().split('; Override launch')[0]
    s = hdr
    if opt.get('diag'):
        s += '; @launch kernel=%s grid=(%d,1,1) block=(256,1,1) lds=%d\n' % (KN, NWG, LDS + (16384 if opt.get('rs') else 0))
        s += '; @launch kernel=k3_kernel grid=(1,1,1) block=(64,1,1) lds=0\n'
    else:
        s += '; @launch grid=(%d,1,1) block=(256,1,1) lds=%d\n' % (NWG, LDS + (16384 if opt.get('rs') else 0))
    s += DOC
    s += '.amdgcn_target "amdgcn-amd-amdhsa--gfx950"\n.text\n'
    s += '.globl %s\n.p2align 8\n.type %s,@function\n' % (KN, KN) + gen(opt)
    if opt.get('diag'):
        s += '.globl k3_kernel\n.p2align 8\n.type k3_kernel,@function\n' + gen_k3(opt, [opt.get('nw', 1024)])
    s += '.p2align 8\n.type K2_TAB,@object\nK2_TAB:\n' + emit_data(k2_table(tabs))
    s += '.section .rodata,"a"\n' + kd(KN, 212 if opt.get('sp') else 196, 96)
    if opt.get('diag'):
        s += kd('k3_kernel', 8, 32)
    return s

if __name__ == '__main__':
    out = sys.argv[1]
    opt = {}
    for kv in sys.argv[2:]:
        k, _, v = kv.partition('=')
        opt[k] = int(v) if v.lstrip('-').isdigit() else (v.replace('+', ' ') if v else 1)
    s = build(opt)
    open(out, 'w').write(s)
    print(out, len(s), 'bytes')
```

```python
import numpy as np
from design import bf16_bits, bf16_val, rb, cs, mfma, swap16, tr_read, k1_stage1, k2_tw, L, LN, LG
S, D = 2048, 448
CH = 16384

def mfma16(A, B, C=None):
    Am = np.zeros((16, 16)); Bm = np.zeros((16, 16))
    for l in range(64):
        Am[l & 15, 4 * (l >> 4):4 * (l >> 4) + 4] = A[l]
        Bm[4 * (l >> 4):4 * (l >> 4) + 4, l & 15] = B[l]
    Dm = Am @ Bm
    Dl = np.zeros((64, 4))
    for l in range(64):
        Dl[l] = Dm[4 * (l >> 4):4 * (l >> 4) + 4, l & 15]
    if C is not None:
        Dl = Dl + C
    return Dl.astype(np.float32)

def t1_of(sig, bi):
    bl = bi & 3
    if bi < 4:
        return sig + 16 * bl
    return 16 * bl + (8 if sig == 0 else 16 - sig)

def k1_stage2(cls, sig, win):
    T = np.zeros((64, 4))
    for l in range(64):
        n, g = l & 15, l >> 4
        bi, c2 = n >> 1, n & 1
        bl = bi & 3
        for i in range(4):
            bp, c = i >> 1, i & 1
            b = 4 * bp + g
            sarg = 16 * b + cls
            if sig >= 1:
                t = sig + 16 * bl if bi < 4 else sig - 16 * (bl + 1)
                co, si = cs(t * sarg, 2048)
                if c2 == 0:
                    v = co if c == 0 else si
                else:
                    v = -si if c == 0 else co
                    if t < 0: v = -v
                    if win: v = -v
            elif bi < 4:
                if c == 1:
                    v = 0.0
                elif bi == 0:
                    v = 1.0 if c2 == 0 else (-1.0) ** b * (-1.0 if (win and cls != 0) else 1.0)
                else:
                    co, si = cs(16 * bl * sarg, 2048)
                    v = co if c2 == 0 else (-si if not win else si)
            else:
                if c == 0:
                    v = 0.0
                else:
                    co, si = cs((8 + 16 * bl) * sarg, 2048)
                    v = co if c2 == 0 else (-si if not win else si)
            T[l, i] = v
    return T

def k1_perm(jp, nu):
    T = np.zeros((64, 8))
    for l in range(64):
        m, g = l & 15, l >> 4
        k = 16 * nu + m
        if k > 28 or (k == 28 and not jp & 1) or (k == 0 and not jp & 1):
            continue
        for i in range(8):
            k2 = 16 * (i >> 2) + 4 * g + (i & 3)
            if k2 == 28 - k:
                T[l, i] = 1.0
    return T

def slot_t2(var, w, tl):
    q = 2 * w + tl
    if var < 2: return 8 * var + q
    if var == 2: return (q + 1) & 7
    if var == 3: return q
    return 8 if q == 0 else None

def k2_stageA(var, w, kap):
    T = np.zeros((64, 8))
    for l in range(64):
        m, g = l & 15, l >> 4
        if (m >> 2) != g:
            continue
        tl, c1 = (m & 3) >> 1, m & 1
        t2 = slot_t2(var, w, tl)
        if t2 is None:
            continue
        for i in range(8):
            cl, c = 4 * kap + (i >> 1), i & 1
            if var < 2:
                co, si = cs(t2 * cl, 16)
                v = (co if c == 0 else si) if c1 == 0 else (-si if c == 0 else co)
            elif var != 3:
                co, si = cs(t2 * cl, 16)
                v = 0.0 if c == 1 else (co if c1 == 0 else -si)
            else:
                co, si = cs((2 * t2 + 1) * cl, 32)
                v = 0.0 if c == 0 else (co if c1 == 0 else -si)
            T[l, i] = v
    return T

def k2_B1(c2):
    T = np.zeros((64, 4))
    for l in range(64):
        eb, g = l & 15, l >> 4
        for i in range(4):
            sub, c1 = i >> 1, i & 1
            co, si = cs(eb * (2 * (2 * g + sub) + 1), 32)
            T[l, i] = (co if c1 == 0 else si) if c2 == 0 else (-si if c1 == 0 else co)
    return T

def k2_shear(ta):
    da = 16 * ta + 4 * LG[:, None] + np.arange(4)[None, :]
    th = 2 * np.pi * LN[:, None] * (da - 14) / 448.0
    p = np.where(da <= 28, np.tan(th / 2), 0.0); q = np.where(da <= 28, -np.sin(th), 0.0)
    assert np.abs(p).max() < 11
    return p.astype(np.float32), q.astype(np.float32)

def k2_B2(mu, ta):
    T = np.zeros((64, 8))
    for l in range(64):
        n, g = l & 15, l >> 4
        ea = 16 * mu + n
        for i in range(8):
            c2, ii = i >> 2, i & 3
            da = 16 * ta + 4 * g + ii
            if ea >= 28 or da > 28:
                continue
            co, si = cs(ea * da, 28)
            T[l, i] = co if c2 == 0 else si
    return T

def build_tables():
    tabs = {}
    tabs['k1s1'] = [[rb(k1_stage1(w, k)) for k in range(2)] for w in range(4)]
    tabs['k2A'] = [[[rb(k2_stageA(v, w, k)) for k in range(4)] for w in range(4)] for v in range(5)]
    tabs['k2B1'] = [rb(k2_B1(c)) for c in range(2)]
    tabs['k2tw'] = [k2_shear(ta) for ta in range(2)]
    tabs['k2B2'] = [[rb(k2_B2(mu, ta)) for ta in range(2)] for mu in range(2)]
    return tabs

def emu_k1(x, ws, cls, jp, tabs):
    xf = np.concatenate([x.reshape(-1), np.zeros(64, dtype=np.float32)])
    clsw = [cls, (16 - cls) % 16]
    sh = [jp & 1, 1 - (jp & 1)]
    col = [28 * jp - 4 * sh[0], 420 - 28 * jp - 4 * sh[1]]
    lds = np.zeros(8192, dtype=np.float32)
    for w in range(4):
        for k in range(4):
            win, bp = k >> 1, k & 1
            for l in range(64):
                g, al, q = l >> 4, (l >> 2) & 3, l & 3
                s = 128 * (4 * w + al) + 16 * (4 * bp + g) + clsw[win]
                src = s * 448 + col[win] + (q ^ ((g & 1) << 1)) * 8
                dst = (w * 4096 + k * 1024 + l * 16) // 2
                lds[dst:dst + 8] = xf[src:src + 8]
    r_, cc = (L >> 2) & 3, L & 3
    sw = (jp >> 1) & 1
    for w in range(4):
        D1 = {}
        for win in range(2):
            for bp in range(2):
                for nt in range(2):
                    base = LG * 256 + r_ * 64 + (((4 * nt + cc + sh[win]) * 8 & 63) ^ ((LG & 1) * 32))
                    acc = None
                    for kap in range(2):
                        op = np.concatenate([tr_read(lds, base + (2 * kap + hh) * 4096 + win * 2048 + bp * 1024) for hh in range(2)], axis=1)
                        acc = mfma(tabs['k1s1'][w][kap], op, acc)
                    D1[win, bp, nt] = acc
        for al in range(2):
            sig = 2 * w + al
            D2 = {}
            for win in range(2):
                Bc = rb(k1_stage2(clsw[win], sig, win))
                for nt in range(2):
                    A = rb(np.concatenate([D1[win, p, nt][:, 2 * al:2 * al + 2] for p in range(2)], axis=1))
                    D2[win, nt] = mfma16(A, Bc)
            B2 = rb(np.concatenate([D2[1, 0], D2[1, 1]], axis=1))
            for nt in range(2):
                pm = mfma(k1_perm(jp, nt), B2)
                v = rb(pm + D2[0, nt])
                for l in range(64):
                    n, g = l & 15, l >> 4
                    vv = v[l].copy()
                    if nt == 1 and g == 3:
                        vv[1:] = 1.25
                        vv[0] = rb(pm[l])[0] if jp & 1 else 0
                    off = t1_of(sig, n >> 1) * CH + jp * 2048 + cls * 128 + (n & 1) * 64 + (nt ^ sw) * 32 + g * 8
                    ws[off // 2:off // 2 + 4] = vv

def emu_k2(ws, out, ch, var, tabs):
    tau = 64 if var == 3 else ch
    lds = ws[ch * CH // 2:(ch + 1) * CH // 2]
    r_, cc = (L >> 2) & 3, L & 3
    for w in range(4):
        DA = {}
        for ta in range(2):
            base = LG * 4096 + r_ * 64 + (ta ^ (LG & 1)) * 32 + cc * 8
            for sub in range(2):
                acc = None
                for kap in range(4):
                    op = np.concatenate([tr_read(lds, base + (4 * kap + 2 * hh) * 128 + sub * 2048) for hh in range(2)], axis=1)
                    acc = mfma(tabs['k2A'][var][w][kap], op, acc)
                DA[ta, sub] = acc
        for tl in range(2):
            H = []
            for ta in range(2):
                A = rb(np.concatenate([DA[ta, p][:, 2 * tl:2 * tl + 2] for p in range(2)], axis=1))
                Gr = mfma16(A, tabs['k2B1'][0]); Gi = mfma16(A, tabs['k2B1'][1])
                p_, q_ = tabs['k2tw'][ta]
                Gr = Gr + p_ * Gi; Gi = Gi + q_ * Gr; Gr = Gr + p_ * Gi
                H.append(rb(np.concatenate([Gr, Gi], axis=1)))
            pk = []
            for mu in range(2):
                pk.append(rb(mfma(H[1], tabs['k2B2'][mu][1], mfma(H[0], tabs['k2B2'][mu][0]))))
            X0, Y0 = swap16(pk[0][:, 0:2], pk[1][:, 0:2])
            X1, Y1 = swap16(pk[0][:, 2:4], pk[1][:, 2:4])
            F = np.concatenate([X0, X1, Y0, Y1], axis=1)
            ea = LN + 16 * (LG & 1)
            p = 2 * ea + (LG >> 1)
            valid = ea < 28
            if slot_t2(var, w, tl) is None: continue
            t = tau + 128 * slot_t2(var, w, tl)
            lane_of = {int(p[l]): l for l in range(64) if valid[l]}
            for l in range(64):
                if not valid[l]:
                    continue
                out[t, 8 * p[l]: 8 * p[l] + 8] = F[l]
                if t % 1024 != 0:
                    nx = F[lane_of[(int(p[l]) + 1) % 56]]
                    pp = 55 - p[l]
                    out[2048 - t, 8 * pp: 8 * pp + 8] = np.concatenate([[nx[0]], F[l][7:0:-1]])

if __name__ == '__main__':
    rng = np.random.default_rng(0)
    x = rb(rng.standard_normal((S, D)) * 0.05)
    tabs = build_tables()
    ws = np.full(64 * CH // 2, np.nan, dtype=np.float32)
    for cls in range(16):
        for jp in range(8):
            emu_k1(x, ws, cls, jp, tabs)
    print('k1 nan', np.isnan(ws).sum())
    out = np.full((S, D), np.nan, dtype=np.float32)
    for tau in range(64):
        for h in range(2):
            emu_k2(ws, out, tau, h + (2 if tau == 0 else 0), tabs)
    emu_k2(ws, out, 0, 4, tabs)
    ref = np.fft.fft2(x.astype(np.float64)).real
    e = np.abs(out - ref)
    print('nan', np.isnan(out).sum(), 'maxerr', np.nanmax(e), 'rms', np.sqrt(np.nanmean(e ** 2)), 'worst rows', np.argsort(-np.nanmax(e, axis=1))[:8])
```

```python
import sys, numpy as np
from asmlib import Asm
from sched import schedule
import design as dz
import design3 as d3
from gen import gen_k3, NAME, XB, OUTB, vr, op_bytes, emit_data, kd

KN = NAME + '_kernel'
NWG = 258
CH = 16384
WSB = 2 * 72 * CH
CELL = WSB
HINT = WSB + 1024
L_CONST = 16384
L_STG = 28672
L_DAT = L_STG + 4 * 2304
LDS = L_DAT
SB = 72
EM_LO, EM_HI = 0x00F0000F, 0xF0000F00
M32 = 'v_mfma_f32_16x16x32_bf16'
M16 = 'v_mfma_f32_16x16x16_bf16'


DOC = """;
;
"""

def pstamp(a, opt, i):
    if opt.get('prof'):
        a('s_memtime s[%d:%d]' % (SB + 2 * i, SB + 1 + 2 * i))

def stamp(a, opt, i):
    if opt.get('stamp') and not opt.get('prof'):
        a('s_memrealtime s[%d:%d]' % (SB + 2 * i, SB + 1 + 2 * i))

def stamp_out(a, opt, n):
    if not opt.get('stamp'):
        return
    stamp(a, opt, n - 2)
    if opt.get('prof'): n = opt['prof']; pstamp(a, opt, n - 1)
    a('s_waitcnt vmcnt(0)')
    stamp(a, opt, n - 1)
    a('s_getreg_b32 s58, hwreg(HW_REG_XCC_ID)')
    a('s_getreg_b32 s59, hwreg(HW_REG_HW_ID)')
    a('s_lshl_b32 s62, s2, 2\ns_add_u32 s62, s62, s4\ns_lshl_b32 s62, s62, 6\ns_add_u32 s62, s62, %d' % (16 << 20))
    a('s_load_dwordx2 s[12:13], s[0:1], 96')
    a('s_waitcnt lgkmcnt(0)\ns_add_u32 s60, s12, s62\ns_addc_u32 s61, s13, 0')
    a('v_mov_b32 v0, 0')
    for i in range(n):
        a('v_mov_b32 v1, s%d\nglobal_store_dword v0, v1, s[60:61] offset:%d' % (SB + 2 * i, 4 * i))
    a('v_mov_b32 v1, s55\nglobal_store_dword v0, v1, s[60:61] offset:52')
    a('v_mov_b32 v1, s58\nglobal_store_dword v0, v1, s[60:61] offset:56')
    a('v_mov_b32 v1, s59\nglobal_store_dword v0, v1, s[60:61] offset:60')

def k2_table(tabs):
    b = b''
    for ta in range(2):
        for x in tabs['k2tw'][ta]:
            b += x.astype('<f4').tobytes()
    for mu in range(2):
        for ta in range(2):
            b += op_bytes(tabs['k2B2'][mu][ta])
    b += op_bytes(np.concatenate(tabs['k2B1'], axis=1))
    act = [l for l in range(64) if ((l & 15) >> 2) == (l >> 4)]
    for v in range(5):
        for w in range(4):
            for k in range(4):
                b += op_bytes(tabs['k2A'][v][w][k][act])
    return b

CA, CB1, CTW, CB2 = 128, 144, 148, 164
VA = 180

def paired(a, rd, mf, after, n=16, depth=7):
    for i in range(depth): rd(i)
    issued = depth
    for k in range(n // 2):
        a('s_waitcnt lgkmcnt(%d)' % (2 * (issued - 2 * k - 2)))
        mf(2 * k); mf(2 * k + 1)
        for _ in range(2):
            if issued < n:
                rd(issued); issued += 1
        for t in after.get(k, []): a(t)

def emit(a, seq):
    pos = {}; n = 0
    for it in seq:
        if isinstance(it, tuple) and it[0] == 'W':
            a('s_waitcnt lgkmcnt(%d)' % (n - pos[it[1]]))
            continue
        if isinstance(it, tuple):
            _, key, it = it
            pos[key] = n + 1
        if it.startswith('ds_'): n += 1
        a(it)

def zipm(*lists):
    tot = sum(len(l) for l in lists); idx = [0] * len(lists); o = []
    for k in range(tot):
        j = min((j for j in range(len(lists)) if idx[j] < len(lists[j])), key=lambda j: (idx[j] + 0.5) / len(lists[j]))
        o.append(lists[j][idx[j]]); idx[j] += 1
    return o

def mix(xs, ys, step, first=0):
    ys = list(ys); o = []
    for n, x in enumerate(xs):
        if n >= first and (n - first) % step == 0 and ys:
            o.append(ys.pop(0))
        o.append(x)
    return o + ys

def gen(opt):
    a = Asm()
    SO = dict(ds_lat=opt.get('lat', 64), ds_gap=opt.get('gap', 83) / 10., slack=opt.get('slack', -20))
    CP = CH + opt.get('cp', 0); SK = opt.get('sk', 0); BR = 72 * CH if CP != CH or SK else 64 * CH
    assert 64 * CP + 4 * SK <= BR
    V = dict(b0=VA, b1=VA + 1, f=VA + 2, m=VA + 3, p=VA + 4, tg=VA + 5, t=VA + 6, u=VA + 7)
    a('''
%s:
s_bfe_u32 s5, s2, 0x10003
s_mul_i32 s7, s5, 40
s_load_dwordx2 s[8:9], s[0:1], s7
s_load_dwordx2 s[12:13], s[0:1], 96
s_load_dwordx2 s[44:45], s[0:1], 80
s_cmp_ge_u32 s2, %d
s_cbranch_scc1 L_END
''' % (KN, NWG))
    stamp(a, opt, 0)
    a('''
v_lshrrev_b32 v6, 6, v0
v_and_b32 v0, 63, v0
v_readfirstlane_b32 s4, v6
s_and_b32 s33, s2, 7
s_lshr_b32 s6, s2, 5
s_sub_u32 s3, 16, s33
s_cmp_eq_u32 s33, 0
s_cselect_b32 s3, 8, s3
s_bfe_u32 s36, s2, 0x10004
s_cselect_b32 s3, s3, s33
s_sub_u32 s32, 16, s3
s_and_b32 s32, s32, 15
v_lshrrev_b32 v6, 4, v0
v_bfe_u32 v7, v0, 2, 2
v_mul_u32_u24 v2, 14336, v6
v_mul_u32_u24 v7, 114688, v7
v_lshrrev_b32 v3, 3, v0
v_and_b32 v3, 2, v3
v_xor_b32 v4, v3, v0
v_and_b32 v4, 3, v4
v_lshlrev_b32 v4, 4, v4
v_add3_u32 v2, v2, v7, v4
s_lshl_b32 s22, s4, %d
s_add_u32 m0, s22, 2048
s_mul_i32 s20, s4, %d
s_and_b32 s37, s6, 1
s_mul_i32 s21, s6, 7
s_sub_u32 s21, s21, s37
s_lshl_b32 s21, s21, 3
s_mul_i32 s24, s3, 896
s_mul_i32 s26, s32, 896
s_add_u32 s24, s24, s20
s_add_u32 s26, s26, s20
s_add_u32 s24, s24, s21
s_sub_u32 s26, s26, s21
s_add_u32 s25, s24, 56320
s_add_u32 s27, s26, %d
s_add_u32 s26, s26, %d
''' % ((13, 917504) if opt.get('pw2') else (12, 458752)).__add__((832 + 56320, 832)))
    if opt.get('al'):
        for r in (24, 25, 26, 27): a('s_and_b32 s%d, s%d, %d' % (r, r, -opt['al']))
    if opt.get('pf'):
        a('''v_cmp_le_u32 vcc, 28, v0
v_lshlrev_b32 v9, 5, v0
v_add_u32 v8, 13440, v9
v_cndmask_b32 v9, v9, v8, vcc
v_cmp_gt_u32 vcc, 56, v0
v_mov_b32 v8, 0x40000000
s_lshl_b32 s23, s6, 2
s_add_u32 s23, s23, s4
s_lshl_b32 s23, s23, 6
s_add_u32 s23, s23, s3
s_mul_i32 s23, s23, 896
s_add_u32 s37, s23, 28672
v_cndmask_b32 v9, v8, v9, vcc''')
    a('''
s_mov_b32 s10, %d
s_mov_b32 s11, 0x20000
s_mov_b32 s14, %d
s_mov_b32 s15, 0x20000
s_and_b32 s20, s2, 1
s_cmp_ge_u32 s2, 256
s_cselect_b32 s5, s20, s5
s_lshl_b32 s20, s5, 7
s_add_u32 s20, s20, %d
v_lshlrev_b32 v1, 4, v0
s_cmp_ge_u32 s2, 256
s_waitcnt lgkmcnt(0)
''' % (XB, WSB, CELL))
    if opt.get('wo'): a('s_add_u32 s12, s12, %d\ns_addc_u32 s13, s13, 0\ns_cmp_ge_u32 s2, 256' % (opt['wo'] << 20))
    stamp(a, opt, 1)
    a('s_cbranch_scc1 L_SKIP1')
    if opt.get('pf'):
        a('buffer_load_dword v57, v9, s[8:11], s23 offen %s\nbuffer_load_dword v58, v9, s[8:11], s37 offen %s' % ((opt.get('pff', ''),) * 2))
        if opt['pf'] == 2: a('s_barrier')
    XD = '''
buffer_load_dwordx4 v2, s[8:11], s26 offen lds
buffer_load_dwordx4 v2, s[8:11], s27 offen offset:1024 lds
s_mov_b32 m0, s22
buffer_load_dwordx4 v2, s[8:11], s24 offen lds
buffer_load_dwordx4 v2, s[8:11], s25 offen offset:1024 lds
'''.replace(' lds', ' %s lds' % opt.get('xf', ''))
    if opt.get('pw2'):
        a('s_cmp_ge_u32 s4, 2\ns_cbranch_scc1 L_PRE')
        a(XD)
        a('s_add_u32 m0, s22, 6144\ns_add_u32 s22, s22, 4096')
        for r in (24, 25, 26, 27): a('s_add_u32 s%d, s%d, 458752' % (r, r))
        a(XD)
        a('''s_branch L_PRE2
L_PRE:
v_lshrrev_b32 v5, 3, v0
v_lshlrev_b32 v5, 14, v5
v_and_b32 v7, 0x70, v1
v_add_u32 v5, v5, v7
s_lshl_b32 s21, s5, 20
s_lshl_b32 s23, s3, 7
s_add_u32 s21, s21, s23
s_lshl_b32 s23, s6, 11
s_add_u32 s21, s21, s23
s_and_b32 s23, s4, 1
s_lshl_b32 s23, s23, 19
s_add_u32 s24, s21, s23
s_add_u32 s25, s24, 0x20000
s_add_u32 s26, s24, 0x40000
s_add_u32 s27, s24, 0x60000''')
        for i in range(4): a('v_mov_b32 v%d, 2.0' % (48 + i))
        for r in (24, 25, 26, 27): a('buffer_store_dwordx4 v[48:51], v5, s[12:15], s%d offen sc1' % r)
        a('L_PRE2:')
    else:
        a(XD)
    a('''
L_SKIP1:
s_load_dwordx2 s[34:35], s[12:13], s20
s_lshl_b32 s22, s4, 12
s_mov_b32 s46, %d
s_mov_b32 s47, 0x20000
''' % OUTB)
    if opt.get('ah'):
        a('''s_getreg_b32 s20, hwreg(HW_REG_XCC_ID, 0, 3)
s_lshl_b32 s20, s20, 1
s_add_u32 s20, s20, s5
s_lshl_b32 s20, s20, 10
s_add_u32 s20, s20, %d
v_lshl_add_u32 v55, v1, 3, s20''' % HINT)
        if opt.get('aw') == 1:
            a('s_mov_b64 exec, 0xff\nglobal_load_dword v52, v55, s[12:13] sc1\ns_mov_b64 exec, -1')
    a('''
s_getpc_b64 s[16:17]
L_PC:
s_lshl_b32 s20, s6, 3
s_add_u32 s33, s33, s20
s_lshl_b32 s31, s36, 10
s_add_u32 s31, s31, s33
s_lshr_b32 s21, 128, s36
s_cmp_eq_u32 s33, 0
s_cselect_b32 s31, s21, s31
s_cselect_b32 s20, 2, 0
s_add_u32 s36, s20, s36
s_cmp_ge_u32 s2, 256
s_cselect_b32 s33, 0, s33
s_cselect_b32 s36, 4, s36
s_cselect_b32 s31, 1024, s31
s_add_u32 s16, s16, K2_TAB-L_PC
s_addc_u32 s17, s17, 0
s_add_u32 s40, s16, 8192
s_addc_u32 s41, s17, 0
s_lshl_b32 s20, s36, 12
s_lshl_b32 s21, s4, 10
s_add_u32 s20, s20, s21
s_add_u32 s20, s20, 7168
s_add_u32 s18, s16, s20
s_addc_u32 s19, s17, 0
s_lshl_b32 s21, s4, 11
s_add_u32 s16, s16, s21
s_addc_u32 s17, s17, 0
s_mul_i32 s53, s4, 3072
s_add_u32 s53, s53, %d
s_mul_i32 s20, s5, %d
s_mul_i32 s21, s33, %d
s_add_u32 s54, s20, s21
s_lshr_b32 s21, s33, 4
s_mul_i32 s21, s21, %d
s_add_u32 s54, s54, s21
s_add_u32 s54, s54, s22
s_cmp_ge_u32 s2, 256
s_cbranch_scc1 L_CONS
''' % (L_CONST, BR, CP, SK))
    CD = ['s_mov_b32 m0, s53',
          'global_load_dwordx4 %s, v1, s[40:41]' % vr(CB1),
          'global_load_lds_dwordx4 v1, s[16:17]',
          'global_load_lds_dwordx4 v1, s[16:17] offset:1024',
          'global_load_lds_dwordx4 v1, s[18:19] offset:2048']
    a('''v_bfe_u32 v5, v0, 3, 2
v_mul_u32_u24 v5, {c16}, v5
v_and_b32 v7, 0x70, v1
v_add_u32 v5, v5, v7
s_lshl_b32 s21, s4, 2
s_sub_u32 s22, 14, s21
s_sub_u32 s21, 16, s21
s_cmp_eq_u32 s4, 0
s_cselect_b32 s21, 8, s21
s_mul_i32 s21, s21, {cp}
s_mul_i32 s22, s22, {cp}
v_lshrrev_b32 v7, 5, v0
v_mad_u32_u24 v53, v7, s22, v5
v_mad_u32_u24 v5, v7, s21, v5
s_mul_i32 s20, s5, {br}
s_lshl_b32 s21, s3, 7
s_add_u32 s20, s20, s21
s_lshl_b32 s21, s6, 11
s_add_u32 s20, s20, s21
s_mul_i32 s21, s4, {c2}
s_add_u32 s28, s20, s21
s_add_u32 s29, s28, {cp}
'''.format(c16=16 * CP + SK, cp=CP, c2=2 * CP, br=BR))
    if opt.get('pre'):
        for i in range(4): a('v_mov_b32 v%d, 2.0' % (48 + i))
        PRE = ['buffer_store_dwordx4 v[48:51], v5, s[12:15], s28 offen %s' % opt.get('prest', 'sc1'),
               'buffer_store_dwordx4 v[48:51], v53, s[12:15], s29 offen %s' % opt.get('prest', 'sc1')]
        if opt['pre'] == 1:
            for t in PRE: a(t)
            a('s_nop 1')
    pw = opt.get('pw', 0)
    PW = []
    if pw:
        if opt.get('pwh'):
            a('s_lshl_b32 s20, s36, 11\ns_add_u32 s37, s54, s20\nv_lshlrev_b32 v55, 5, v0')
        else:
            a('s_mov_b32 s37, s54\nv_lshlrev_b32 v55, 6, v0')
        PW = ['buffer_load_dword v48, v55, s[12:15], s37 offen sc1']
    if opt.get('cde'):
        for t in CD: a(t)
    if pw == 2:
        for t in PW: a(t)
    a('''
s_lshl_b32 s20, s4, 1
v_bfe_u32 v32, v0, 1, 1
v_add_u32 v32, s20, v32
v_and_b32 v33, 1, v0
v_cmp_eq_u32 vcc, 0, v32
v_lshlrev_b32 v34, 3, v33
v_lshlrev_b32 v35, 2, v33
v_cndmask_b32 v32, v32, v34, vcc
v_cndmask_b32 v35, v35, 0, vcc
v_and_b32 v34, 1, v32
v_cvt_f32_u32 v32, v32
v_cvt_f32_u32 v35, v35
v_mul_u32_u24 v34, 0x8000, v34
v_mul_f32 v32, 0x3d800000, v32
v_mul_f32 v35, 0x3d800000, v35
v_lshl_or_b32 v34, v34, 16, v34
''')
    for i in range(8, 12): a('v_mov_b32 v%d, 0' % i)
    a('s_mov_b32 exec_lo, 0x%x\ns_mov_b32 exec_hi, 0x%x' % (EM_LO, EM_HI))
    for p in range(4):
        a('v_cos_f32 v36, v35\nv_add_f32 v35, v35, v32\nv_cos_f32 v37, v35')
        a('v_add_f32 v35, v35, v32' if p < 3 else 's_nop 0')
        a('v_cvt_pk_bf16_f32 v%d, v36, v37' % (8 + p))
    a('s_mov_b64 exec, -1')
    for p in range(4): a('v_xor_b32 v%d, v34, v%d' % (12 + p, 8 + p))
    a('''
v_lshlrev_b32 v38, 3, v0
v_and_b32 v38, 0x30, v38
v_and_b32 v39, 0x30, v0
v_add_u32 v40, s32, v39
v_add_u32 v39, s3, v39
v_and_b32 v47, 8, v0
v_cmp_ne_u32 s[56:57], 0, v47
v_cvt_f32_u32 v39, v39
v_cvt_f32_u32 v40, v40
v_cvt_f32_u32 v48, v33
v_sub_u32 v45, -16, v38
v_mul_f32 v39, 0x3a000000, v39
v_mul_f32 v40, 0x3a000000, v40
v_cndmask_b32 v45, v38, v45, s[56:57]
v_mul_f32 v49, 0x3e800000, v48
v_mul_f32 v50, 0.5, v48
v_add_u32 v45, s20, v45
v_add_f32 v43, v49, v50
v_add_u32 v46, 1, v45
v_cndmask_b32 v43, v49, v43, s[56:57]
v_add_f32 v44, v43, v50
v_mov_b32 v41, v43
v_mov_b32 v42, v44
s_cmp_lg_u32 s4, 0
s_cbranch_scc1 L_REG
v_cvt_f32_u32 v51, v6
v_add_u32 v45, v47, v38
v_and_b32 v56, 14, v0
v_add_f32 v41, 0x3e800000, v49
v_cmp_eq_u32 vcc, 0, v56
v_mul_f32 v51, v51, v50
v_cndmask_b32 v41, v49, v41, s[56:57]
s_cmp_eq_u32 s3, 0
s_cselect_b64 s[58:59], vcc, 0
v_cndmask_b32 v41, v41, v51, vcc
v_add_f32 v42, v41, v50
v_cndmask_b32 v42, v42, v41, s[58:59]
L_REG:
v_cvt_f32_i32 v45, v45
v_cvt_f32_i32 v46, v46
''')
    for al in range(2):
        a('v_mul_f32 v47, 0x3d000000, v%d' % (45 + al))
        for win in range(2):
            a('v_fma_f32 v50, v%d, v%d, v%d' % (45 + al, 39 + win, 41 + 2 * al + win))
            a('v_cos_f32 v36, v50\nv_sin_f32 v37, v50\nv_add_f32 v50, v50, v47')
            a('v_cvt_pk_bf16_f32 v%d, v36, v37' % (16 + 4 * al + 2 * win))
            a('v_cos_f32 v36, v50\nv_sin_f32 v37, v50\ns_nop 0')
            a('v_cvt_pk_bf16_f32 v%d, v36, v37' % (17 + 4 * al + 2 * win))
    a('''
s_cmp_lg_u32 s4, 0
s_cbranch_scc1 L_REG2
v_mov_b32 v36, 0xffff
v_not_b32 v37, v36
v_cndmask_b32 v36, v36, v37, s[56:57]
''')
    for p in range(4): a('v_and_b32 v%d, v36, v%d' % (16 + p, 16 + p))
    a('L_REG2:')
    a('''
v_and_b32 v36, 15, v0
v_lshl_add_u32 v37, v6, 2, v36
v_sub_u32 v38, 28, v37
v_sub_u32 v37, 12, v37
v_mov_b32 v41, 0
v_mov_b32 v42, 0x3f80
v_cmp_gt_u32 vcc, 4, v38
v_lshlrev_b32 v38, 4, v38
v_mov_b32 v30, 0
v_cndmask_b32 v40, 0, v42, vcc
v_cmp_gt_u32 vcc, 4, v37
v_lshlrev_b64 v[24:25], v38, v[40:41]
v_lshlrev_b32 v37, 4, v37
v_cndmask_b32 v40, 0, v42, vcc
s_mul_i32 s21, s37, 0x3f80
v_lshlrev_b64 v[26:27], v37, v[40:41]
v_mov_b32 v31, 0
v_mov_b32 v28, v26
v_mov_b32 v29, v27
v_writelane_b32 v26, s21, 48
v_writelane_b32 v28, s21, 12
''')
    a('''
v_lshlrev_b32 v3, 4, v3
v_and_b32 v4, 3, v0
v_and_b32 v7, 0x3c0, v1
s_xor_b32 s21, s37, 1
v_add_lshl_u32 v48, v4, s21, 3
v_add_lshl_u32 v49, v4, s37, 3
v_xor_b32 v48, v48, v3
v_xor_b32 v3, v49, v3
v_add_u32 v48, v48, v7
v_add_u32 v3, v3, v7
v_xor_b32 v49, 32, v48
s_mul_i32 s20, s4, 2304
s_add_u32 s20, s20, %d
v_lshrrev_b32 v2, 2, v0
v_mul_u32_u24 v2, 72, v2
v_lshl_add_u32 v2, v4, 4, v2
v_add_u32 v2, s20, v2
v_xor_b32 v4, 32, v3
s_lshl_b32 s21, s6, 4
s_and_b32 s21, s21, 32
s_add_u32 s22, s20, s21
s_xor_b32 s21, s21, 32
s_add_u32 s23, s20, s21
v_mul_u32_u24 v7, 72, v36
v_lshl_add_u32 v7, v6, 3, v7
v_add_u32 v6, s22, v7
v_add_u32 v7, s23, v7
s_mul_i32 s30, s37, 0xffff
''' % L_STG)
    NONCE = '''
s_waitcnt lgkmcnt(0)
s_or_b32 s34, s34, 0x40000000
s_or_b32 s35, s35, 0x40004000
s_add_u32 s34, s34, 0x2b150000
s_add_u32 s35, s35, 0x1e3739b9
s_and_b32 s34, s34, 0xbfff0000
s_and_b32 s35, s35, 0xbfffbfff
'''
    a(NONCE)
    if opt.get('pre', 0) >= 2:
        for i in range(4): a('v_mov_b32 v%d, 2.0' % (48 + i))
    a('s_mov_b32 s56, 0\ns_mov_b32 s57, 0xffff0000\nv_mov_b32 v54, s34')
    if opt.get('pw2'): a('s_cmp_ge_u32 s4, 2\ns_cbranch_scc1 L_NOXW')
    a('s_waitcnt vmcnt(%d)\nL_NOXW:' % (2 if opt.get('sp') else 0))
    stamp(a, opt, 2)
    if opt.get('stamp') and not opt.get('prof'): a('s_waitcnt lgkmcnt(0)')
    if opt.get('pre') == 3:
        for t in PRE: a(t)
    a('s_barrier')
    if opt.get('eh'):
        a('''s_lshl_b32 s20, s4, 8
s_add_u32 s20, s20, s2
s_cmp_lt_u32 s20, 1008
s_cbranch_scc1 L_NOEH
s_lshl_b32 s20, s2, 7
s_and_b32 s20, s20, 0x780
s_add_u32 s20, s20, %d
v_lshl_add_u32 v56, v1, 7, s20
v_mov_b32 v57, s35
s_mov_b64 exec, 0xff
global_store_dword v56, v57, s[12:13] sc1
s_mov_b64 exec, -1
L_NOEH:''' % HINT)
    pstamp(a, opt, 0)
    if opt.get('pre') == 2:
        pass
    CDL = (PRE if opt.get('pre') == 2 else []) + ([] if opt.get('cde') else CD) + (PW if pw == 1 else [])
    a('; phase 1')
    order = [(win, kap, nt, bp) for win in (1, 0) for kap in range(2) for nt in range(2) for bp in range(2)]
    ACC = lambda win, nt, bp: 32 + 4 * (bp + 2 * nt) if win else 112 + 4 * (bp + 2 * nt)
    OPR = lambda i: 56 + 4 * (i % 14) if i < 14 else 56 + 4 * (i - 14)
    def rd(i):
        win, kap, nt, bp = order[i]
        t = ['ds_read_b64_tr_b16 %s, v%d offset:%d' % (vr(OPR(i) + 2 * hh, 2), (48 if win else 3) + nt, (2 * kap + hh) * 4096 + win * 2048 + bp * 1024) for hh in range(2)]
        return [t[0], ('T', i, t[1])]
    def mf(i):
        win, kap, nt, bp = order[i]
        A = ACC(win, nt, bp)
        return '%s %s, %s, %s, %s' % (M32, vr(A), vr(8 + 4 * kap), vr(OPR(i)), vr(A) if kap else '0')
    A2 = lambda al, win, nt: 64 + 2 * (al + 2 * nt) if win else 32 + 2 * (al + 2 * nt)
    def cv(win, nt):
        return ['v_cvt_pk_bf16_f32 v%d, v%d, v%d' % (A2(al, win, nt) + p, ACC(win, nt, p) + 2 * al, ACC(win, nt, p) + 2 * al + 1) for al in range(2) for p in range(2)]
    D2M = lambda al, nt: 32 + 4 * (nt + 2 * al)
    B2 = lambda al: 72 + 4 * al
    D2 = lambda al, nt: (188 if opt.get('sp') else 80) + 4 * (nt + 2 * al)
    def m2m(al, nt): return '%s %s, %s, %s, 0' % (M16, vr(D2M(al, nt)), vr(A2(al, 1, nt), 2), vr(18 + 4 * al, 2))
    def cvm(al): return ['v_cvt_pk_bf16_f32 v%d, v%d, v%d' % (B2(al) + 2 * nt + h, D2M(al, nt) + 2 * h, D2M(al, nt) + 2 * h + 1) for nt in range(2) for h in range(2)]
    def mp(al, nt): return '%s %s, %s, %s, 0' % (M32, vr(D2(al, nt)), vr(24 + 4 * nt), vr(B2(al)))
    D3 = lambda al, nt: (204 if opt.get('sp') else 188) + 4 * al if nt else D2(al, 0)
    def m2(al, nt): return '%s %s, %s, %s, %s' % (M16, vr(D3(al, nt)), vr(A2(al, 0, nt), 2), vr(16 + 4 * al, 2), vr(D2(al, nt)))
    XT = ['v_cvt_pk_bf16_f32 v%d, v%d, v%d' % (50 + al, D2(al, 1), D2(al, 1)) for al in range(2)]
    PK = lambda al, nt: 96 + 2 * (nt + 2 * al)
    def pack(al, nt): return ['v_cvt_pk_bf16_f32 v%d, v%d, v%d' % (PK(al, nt) + h, D3(al, nt) + 2 * h, D3(al, nt) + 2 * h + 1) for h in range(2)]
    def wr(al, nt): return 'ds_write_b64 v%d, %s offset:%d' % (6 + nt, vr(PK(al, nt), 2), 1152 * al)
    R = lambda *ii: [x[2] if isinstance(x, tuple) else x for i in ii for x in rd(i)]
    seq = R(*range(14)) + [mf(i) for i in range(8)] + R(14, 15) + CDL + cv(1, 0) + cv(1, 1) + [m2m(0, 0), m2m(0, 1), m2m(1, 0), m2m(1, 1)]
    seq += [mf(i) for i in range(8, 12)] + cvm(0) + cvm(1) + [mp(0, 0), mp(0, 1), mp(1, 0), mp(1, 1)] + [mf(i) for i in range(12, 16)]
    seq += cv(0, 0) + cv(0, 1) + [m2(0, 0), m2(1, 0), m2(0, 1), m2(1, 1)] + XT
    seq += pack(0, 0) + pack(1, 0) + [wr(0, 0), wr(1, 0)] + pack(0, 1) + pack(1, 1)
    bo = cv(1, 0) + cv(1, 1) + [m2m(0, 0), m2m(0, 1), m2m(1, 0), m2m(1, 1)] + [mf(i) for i in range(8)] if not opt.get('nob') else []
    if opt.get('sp'):
        s1 = R(*range(8)) + [mf(i) for i in range(8)] + cv(1, 0) + cv(1, 1) + [m2m(0, 0), m2m(0, 1), m2m(1, 0), m2m(1, 1)]
        s1b = cvm(0) + cvm(1) + [mp(0, 0), mp(0, 1), mp(1, 0), mp(1, 1)]
        if opt['sp'] == 1: s1 += s1b; s1b = []
        s2 = R(*range(8, 16)) + CDL + s1b + [mf(i) for i in range(8, 16)] + cv(0, 0) + cv(0, 1) + [m2(0, 0), m2(1, 0), m2(0, 1), m2(1, 1)] + XT
        s2 += pack(0, 0) + pack(1, 0) + [wr(0, 0), wr(1, 0)] + pack(0, 1) + pack(1, 1)
        for t in schedule(s1, verbose=opt.get('v'), **SO): a(t)
        a('s_waitcnt vmcnt(0)\ns_barrier')
        for t in schedule(s2, boost=CDL, pin=[(CDL[i], R(*range(8, 16))[min(15, 7 + 2 * i)]) for i in range(len(CDL))], verbose=opt.get('v'), **SO): a(t)
    else:
        for t in schedule(seq, boost=bo + CDL, pin=[(CDL[i], R(*range(8))[min(15, opt.get('p0', 7) + 2 * i)]) for i in range(len(CDL))], verbose=opt.get('v'), **SO): a(t)
    pstamp(a, opt, 1)
    a('s_mov_b64 exec, s[56:57]')
    for al in range(2):
        a('v_and_or_b32 v%d, v%d, s30, v54\nv_mov_b32 v%d, s35' % (PK(al, 1), 50 + al, PK(al, 1) + 1))
    a('s_mov_b64 exec, -1')
    for al in range(2):
        a(wr(al, 1))
        a('ds_read2_b64 %s, v2 offset0:%d offset1:%d' % (vr(104 + 4 * al), 144 * al, 144 * al + 1))
    pstamp(a, opt, 2)
    if opt.get('prof'): a('s_waitcnt lgkmcnt(0)')
    a('s_waitcnt lgkmcnt(2)' + ('' if opt.get('cde') or opt.get('rs') or opt.get('nv') else ' vmcnt(0)'))
    if opt.get('pw2') or opt.get('bb'): a('s_barrier')
    a('buffer_store_dwordx4 v[104:107], v5, s[12:15], s28 offen %s' % opt.get('k1st', 'sc1'))
    a('s_waitcnt lgkmcnt(0)')
    a('buffer_store_dwordx4 v[108:111], v53, s[12:15], s29 offen %s' % opt.get('k1st', 'sc1'))
    stamp(a, opt, 3)
    pstamp(a, opt, 3)
    if opt.get('xh') and not opt.get('eh'):
        a('''s_lshl_b32 s20, s4, 8
s_add_u32 s20, s20, s2
s_cmp_lt_u32 s20, 1008
s_cbranch_scc1 L_P2
s_lshl_b32 s20, s2, 7
s_and_b32 s20, s20, 0x780
s_add_u32 s20, s20, %d
v_lshl_add_u32 v8, v1, 7, s20
v_mov_b32 v9, s35
s_mov_b64 exec, %d
global_store_dword v8, v9, s[12:13] sc1
s_mov_b64 exec, -1
%s
s_branch %s''' % (HINT, 0xff if opt.get('ah') else 1, '' if opt.get('nv') else 's_waitcnt vmcnt(1)' if opt.get('pw2') or opt.get('bb') else 's_barrier\ns_waitcnt vmcnt(1)', 'L_P2' if opt.get('nv') else 'L_P3'))
    else:
        a('s_branch L_P2')
    a('L_CONS:')
    if opt.get('aw') == 2:
        a('''s_lshl_b32 s20, s5, 10
s_add_u32 s20, s20, %d
v_lshrrev_b32 v8, 3, v0
v_lshlrev_b32 v8, 11, v8
v_and_b32 v9, 7, v0
v_lshl_add_u32 v8, v9, 7, v8
v_add_u32 v8, s20, v8
global_load_dword v9, v8, s[12:13] sc1''' % HINT)
    a(NONCE)
    for t in CD: a(t)
    a('L_P2:\ns_waitcnt vmcnt(0)\ns_barrier' if opt.get('nv') else 'L_P2:' if opt.get('rs') else 's_waitcnt vmcnt(0)\ns_barrier\nL_P2:' if opt.get('pw2') or opt.get('bb') else 's_waitcnt vmcnt(0)\nL_P2:\ns_barrier')
    if opt.get('pa') and not opt.get('nv'): a('s_waitcnt vmcnt(0)')
    a('L_P3:')
    if opt.get('ah'):
        a('s_mov_b64 exec, 0xff\nglobal_load_dword v9, v55, s[12:13] sc1\ns_mov_b64 exec, -1')
    DB = L_DAT if opt.get('rs') else 0
    a('''
v_lshrrev_b32 v6, 4, v0
v_lshlrev_b32 v{b0}, 12, v6
v_and_b32 v7, 0xc0, v1
v_add_u32 v{b0}, v{b0}, v7
v_and_b32 v6, 1, v6
v_lshl_add_u32 v{b0}, v6, 5, v{b0}
v_and_b32 v6, 3, v0
v_lshl_add_u32 v{b0}, v6, 3, v{b0}
v_add_u32 v{b0}, {db}, v{b0}
v_xor_b32 v{b1}, 32, v{b0}
v_and_b32 v{f}, 31, v0
v_lshrrev_b32 v6, 5, v0
v_lshl_add_u32 v6, v{f}, 1, v6
v_add_u32 v7, 1, v6
v_cmp_ne_u32 vcc, 56, v7
v_mov_b32 v{t}, 0x40000000
v_lshlrev_b32 v6, 4, v6
v_cndmask_b32 v7, 0, v7, vcc
v_cmp_gt_u32 vcc, 28, v{f}
v_sub_u32 v{m}, 880, v6
v_and_b32 v{u}, 1, v7
v_cndmask_b32 v{f}, v{t}, v6, vcc
v_cndmask_b32 v{m}, v{t}, v{m}, vcc
v_lshlrev_b32 v7, 1, v7
v_and_b32 v7, 0x7c, v7
v_lshl_add_u32 v{p}, v{u}, 7, v7
s_lshl_b32 s22, s4, 12
s_add_u32 s22, s22, {db}
s_and_b32 s20, s4, 1
s_lshl_b32 s20, s20, 5
s_sub_u32 s20, 56, s20
s_add_u32 s20, s20, s22
v_and_b32 v{tg}, 0x3c0, v1
v_add_u32 v{tg}, s20, v{tg}
v_lshl_add_u32 v{u}, v1, 2, s20
v_and_b32 v6, 0xf0, v1
v_add_u32 v6, s53, v6
v_add_u32 v7, {cc}, v1
'''.format(cc=L_CONST, db=DB, **V))
    if opt.get('lin2'):
        a('''v_cmp_gt_u32 vcc, 56, v0
s_nop 1
v_cndmask_b32 v{f}, v{t}, v1, vcc
v_cndmask_b32 v{m}, v{t}, v1, vcc'''.format(**V))
    for i in range(16): a('v_mov_b32 v%d, 0' % (CA + i))
    a('''
s_lshl_b32 s21, s4, 8
s_add_u32 s48, s21, s31
s_add_u32 s49, s48, 128
s_cmp_eq_u32 s36, 2
s_cselect_b32 s21, 1023, -1
s_and_b32 s49, s49, s21
s_sub_u32 s50, 2048, s48
s_sub_u32 s51, 2048, s49
s_and_b32 s51, s51, 2047
s_mul_i32 s20, s5, 896
s_mul_i32 s48, s48, 1792
s_mul_i32 s49, s49, 1792
s_mul_i32 s50, s50, 1792
s_mul_i32 s51, s51, 1792
s_add_u32 s48, s48, s20
s_add_u32 s49, s49, s20
s_add_u32 s50, s50, s20
s_add_u32 s51, s51, s20
s_mov_b32 s52, 0xffff
s_mov_b32 s55, %s
s_mov_b32 m0, s22
''' % ('0x40000' if opt.get('stamp') else '0x400000'))
    def const_reads():
        a('s_mov_b32 exec_lo, 0x%x\ns_mov_b32 exec_hi, 0x%x' % (EM_LO, EM_HI))
        for k in range(4): a('ds_read_b128 %s, v6 offset:%d' % (vr(CA + 4 * k), 2048 + 256 * k))
        a('s_mov_b64 exec, -1')
        for i in range(8): a('ds_read_b128 %s, v7 offset:%d' % (vr(CTW + 4 * i), (i >> 1) * 3072 + (i & 1) * 1024))
    if not opt.get('rs'): const_reads()
    ld = opt.get('k2ld', 'sc1')
    sent = opt.get('sent', 0)
    if not opt.get('early') and sent != 2 and not opt.get('pa'): a('s_waitcnt vmcnt(0)')
    stamp(a, opt, 4)
    if opt.get('slp'): a('s_sleep %d' % opt['slp'])
    if opt.get('lw'): a('s_waitcnt lgkmcnt(0)')
    if opt.get('lw') == 2: a('s_barrier')
    if opt.get('eh'):
        a('''s_mov_b64 exec, 0xff
s_waitcnt vmcnt(0)
v_cmp_ne_u32 vcc, s35, v9
s_cbranch_vccz L_POLL0
L_SENT:
global_load_dword v9, v55, s[12:13] sc1
s_waitcnt vmcnt(0)
v_cmp_ne_u32 vcc, s35, v9
s_cbranch_vccz L_SENT2
s_sub_u32 s55, s55, 1
s_cbranch_scc0 L_SENT
L_SENT2:''')
        for i in range(opt['eh'] - 1): a('global_load_dword v9, v55, s[12:13] sc1\ns_waitcnt vmcnt(0)')
    elif opt.get('ah'):
        a('''s_mov_b64 exec, 0xff
L_SENT:
s_waitcnt vmcnt(0)
v_cmp_ne_u32 vcc, s35, v9
s_and_b64 exec, exec, vcc
s_cbranch_scc0 L_POLL0
global_load_dword v9, v55, s[12:13] sc1
s_sub_u32 s55, s55, 1
s_cbranch_scc0 L_SENT''')
    elif opt.get('xh'):
        a('''s_cmp_lt_u32 s2, 256
s_cbranch_scc1 L_POLL0
s_lshl_b32 s20, s5, 10
s_add_u32 s20, s20, %d
v_lshl_add_u32 v8, v1, 3, s20
s_mov_b64 exec, 0xff
L_SENT:
global_load_dword v9, v8, s[12:13] sc1
s_waitcnt vmcnt(0)
v_cmp_ne_u32 vcc, s35, v9
s_and_b64 exec, exec, vcc
s_cbranch_scc0 L_POLL0
s_sub_u32 s55, s55, 1
s_cbranch_scc0 L_SENT''' % HINT)
    else:
        if sent:
            a('s_mov_b32 exec_lo, 0x%x\ns_mov_b32 exec_hi, 0x%x' % ((opt.get('sm', 0x0f0f0f0f),) * 2))
        else:
            a('s_cmp_lt_u32 s2, 256\ns_cbranch_scc1 L_POLL0\ns_mov_b64 exec, 15')
        a('''
L_SENT:
buffer_load_dwordx4 v1, s[12:15], s54 offen {ld} lds
s_waitcnt vmcnt(0)
ds_read_b64 v[8:9], v{tg}
s_waitcnt lgkmcnt(0)
v_cmp_ne_u32 vcc, s35, v9
s_cbranch_vccz L_POLL0
s_sub_u32 s55, s55, 1
s_cbranch_scc0 L_SENT'''.format(ld=ld, **V))
    a('''
L_POLL0:
s_mov_b64 exec, -1
'''.format(ld=ld, **V))
    for k in range(4): a('buffer_load_dwordx4 v1, s[12:15], s54 offen offset:%d %s lds' % (1024 * k, opt.get('ld1', ld)))
    if opt.get('rs'):
        a('s_barrier')
        const_reads()
    a('s_branch L_CHK\nL_POLL:')
    for k in range(4):
        a('s_mov_b64 exec, s[%d:%d]\ns_cbranch_execz L_NO%d' % (56 + 2 * k, 57 + 2 * k, k))
        a('buffer_load_dwordx4 v1, s[12:15], s54 offen offset:%d %s lds' % (1024 * k, ld))
        a('L_NO%d:' % k)
    a('s_mov_b64 exec, -1\nL_CHK:\ns_waitcnt vmcnt(0)')
    if not opt.get('slowchk'):
        a('''ds_read_b64 v[8:9], v{u}
s_waitcnt lgkmcnt(0)
v_and_b32 v8, 0xffff0000, v8
v_cmp_ne_u64 vcc, s[34:35], v[8:9]
s_cbranch_vccz L_GO'''.format(**V))
    for k in range(4): a('ds_read_b64 %s, v%d offset:%d' % (vr(8 + 2 * k, 2), V['tg'], 1024 * k))
    for k in range(4):
        a('s_waitcnt lgkmcnt(%d)' % (3 - k))
        a('v_and_b32 v%d, 0xffff0000, v%d' % (8 + 2 * k, 8 + 2 * k))
        a('v_cmp_ne_u64 s[%d:%d], s[34:35], %s' % (56 + 2 * k, 57 + 2 * k, vr(8 + 2 * k, 2)))
    a('''
s_or_b64 s[64:65], s[56:57], s[58:59]
s_or_b64 s[66:67], s[60:61], s[62:63]
s_or_b64 s[64:65], s[64:65], s[66:67]
s_cbranch_scc0 L_GO
s_sub_u32 s55, s55, 1
s_cbranch_scc0 L_POLL
L_GO:
''')
    stamp(a, opt, 5)
    if opt.get('stamp') and not opt.get('prof'): a('s_waitcnt lgkmcnt(0)')
    a('s_cmp_ge_u32 s2, 256\ns_barrier\ns_cbranch_scc1 L_ONE')
    pstamp(a, opt, 4)
    a('; phase 2')
    order = [(ta, kap, sub) for ta in range(2) for kap in range(4) for sub in range(2)]
    DA = lambda ta, sub: 8 + 4 * (sub + 2 * ta)
    OPR = lambda i: 24 + 4 * i
    def rd(i):
        ta, kap, sub = order[i]
        t = ['ds_read_b64_tr_b16 %s, v%d offset:%d' % (vr(OPR(i) + 2 * hh, 2), V['b0'] + ta, (4 * kap + 2 * hh) * 128 + sub * 2048) for hh in range(2)]
        return [t[0], ('T', i, t[1])]
    def mf(i):
        ta, kap, sub = order[i]
        return '%s %s, %s, %s, %s' % (M32, vr(DA(ta, sub)), vr(CA + 4 * kap), vr(OPR(i)), vr(DA(ta, sub)) if kap else '0')
    A1 = lambda tl, ta: 88 + 2 * (tl + 2 * ta)
    def cv(ta):
        return ['v_cvt_pk_bf16_f32 v%d, v%d, v%d' % (A1(tl, ta) + p, DA(ta, p) + 2 * tl, DA(ta, p) + 2 * tl + 1) for tl in range(2) for p in range(2)]
    D1 = lambda tl, ta, c: 96 + 4 * (c + 2 * tl) if ta == 0 else 112 + 4 * (c + 2 * tl)
    def b1(tl, ta, c):
        return '%s %s, %s, %s, 0' % (M16, vr(D1(tl, ta, c)), vr(A1(tl, ta), 2), vr(CB1 + 2 * c, 2))
    HT = lambda tl, ta: 24 + 8 * (tl + 2 * ta)
    HP = lambda tl, ta: 8 + 4 * tl if ta == 0 else 56 + 4 * tl
    def tw(tl, ta):
        r, i, h, co, si = D1(tl, ta, 0), D1(tl, ta, 1), HT(tl, ta), CTW + 8 * ta, CTW + 4 + 8 * ta
        o = []
        for x, y, c in ((r, i, co), (i, r, si), (r, i, co)):
            if '%d%d' % (tl, ta) in str(opt.get('pk', '')).split(','):
                o += ['v_pk_fma_f32 %s, %s, %s, %s' % (vr(x + q, 2), vr(c + q, 2), vr(y + q, 2), vr(x + q, 2)) for q in (0, 2)]
            else:
                o += ['v_fmac_f32 v%d, v%d, v%d' % (x + q, c + q, y + q) for q in range(4)]
        n = len(o) // 3
        o = o[:2 * n] + [t + ' ' for t in o[2 * n:]]
        for q in range(4):
            o.append('v_cvt_pk_bf16_f32 v%d, v%d, v%d' % (HP(tl, ta) + q, (r, r, i, i)[q] + 2 * (q & 1), (r, r, i, i)[q] + 2 * (q & 1) + 1))
        return o
    D2 = lambda tl, mu: 64 + 4 * (mu + 2 * tl)
    def b2(tl, mu, ta):
        return '%s %s, %s, %s, %s' % (M32, vr(D2(tl, mu)), vr(HP(tl, ta)), vr(CB2 + 4 * (2 * mu + ta)), vr(D2(tl, mu)) if ta else '0')
    F = lambda tl: 80 + 4 * tl
    M = lambda tl: 96 + 4 * tl
    st = opt.get('k2st', 'sc1')
    def fin(tl):
        o = []
        for mu in range(2):
            for h in range(2):
                o.append('v_cvt_pk_bf16_f32 v%d, v%d, v%d' % (F(tl) + 2 * mu + h, D2(tl, mu) + 2 * h, D2(tl, mu) + 2 * h + 1))
        return o
    def fin2(tl):
        return ['v_permlane16_swap_b32 v%d, v%d' % (F(tl), F(tl) + 2),
                'v_permlane16_swap_b32 v%d, v%d' % (F(tl) + 1, F(tl) + 3),
                'ds_bpermute_b32 v%d, v%d, v%d' % (2 + tl, V['p'], F(tl)),
                'buffer_store_dwordx4 %s, v%d, s[44:47], s%d offen %s' % (vr(F(tl)), V['f'], 48 + tl, st)]
    def mir(tl):
        return ['v_bfi_b32 v%d, s52, v%d, v%d' % (M(tl) + q, F(tl) + 4 - q, F(tl) + 3 - q) for q in (1, 2, 3)]
    def mir2(tl):
        return ['v_bfi_b32 v%d, s52, v%d, v%d' % (M(tl), 2 + tl, F(tl) + 3),
                'buffer_store_dwordx4 %s, v%d, s[44:47], s%d offen %s' % (vr(M(tl)), V['m'], 50 + tl, st)]
    t00, t10, t01, t11 = tw(0, 0), tw(1, 0), tw(0, 1), tw(1, 1)
    seq = R(*range(16)) + [mf(i) for i in range(8)] + cv(0) + [b1(0, 0, 0), b1(0, 0, 1), b1(1, 0, 0), b1(1, 0, 1)]
    seq += [mf(i) for i in range(8, 16)] + t00 + t10 + cv(1) + [b1(0, 1, 0), b1(0, 1, 1), b1(1, 1, 0), b1(1, 1, 1)]
    seq += [b2(0, 0, 0), b2(0, 1, 0), b2(1, 0, 0), b2(1, 1, 0)] + t01 + [b2(0, 0, 1), b2(0, 1, 1)] + t11 + [b2(1, 0, 1), b2(1, 1, 1)]
    seq += fin(0) + fin2(0) + mir(0) + mir2(0) + fin(1) + fin2(1) + mir(1) + mir2(1)
    bo = cv(0) + [b1(0, 0, 0), b1(0, 0, 1), b1(1, 0, 0), b1(1, 0, 1)] + [mf(i) for i in range(8)] if not opt.get('nob') else []
    bo2 = bo
    if opt.get('t0') == 1:
        bo2 = bo + t00 + cv(1)[:2] + [b1(0, 1, 0), b1(0, 1, 1), b2(0, 0, 0), b2(0, 1, 0)] + t01 + [b2(0, 0, 1), b2(0, 1, 1)] + fin(0) + fin2(0) + mir(0) + mir2(0)
    if opt.get('t0') == 2:
        bo2 = bo + t01 + [b2(0, 0, 1), b2(0, 1, 1)] + fin(0) + fin2(0) + mir(0) + mir2(0)
    for t in schedule(seq, boost=bo2, verbose=opt.get('v'), **SO): a(t)
    a('s_branch L_FIN\nL_ONE:\ns_cmp_lg_u32 s4, 0\ns_cbranch_scc1 L_FIN')
    seq = R(*range(16)) + [mf(i) for i in range(8)] + cv(0)[:2] + [b1(0, 0, 0), b1(0, 0, 1)]
    seq += [mf(i) for i in range(8, 16)] + t00 + cv(1)[:2] + [b1(0, 1, 0), b1(0, 1, 1), b2(0, 0, 0), b2(0, 1, 0)] + t01 + [b2(0, 0, 1), b2(0, 1, 1)]
    seq += fin(0) + fin2(0)[:2] + fin2(0)[3:]
    for t in schedule(seq, boost=bo, verbose=opt.get('v'), **SO): a(t)
    a('''
s_lshl_b32 s20, s5, 7
s_add_u32 s20, s20, %d
v_mov_b32 v4, s20
v_mov_b32 v6, s34
v_mov_b32 v7, s35
s_mov_b64 exec, 1
global_store_dwordx2 v4, v[6:7], s[12:13]
s_mov_b64 exec, -1
''' % CELL)
    a('L_FIN:')
    stamp_out(a, opt, 8)
    a('L_END:\ns_endpgm')
    return a.finish(opt.get('v'))

def build(opt):
    tabs = d3.build_tables()
    hdr = open('cdna_kernels/%s.s.ref' % NAME).read().split('; Override launch')[0]
    s = hdr
    if opt.get('diag'):
        s += '; @launch kernel=%s grid=(%d,1,1) block=(256,1,1) lds=%d\n' % (KN, NWG, LDS + (16384 if opt.get('rs') else 0))
        s += '; @launch kernel=k3_kernel grid=(1,1,1) block=(64,1,1) lds=0\n'
    else:
        s += '; @launch grid=(%d,1,1) block=(256,1,1) lds=%d\n' % (NWG, LDS + (16384 if opt.get('rs') else 0))
    s += DOC
    s += '.amdgcn_target "amdgcn-amd-amdhsa--gfx950"\n.text\n'
    s += '.globl %s\n.p2align 8\n.type %s,@function\n' % (KN, KN) + gen(opt)
    if opt.get('diag'):
        s += '.globl k3_kernel\n.p2align 8\n.type k3_kernel,@function\n' + gen_k3(opt, [opt.get('nw', 1024)])
    s += '.p2align 8\n.type K2_TAB,@object\nK2_TAB:\n' + emit_data(k2_table(tabs))
    s += '.section .rodata,"a"\n' + kd(KN, 212 if opt.get('sp') else 196, 96)
    if opt.get('diag'):
        s += kd('k3_kernel', 8, 32)
    return s

if __name__ == '__main__':
    out = sys.argv[1]
    opt = {}
    for kv in sys.argv[2:]:
        k, _, v = kv.partition('=')
        opt[k] = int(v) if v.lstrip('-').isdigit() else (v.replace('+', ' ') if v else 1)
    s = build(opt)
    open(out, 'w').write(s)
    print(out, len(s), 'bytes')
```

```python
import sys, numpy as np
from asmlib import Asm
from sched import schedule
import design as dz
import design3 as d3
from gen import gen_k3, NAME, XB, OUTB, vr, op_bytes, emit_data, kd

KN = NAME + '_kernel'
NWG = 258
CH = 16384
WSB = 2 * 72 * CH
CELL = WSB
HINT = WSB + 1024
L_CONST = 16384
L_STG = 28672
L_DAT = L_STG + 4 * 2304
LDS = L_DAT
SB = 72
EM_LO, EM_HI = 0x00F0000F, 0xF0000F00
M32 = 'v_mfma_f32_16x16x32_bf16'
M16 = 'v_mfma_f32_16x16x16_bf16'


DOC = """;
;
"""

def pstamp(a, opt, i):
    if opt.get('prof'):
        a('s_memtime s[%d:%d]' % (SB + 2 * i, SB + 1 + 2 * i))

def stamp(a, opt, i):
    if opt.get('stamp') and not opt.get('prof'):
        a('s_memrealtime s[%d:%d]' % (SB + 2 * i, SB + 1 + 2 * i))

def stamp_out(a, opt, n):
    if not opt.get('stamp'):
        return
    stamp(a, opt, n - 2)
    if opt.get('prof'): n = opt['prof']; pstamp(a, opt, n - 1)
    a('s_waitcnt vmcnt(0)')
    stamp(a, opt, n - 1)
    a('s_getreg_b32 s58, hwreg(HW_REG_XCC_ID)')
    a('s_getreg_b32 s59, hwreg(HW_REG_HW_ID)')
    a('s_lshl_b32 s62, s2, 2\ns_add_u32 s62, s62, s4\ns_lshl_b32 s62, s62, 6\ns_add_u32 s62, s62, %d' % (16 << 20))
    a('s_load_dwordx2 s[12:13], s[0:1], 96')
    a('s_waitcnt lgkmcnt(0)\ns_add_u32 s60, s12, s62\ns_addc_u32 s61, s13, 0')
    a('v_mov_b32 v0, 0')
    for i in range(n):
        a('v_mov_b32 v1, s%d\nglobal_store_dword v0, v1, s[60:61] offset:%d' % (SB + 2 * i, 4 * i))
    a('v_mov_b32 v1, s55\nglobal_store_dword v0, v1, s[60:61] offset:52')
    a('v_mov_b32 v1, s58\nglobal_store_dword v0, v1, s[60:61] offset:56')
    a('v_mov_b32 v1, s59\nglobal_store_dword v0, v1, s[60:61] offset:60')

def k2_table(tabs):
    b = b''
    for ta in range(2):
        for x in tabs['k2tw'][ta]:
            b += x.astype('<f4').tobytes()
    for mu in range(2):
        for ta in range(2):
            b += op_bytes(tabs['k2B2'][mu][ta])
    b += op_bytes(np.concatenate(tabs['k2B1'], axis=1))
    act = [l for l in range(64) if ((l & 15) >> 2) == (l >> 4)]
    for v in range(5):
        for w in range(4):
            for k in range(4):
                b += op_bytes(tabs['k2A'][v][w][k][act])
    return b

CA, CB1, CTW, CB2 = 128, 144, 148, 164
VA = 180

def paired(a, rd, mf, after, n=16, depth=7):
    for i in range(depth): rd(i)
    issued = depth
    for k in range(n // 2):
        a('s_waitcnt lgkmcnt(%d)' % (2 * (issued - 2 * k - 2)))
        mf(2 * k); mf(2 * k + 1)
        for _ in range(2):
            if issued < n:
                rd(issued); issued += 1
        for t in after.get(k, []): a(t)

def emit(a, seq):
    pos = {}; n = 0
    for it in seq:
        if isinstance(it, tuple) and it[0] == 'W':
            a('s_waitcnt lgkmcnt(%d)' % (n - pos[it[1]]))
            continue
        if isinstance(it, tuple):
            _, key, it = it
            pos[key] = n + 1
        if it.startswith('ds_'): n += 1
        a(it)

def zipm(*lists):
    tot = sum(len(l) for l in lists); idx = [0] * len(lists); o = []
    for k in range(tot):
        j = min((j for j in range(len(lists)) if idx[j] < len(lists[j])), key=lambda j: (idx[j] + 0.5) / len(lists[j]))
        o.append(lists[j][idx[j]]); idx[j] += 1
    return o

def mix(xs, ys, step, first=0):
    ys = list(ys); o = []
    for n, x in enumerate(xs):
        if n >= first and (n - first) % step == 0 and ys:
            o.append(ys.pop(0))
        o.append(x)
    return o + ys

def gen(opt):
    a = Asm()
    SO = dict(ds_lat=opt.get('lat', 64), ds_gap=opt.get('gap', 83) / 10., slack=opt.get('slack', -20))
    CP = CH + opt.get('cp', 0); SK = opt.get('sk', 0); BR = 72 * CH if CP != CH or SK else 64 * CH
    assert 64 * CP + 4 * SK <= BR
    V = dict(b0=VA, b1=VA + 1, f=VA + 2, m=VA + 3, p=VA + 4, tg=VA + 5, t=VA + 6, u=VA + 7)
    a('''
%s:
s_bfe_u32 s5, s2, 0x10003
s_mul_i32 s7, s5, 40
s_load_dwordx2 s[8:9], s[0:1], s7
s_load_dwordx2 s[12:13], s[0:1], 96
s_load_dwordx2 s[44:45], s[0:1], 80
s_cmp_ge_u32 s2, %d
s_cbranch_scc1 L_END
''' % (KN, NWG))
    stamp(a, opt, 0)
    a('''
v_lshrrev_b32 v6, 6, v0
v_and_b32 v0, 63, v0
v_readfirstlane_b32 s4, v6
s_and_b32 s33, s2, 7
s_lshr_b32 s6, s2, 5
s_sub_u32 s3, 16, s33
s_cmp_eq_u32 s33, 0
s_cselect_b32 s3, 8, s3
s_bfe_u32 s36, s2, 0x10004
s_cselect_b32 s3, s3, s33
s_sub_u32 s32, 16, s3
s_and_b32 s32, s32, 15
v_lshrrev_b32 v6, 4, v0
v_bfe_u32 v7, v0, 2, 2
v_mul_u32_u24 v2, 14336, v6
v_mul_u32_u24 v7, 114688, v7
v_lshrrev_b32 v3, 3, v0
v_and_b32 v3, 2, v3
v_xor_b32 v4, v3, v0
v_and_b32 v4, 3, v4
v_lshlrev_b32 v4, 4, v4
v_add3_u32 v2, v2, v7, v4
s_lshl_b32 s39, s4, %d
s_add_u32 m0, s39, 2048
s_mul_i32 s20, s4, %d
s_and_b32 s37, s6, 1
s_mul_i32 s21, s6, 7
s_sub_u32 s21, s21, s37
s_lshl_b32 s21, s21, 3
s_mul_i32 s24, s3, 896
s_mul_i32 s26, s32, 896
s_add_u32 s24, s24, s20
s_add_u32 s26, s26, s20
s_add_u32 s24, s24, s21
s_sub_u32 s26, s26, s21
s_add_u32 s25, s24, 56320
s_add_u32 s27, s26, %d
s_add_u32 s26, s26, %d
''' % ((13, 917504) if opt.get('pw2') else (12, 458752)).__add__((832 + 56320, 832)))
    if opt.get('al'):
        for r in (24, 25, 26, 27): a('s_and_b32 s%d, s%d, %d' % (r, r, -opt['al']))
    if opt.get('pf'):
        a('''v_cmp_le_u32 vcc, 28, v0
v_lshlrev_b32 v9, 5, v0
v_add_u32 v8, 13440, v9
v_cndmask_b32 v9, v9, v8, vcc
v_cmp_gt_u32 vcc, 56, v0
v_mov_b32 v8, 0x40000000
s_lshl_b32 s23, s6, 2
s_add_u32 s23, s23, s4
s_lshl_b32 s23, s23, 6
s_add_u32 s23, s23, s3
s_mul_i32 s23, s23, 896
s_add_u32 s38, s23, 28672
v_cndmask_b32 v9, v8, v9, vcc''')
        if opt.get('pl'):
            a('''v_lshlrev_b32 v9, 5, v0
s_lshr_b32 s23, s2, 4
s_lshl_b32 s23, s23, 3
s_add_u32 s23, s23, s33
s_lshl_b32 s23, s23, 2
s_add_u32 s23, s23, s4
s_mul_i32 s23, s23, 3584
s_add_u32 s38, s23, 1792
v_cndmask_b32 v9, v8, v9, vcc''')
        if opt.get('p64') == 2:
            a('''v_cmp_gt_u32 vcc, 28, v0
v_mul_u32_u24 v9, 9363, v0
v_lshrrev_b32 v9, 16, v9
v_mul_u32_u24 v9, 13440, v9
v_lshl_add_u32 v9, v0, 7, v9
v_cndmask_b32 v9, v8, v9, vcc''')
        if opt.get('p64') == 1:
            a('''v_mul_u32_u24 v9, 4682, v0
v_lshrrev_b32 v9, 16, v9
v_mul_u32_u24 v9, 13440, v9
v_lshl_add_u32 v9, v0, 6, v9
v_cndmask_b32 v9, v8, v9, vcc''')
    a('''
s_mov_b32 s10, %d
s_mov_b32 s11, 0x20000
s_mov_b32 s14, %d
s_mov_b32 s15, 0x20000
s_and_b32 s20, s2, 1
s_cmp_ge_u32 s2, 256
s_cselect_b32 s5, s20, s5
s_lshl_b32 s20, s5, 7
s_add_u32 s20, s20, %d
v_lshlrev_b32 v1, 4, v0
s_cmp_ge_u32 s2, 256
s_waitcnt lgkmcnt(0)
''' % (XB, WSB, CELL))
    if opt.get('wo'): a('s_add_u32 s12, s12, %d\ns_addc_u32 s13, s13, 0\ns_cmp_ge_u32 s2, 256' % (opt['wo'] << 20))
    stamp(a, opt, 1)
    a('s_cbranch_scc1 L_SKIP1')
    PF = 'buffer_load_dword v57, v9, s[8:11], s23 offen %s\nbuffer_load_dword v58, v9, s[8:11], s38 offen %s' % ((opt.get('pff', ''),) * 2)
    xp = opt.get('xp', 0)
    if opt.get('p64'): PF = PF.split('\n')[0]
    if opt.get('pf') in (1, 2):
        a(PF)
        if opt['pf'] == 2: a('s_barrier')
    XD = '''
buffer_load_dwordx4 v2, s[8:11], s26 offen lds
buffer_load_dwordx4 v2, s[8:11], s27 offen offset:1024 lds
s_mov_b32 m0, s39
buffer_load_dwordx4 v2, s[8:11], s24 offen lds
buffer_load_dwordx4 v2, s[8:11], s25 offen offset:1024 lds
'''.replace(' lds', ' %s lds' % opt.get('xf', ''))
    if opt.get('pw2'):
        a('s_cmp_ge_u32 s4, 2\ns_cbranch_scc1 L_PRE')
        a(XD)
        a('s_add_u32 m0, s22, 6144\ns_add_u32 s22, s22, 4096')
        for r in (24, 25, 26, 27): a('s_add_u32 s%d, s%d, 458752' % (r, r))
        a(XD)
        a('''s_branch L_PRE2
L_PRE:
v_lshrrev_b32 v5, 3, v0
v_lshlrev_b32 v5, 14, v5
v_and_b32 v7, 0x70, v1
v_add_u32 v5, v5, v7
s_lshl_b32 s21, s5, 20
s_lshl_b32 s23, s3, 7
s_add_u32 s21, s21, s23
s_lshl_b32 s23, s6, 11
s_add_u32 s21, s21, s23
s_and_b32 s23, s4, 1
s_lshl_b32 s23, s23, 19
s_add_u32 s24, s21, s23
s_add_u32 s25, s24, 0x20000
s_add_u32 s26, s24, 0x40000
s_add_u32 s27, s24, 0x60000''')
        for i in range(4): a('v_mov_b32 v%d, 2.0' % (48 + i))
        for r in (24, 25, 26, 27): a('buffer_store_dwordx4 v[48:51], v5, s[12:15], s%d offen sc1' % r)
        a('L_PRE2:')
    elif xp == 0:
        a(XD)
        if opt.get('pf') == 3: a(PF)
    a('''
L_SKIP1:
s_load_dwordx2 s[34:35], s[12:13], s20
s_lshl_b32 s22, s4, 12
s_mov_b32 s46, %d
s_mov_b32 s47, 0x20000
''' % OUTB)
    if opt.get('ah'):
        a('''s_getreg_b32 s20, hwreg(HW_REG_XCC_ID, 0, 3)
s_lshl_b32 s20, s20, 1
s_add_u32 s20, s20, s5
s_lshl_b32 s20, s20, 10
s_add_u32 s20, s20, %d
v_lshl_add_u32 v55, v1, 3, s20''' % HINT)
        if opt.get('aw') == 1:
            a('s_mov_b64 exec, 0xff\nglobal_load_dword v52, v55, s[12:13] sc1\ns_mov_b64 exec, -1')
    a('''
s_getpc_b64 s[16:17]
L_PC:
s_lshl_b32 s20, s6, 3
s_add_u32 s33, s33, s20
s_lshl_b32 s31, s36, 10
s_add_u32 s31, s31, s33
s_lshr_b32 s21, 128, s36
s_cmp_eq_u32 s33, 0
s_cselect_b32 s31, s21, s31
s_cselect_b32 s20, 2, 0
s_add_u32 s36, s20, s36
s_cmp_ge_u32 s2, 256
s_cselect_b32 s33, 0, s33
s_cselect_b32 s36, 4, s36
s_cselect_b32 s31, 1024, s31
s_add_u32 s16, s16, K2_TAB-L_PC
s_addc_u32 s17, s17, 0
s_add_u32 s40, s16, 8192
s_addc_u32 s41, s17, 0
s_lshl_b32 s20, s36, 12
s_lshl_b32 s21, s4, 10
s_add_u32 s20, s20, s21
s_add_u32 s20, s20, 7168
s_add_u32 s18, s16, s20
s_addc_u32 s19, s17, 0
s_lshl_b32 s21, s4, 11
s_add_u32 s16, s16, s21
s_addc_u32 s17, s17, 0
s_mul_i32 s53, s4, 3072
s_add_u32 s53, s53, %d
s_mul_i32 s20, s5, %d
s_mul_i32 s21, s33, %d
s_add_u32 s54, s20, s21
s_lshr_b32 s21, s33, 4
s_mul_i32 s21, s21, %d
s_add_u32 s54, s54, s21
s_add_u32 s54, s54, s22
s_cmp_ge_u32 s2, 256
s_cbranch_scc1 L_CONS
''' % (L_CONST, BR, CP, SK))
    CD = ['s_mov_b32 m0, s53',
          'global_load_dwordx4 %s, v1, s[40:41]' % vr(CB1),
          'global_load_lds_dwordx4 v1, s[16:17]',
          'global_load_lds_dwordx4 v1, s[16:17] offset:1024',
          'global_load_lds_dwordx4 v1, s[18:19] offset:2048']
    a('''v_bfe_u32 v5, v0, 3, 2
v_mul_u32_u24 v5, {c16}, v5
v_and_b32 v7, 0x70, v1
v_add_u32 v5, v5, v7
s_lshl_b32 s21, s4, 2
s_sub_u32 s22, 14, s21
s_sub_u32 s21, 16, s21
s_cmp_eq_u32 s4, 0
s_cselect_b32 s21, 8, s21
s_mul_i32 s21, s21, {cp}
s_mul_i32 s22, s22, {cp}
v_lshrrev_b32 v7, 5, v0
v_mad_u32_u24 v53, v7, s22, v5
v_mad_u32_u24 v5, v7, s21, v5
s_mul_i32 s20, s5, {br}
s_lshl_b32 s21, s3, 7
s_add_u32 s20, s20, s21
s_lshl_b32 s21, s6, 11
s_add_u32 s20, s20, s21
s_mul_i32 s21, s4, {c2}
s_add_u32 s28, s20, s21
s_add_u32 s29, s28, {cp}
'''.format(c16=16 * CP + SK, cp=CP, c2=2 * CP, br=BR))
    if opt.get('pre'):
        for i in range(4): a('v_mov_b32 v%d, 2.0' % (48 + i))
        PRE = ['buffer_store_dwordx4 v[48:51], v5, s[12:15], s28 offen %s' % opt.get('prest', 'sc1'),
               'buffer_store_dwordx4 v[48:51], v53, s[12:15], s29 offen %s' % opt.get('prest', 'sc1')]
        if opt['pre'] == 1:
            for t in PRE: a(t)
            a('s_nop 1')
    pw = opt.get('pw', 0)
    PW = []
    if pw:
        if opt.get('pwh'):
            a('s_lshl_b32 s20, s36, 11\ns_add_u32 s37, s54, s20\nv_lshlrev_b32 v55, 5, v0')
        else:
            a('s_mov_b32 s37, s54\nv_lshlrev_b32 v55, 6, v0')
        PW = ['buffer_load_dword v48, v55, s[12:15], s37 offen sc1']
    if opt.get('cde'):
        for t in CD: a(t)
    if pw == 2:
        for t in PW: a(t)
    if xp == 1: a(XD)
    a('''
s_lshl_b32 s20, s4, 1
v_bfe_u32 v32, v0, 1, 1
v_add_u32 v32, s20, v32
v_and_b32 v33, 1, v0
v_cmp_eq_u32 vcc, 0, v32
v_lshlrev_b32 v34, 3, v33
v_lshlrev_b32 v35, 2, v33
v_cndmask_b32 v32, v32, v34, vcc
v_cndmask_b32 v35, v35, 0, vcc
v_and_b32 v34, 1, v32
v_cvt_f32_u32 v32, v32
v_cvt_f32_u32 v35, v35
v_mul_u32_u24 v34, 0x8000, v34
v_mul_f32 v32, 0x3d800000, v32
v_mul_f32 v35, 0x3d800000, v35
v_lshl_or_b32 v34, v34, 16, v34
''')
    for i in range(8, 12): a('v_mov_b32 v%d, 0' % i)
    a('s_mov_b32 exec_lo, 0x%x\ns_mov_b32 exec_hi, 0x%x' % (EM_LO, EM_HI))
    for p in range(4):
        a('v_cos_f32 v36, v35\nv_add_f32 v35, v35, v32\nv_cos_f32 v37, v35')
        a('v_add_f32 v35, v35, v32' if p < 3 else 's_nop 0')
        a('v_cvt_pk_bf16_f32 v%d, v36, v37' % (8 + p))
    a('s_mov_b64 exec, -1')
    for p in range(4): a('v_xor_b32 v%d, v34, v%d' % (12 + p, 8 + p))
    if xp == 2: a(XD)
    a('''
v_lshlrev_b32 v38, 3, v0
v_and_b32 v38, 0x30, v38
v_and_b32 v39, 0x30, v0
v_add_u32 v40, s32, v39
v_add_u32 v39, s3, v39
v_and_b32 v47, 8, v0
v_cmp_ne_u32 s[56:57], 0, v47
v_cvt_f32_u32 v39, v39
v_cvt_f32_u32 v40, v40
v_cvt_f32_u32 v48, v33
v_sub_u32 v45, -16, v38
v_mul_f32 v39, 0x3a000000, v39
v_mul_f32 v40, 0x3a000000, v40
v_cndmask_b32 v45, v38, v45, s[56:57]
v_mul_f32 v49, 0x3e800000, v48
v_mul_f32 v50, 0.5, v48
v_add_u32 v45, s20, v45
v_add_f32 v43, v49, v50
v_add_u32 v46, 1, v45
v_cndmask_b32 v43, v49, v43, s[56:57]
v_add_f32 v44, v43, v50
v_mov_b32 v41, v43
v_mov_b32 v42, v44
s_cmp_lg_u32 s4, 0
s_cbranch_scc1 L_REG
v_cvt_f32_u32 v51, v6
v_add_u32 v45, v47, v38
v_and_b32 v56, 14, v0
v_add_f32 v41, 0x3e800000, v49
v_cmp_eq_u32 vcc, 0, v56
v_mul_f32 v51, v51, v50
v_cndmask_b32 v41, v49, v41, s[56:57]
s_cmp_eq_u32 s3, 0
s_cselect_b64 s[58:59], vcc, 0
v_cndmask_b32 v41, v41, v51, vcc
v_add_f32 v42, v41, v50
v_cndmask_b32 v42, v42, v41, s[58:59]
L_REG:
v_cvt_f32_i32 v45, v45
v_cvt_f32_i32 v46, v46
''')
    for al in range(2):
        a('v_mul_f32 v47, 0x3d000000, v%d' % (45 + al))
        for win in range(2):
            a('v_fma_f32 v50, v%d, v%d, v%d' % (45 + al, 39 + win, 41 + 2 * al + win))
            a('v_cos_f32 v36, v50\nv_sin_f32 v37, v50\nv_add_f32 v50, v50, v47')
            a('v_cvt_pk_bf16_f32 v%d, v36, v37' % (16 + 4 * al + 2 * win))
            a('v_cos_f32 v36, v50\nv_sin_f32 v37, v50\ns_nop 0')
            a('v_cvt_pk_bf16_f32 v%d, v36, v37' % (17 + 4 * al + 2 * win))
    a('''
s_cmp_lg_u32 s4, 0
s_cbranch_scc1 L_REG2
v_mov_b32 v36, 0xffff
v_not_b32 v37, v36
v_cndmask_b32 v36, v36, v37, s[56:57]
''')
    for p in range(4): a('v_and_b32 v%d, v36, v%d' % (16 + p, 16 + p))
    a('L_REG2:')
    if xp == 3: a(XD)
    a('''
v_and_b32 v36, 15, v0
v_lshl_add_u32 v37, v6, 2, v36
v_sub_u32 v38, 28, v37
v_sub_u32 v37, 12, v37
v_mov_b32 v41, 0
v_mov_b32 v42, 0x3f80
v_cmp_gt_u32 vcc, 4, v38
v_lshlrev_b32 v38, 4, v38
v_mov_b32 v30, 0
v_cndmask_b32 v40, 0, v42, vcc
v_cmp_gt_u32 vcc, 4, v37
v_lshlrev_b64 v[24:25], v38, v[40:41]
v_lshlrev_b32 v37, 4, v37
v_cndmask_b32 v40, 0, v42, vcc
s_mul_i32 s21, s37, 0x3f80
v_lshlrev_b64 v[26:27], v37, v[40:41]
v_mov_b32 v31, 0
v_mov_b32 v28, v26
v_mov_b32 v29, v27
v_writelane_b32 v26, s21, 48
v_writelane_b32 v28, s21, 12
''')
    a('''
v_lshlrev_b32 v3, 4, v3
v_and_b32 v4, 3, v0
v_and_b32 v7, 0x3c0, v1
s_xor_b32 s21, s37, 1
v_add_lshl_u32 v48, v4, s21, 3
v_add_lshl_u32 v49, v4, s37, 3
v_xor_b32 v48, v48, v3
v_xor_b32 v3, v49, v3
v_add_u32 v48, v48, v7
v_add_u32 v3, v3, v7
v_xor_b32 v49, 32, v48
s_mul_i32 s20, s4, 2304
s_add_u32 s20, s20, %d
v_lshrrev_b32 v2, 2, v0
v_mul_u32_u24 v2, 72, v2
v_lshl_add_u32 v2, v4, 4, v2
v_add_u32 v2, s20, v2
v_xor_b32 v4, 32, v3
s_lshl_b32 s21, s6, 4
s_and_b32 s21, s21, 32
s_add_u32 s22, s20, s21
s_xor_b32 s21, s21, 32
s_add_u32 s23, s20, s21
v_mul_u32_u24 v7, 72, v36
v_lshl_add_u32 v7, v6, 3, v7
v_add_u32 v6, s22, v7
v_add_u32 v7, s23, v7
s_mul_i32 s30, s37, 0xffff
''' % L_STG)
    NONCE = '''
s_waitcnt lgkmcnt(0)
s_or_b32 s34, s34, 0x40000000
s_or_b32 s35, s35, 0x40004000
s_add_u32 s34, s34, 0x2b150000
s_add_u32 s35, s35, 0x1e3739b9
s_and_b32 s34, s34, 0xbfff0000
s_and_b32 s35, s35, 0xbfffbfff
'''
    a(NONCE)
    if opt.get('pre', 0) >= 2:
        for i in range(4): a('v_mov_b32 v%d, 2.0' % (48 + i))
    a('s_mov_b32 s56, 0\ns_mov_b32 s57, 0xffff0000\nv_mov_b32 v54, s34')
    if opt.get('pw2'): a('s_cmp_ge_u32 s4, 2\ns_cbranch_scc1 L_NOXW')
    a('s_waitcnt vmcnt(%d)\nL_NOXW:' % (2 if opt.get('sp') else 0))
    stamp(a, opt, 2)
    if opt.get('stamp') and not opt.get('prof'): a('s_waitcnt lgkmcnt(0)')
    if opt.get('pre') == 3:
        for t in PRE: a(t)
    a('s_barrier')
    if opt.get('eh'):
        a('''s_lshl_b32 s20, s4, 8
s_add_u32 s20, s20, s2
s_cmp_lt_u32 s20, 1008
s_cbranch_scc1 L_NOEH
s_lshl_b32 s20, s2, 7
s_and_b32 s20, s20, 0x780
s_add_u32 s20, s20, %d
v_lshl_add_u32 v56, v1, 7, s20
v_mov_b32 v57, s35
s_mov_b64 exec, 0xff
global_store_dword v56, v57, s[12:13] sc1
s_mov_b64 exec, -1
L_NOEH:''' % HINT)
    pstamp(a, opt, 0)
    if opt.get('pre') == 2:
        pass
    CDL = (PRE if opt.get('pre') == 2 else []) + ([] if opt.get('cde') else CD) + (PW if pw == 1 else [])
    a('; phase 1')
    order = [(win, kap, nt, bp) for win in (1, 0) for kap in range(2) for nt in range(2) for bp in range(2)]
    ACC = lambda win, nt, bp: 32 + 4 * (bp + 2 * nt) if win else 112 + 4 * (bp + 2 * nt)
    OPR = lambda i: 56 + 4 * (i % 14) if i < 14 else 56 + 4 * (i - 14)
    def rd(i):
        win, kap, nt, bp = order[i]
        t = ['ds_read_b64_tr_b16 %s, v%d offset:%d' % (vr(OPR(i) + 2 * hh, 2), (48 if win else 3) + nt, (2 * kap + hh) * 4096 + win * 2048 + bp * 1024) for hh in range(2)]
        return [t[0], ('T', i, t[1])]
    def mf(i):
        win, kap, nt, bp = order[i]
        A = ACC(win, nt, bp)
        return '%s %s, %s, %s, %s' % (M32, vr(A), vr(8 + 4 * kap), vr(OPR(i)), vr(A) if kap else '0')
    A2 = lambda al, win, nt: 64 + 2 * (al + 2 * nt) if win else 32 + 2 * (al + 2 * nt)
    def cv(win, nt):
        return ['v_cvt_pk_bf16_f32 v%d, v%d, v%d' % (A2(al, win, nt) + p, ACC(win, nt, p) + 2 * al, ACC(win, nt, p) + 2 * al + 1) for al in range(2) for p in range(2)]
    D2M = lambda al, nt: 32 + 4 * (nt + 2 * al)
    B2 = lambda al: 72 + 4 * al
    D2 = lambda al, nt: (188 if opt.get('sp') else 80) + 4 * (nt + 2 * al)
    def m2m(al, nt): return '%s %s, %s, %s, 0' % (M16, vr(D2M(al, nt)), vr(A2(al, 1, nt), 2), vr(18 + 4 * al, 2))
    def cvm(al): return ['v_cvt_pk_bf16_f32 v%d, v%d, v%d' % (B2(al) + 2 * nt + h, D2M(al, nt) + 2 * h, D2M(al, nt) + 2 * h + 1) for nt in range(2) for h in range(2)]
    def mp(al, nt): return '%s %s, %s, %s, 0' % (M32, vr(D2(al, nt)), vr(24 + 4 * nt), vr(B2(al)))
    D3 = lambda al, nt: (204 if opt.get('sp') else 188) + 4 * al if nt else D2(al, 0)
    def m2(al, nt): return '%s %s, %s, %s, %s' % (M16, vr(D3(al, nt)), vr(A2(al, 0, nt), 2), vr(16 + 4 * al, 2), vr(D2(al, nt)))
    XT = ['v_cvt_pk_bf16_f32 v%d, v%d, v%d' % (50 + al, D2(al, 1), D2(al, 1)) for al in range(2)]
    PK = lambda al, nt: 96 + 2 * (nt + 2 * al)
    def pack(al, nt): return ['v_cvt_pk_bf16_f32 v%d, v%d, v%d' % (PK(al, nt) + h, D3(al, nt) + 2 * h, D3(al, nt) + 2 * h + 1) for h in range(2)]
    def wr(al, nt): return 'ds_write_b64 v%d, %s offset:%d' % (6 + nt, vr(PK(al, nt), 2), 1152 * al)
    R = lambda *ii: [x[2] if isinstance(x, tuple) else x for i in ii for x in rd(i)]
    seq = R(*range(14)) + [mf(i) for i in range(8)] + R(14, 15) + CDL + cv(1, 0) + cv(1, 1) + [m2m(0, 0), m2m(0, 1), m2m(1, 0), m2m(1, 1)]
    seq += [mf(i) for i in range(8, 12)] + cvm(0) + cvm(1) + [mp(0, 0), mp(0, 1), mp(1, 0), mp(1, 1)] + [mf(i) for i in range(12, 16)]
    seq += cv(0, 0) + cv(0, 1) + [m2(0, 0), m2(1, 0), m2(0, 1), m2(1, 1)] + XT
    seq += pack(0, 0) + pack(1, 0) + [wr(0, 0), wr(1, 0)] + pack(0, 1) + pack(1, 1)
    bo = cv(1, 0) + cv(1, 1) + [m2m(0, 0), m2m(0, 1), m2m(1, 0), m2m(1, 1)] + [mf(i) for i in range(8)] if not opt.get('nob') else []
    if opt.get('sp'):
        s1 = R(*range(8)) + [mf(i) for i in range(8)] + cv(1, 0) + cv(1, 1) + [m2m(0, 0), m2m(0, 1), m2m(1, 0), m2m(1, 1)]
        s1b = cvm(0) + cvm(1) + [mp(0, 0), mp(0, 1), mp(1, 0), mp(1, 1)]
        if opt['sp'] == 1: s1 += s1b; s1b = []
        s2 = R(*range(8, 16)) + CDL + s1b + [mf(i) for i in range(8, 16)] + cv(0, 0) + cv(0, 1) + [m2(0, 0), m2(1, 0), m2(0, 1), m2(1, 1)] + XT
        s2 += pack(0, 0) + pack(1, 0) + [wr(0, 0), wr(1, 0)] + pack(0, 1) + pack(1, 1)
        for t in schedule(s1, verbose=opt.get('v'), **SO): a(t)
        a('s_waitcnt vmcnt(0)\ns_barrier')
        for t in schedule(s2, boost=CDL, pin=[(CDL[i], R(*range(8, 16))[min(15, 7 + 2 * i)]) for i in range(len(CDL))], verbose=opt.get('v'), **SO): a(t)
    else:
        for t in schedule(seq, boost=bo + CDL, pin=[(CDL[i], R(*range(8))[min(15, opt.get('p0', 7) + 2 * i)]) for i in range(len(CDL))], verbose=opt.get('v'), **SO): a(t)
    pstamp(a, opt, 1)
    a('s_mov_b64 exec, s[56:57]')
    for al in range(2):
        a('v_and_or_b32 v%d, v%d, s30, v54\nv_mov_b32 v%d, s35' % (PK(al, 1), 50 + al, PK(al, 1) + 1))
    a('s_mov_b64 exec, -1')
    for al in range(2):
        a(wr(al, 1))
        a('ds_read2_b64 %s, v2 offset0:%d offset1:%d' % (vr(104 + 4 * al), 144 * al, 144 * al + 1))
    pstamp(a, opt, 2)
    if opt.get('prof'): a('s_waitcnt lgkmcnt(0)')
    a('s_waitcnt lgkmcnt(2)' + ('' if opt.get('cde') or opt.get('rs') or opt.get('nv') else ' vmcnt(0)'))
    if opt.get('pw2') or opt.get('bb'): a('s_barrier')
    a('buffer_store_dwordx4 v[104:107], v5, s[12:15], s28 offen %s' % opt.get('k1st', 'sc1'))
    a('s_waitcnt lgkmcnt(0)')
    a('buffer_store_dwordx4 v[108:111], v53, s[12:15], s29 offen %s' % opt.get('k1st', 'sc1'))
    stamp(a, opt, 3)
    pstamp(a, opt, 3)
    if opt.get('xh') and not opt.get('eh'):
        a('''s_lshl_b32 s20, s4, 8
s_add_u32 s20, s20, s2
s_cmp_lt_u32 s20, 1008
s_cbranch_scc1 L_P2
s_lshl_b32 s20, s2, 7
s_and_b32 s20, s20, 0x780
s_add_u32 s20, s20, %d
v_lshl_add_u32 v8, v1, 7, s20
v_mov_b32 v9, s35
s_mov_b64 exec, %d
HLWAIT
global_store_dword v8, v9, s[12:13] sc1
s_mov_b64 exec, -1
%s
s_branch %s''' % (HINT, 0xff if opt.get('ah') else 1, '' if opt.get('nv') else 's_waitcnt vmcnt(1)' if opt.get('pw2') or opt.get('bb') else 's_barrier\ns_waitcnt vmcnt(1)', 'L_P2' if opt.get('nv') else 'L_P3'))
    else:
        a('s_branch L_P2')
    a('L_CONS:')
    if opt.get('aw') == 2:
        a('''s_lshl_b32 s20, s5, 10
s_add_u32 s20, s20, %d
v_lshrrev_b32 v8, 3, v0
v_lshlrev_b32 v8, 11, v8
v_and_b32 v9, 7, v0
v_lshl_add_u32 v8, v9, 7, v8
v_add_u32 v8, s20, v8
global_load_dword v9, v8, s[12:13] sc1''' % HINT)
    a(NONCE)
    for t in CD: a(t)
    a('L_P2:\ns_waitcnt vmcnt(0)\ns_barrier' if opt.get('nv') else 'L_P2:' if opt.get('rs') else 's_waitcnt vmcnt(0)\ns_barrier\nL_P2:' if opt.get('pw2') or opt.get('bb') else 's_waitcnt vmcnt(0)\nL_P2:\ns_barrier')
    if opt.get('pa') and not opt.get('nv'): a('s_waitcnt vmcnt(0)')
    a('L_P3:')
    if opt.get('ah'):
        a('s_mov_b64 exec, 0xff\nglobal_load_dword v9, v55, s[12:13] sc1\ns_mov_b64 exec, -1')
    DB = L_DAT if opt.get('rs') else 0
    a('''
v_lshrrev_b32 v6, 4, v0
v_lshlrev_b32 v{b0}, 12, v6
v_and_b32 v7, 0xc0, v1
v_add_u32 v{b0}, v{b0}, v7
v_and_b32 v6, 1, v6
v_lshl_add_u32 v{b0}, v6, 5, v{b0}
v_and_b32 v6, 3, v0
v_lshl_add_u32 v{b0}, v6, 3, v{b0}
v_add_u32 v{b0}, {db}, v{b0}
v_xor_b32 v{b1}, 32, v{b0}
v_and_b32 v{f}, 31, v0
v_lshrrev_b32 v6, 5, v0
v_lshl_add_u32 v6, v{f}, 1, v6
v_add_u32 v7, 1, v6
v_cmp_ne_u32 vcc, 56, v7
v_mov_b32 v{t}, 0x40000000
v_lshlrev_b32 v6, 4, v6
v_cndmask_b32 v7, 0, v7, vcc
v_cmp_gt_u32 vcc, 28, v{f}
v_sub_u32 v{m}, 880, v6
v_and_b32 v{u}, 1, v7
v_cndmask_b32 v{f}, v{t}, v6, vcc
v_cndmask_b32 v{m}, v{t}, v{m}, vcc
v_lshlrev_b32 v7, 1, v7
v_and_b32 v7, 0x7c, v7
v_lshl_add_u32 v{p}, v{u}, 7, v7
s_lshl_b32 s22, s4, 12
s_add_u32 s22, s22, {db}
s_and_b32 s20, s4, 1
s_lshl_b32 s20, s20, 5
s_sub_u32 s20, 56, s20
s_add_u32 s20, s20, s22
v_and_b32 v{tg}, 0x3c0, v1
v_add_u32 v{tg}, s20, v{tg}
v_lshl_add_u32 v{u}, v1, 2, s20
v_and_b32 v6, 0xf0, v1
v_add_u32 v6, s53, v6
v_add_u32 v7, {cc}, v1
'''.format(cc=L_CONST, db=DB, **V))
    if opt.get('lin2'):
        a('''v_cmp_gt_u32 vcc, 56, v0
s_nop 1
v_cndmask_b32 v{f}, v{t}, v1, vcc
v_cndmask_b32 v{m}, v{t}, v1, vcc'''.format(**V))
    for i in range(16): a('v_mov_b32 v%d, 0' % (CA + i))
    a('''
s_lshl_b32 s21, s4, 8
s_add_u32 s48, s21, s31
s_add_u32 s49, s48, 128
s_cmp_eq_u32 s36, 2
s_cselect_b32 s21, 1023, -1
s_and_b32 s49, s49, s21
s_sub_u32 s50, 2048, s48
s_sub_u32 s51, 2048, s49
s_and_b32 s51, s51, 2047
s_mul_i32 s20, s5, 896
s_mul_i32 s48, s48, 1792
s_mul_i32 s49, s49, 1792
s_mul_i32 s50, s50, 1792
s_mul_i32 s51, s51, 1792
s_add_u32 s48, s48, s20
s_add_u32 s49, s49, s20
s_add_u32 s50, s50, s20
s_add_u32 s51, s51, s20
s_mov_b32 s52, 0xffff
s_mov_b32 s55, %s
s_mov_b32 m0, s22
''' % ('0x40000' if opt.get('stamp') else '0x400000'))
    def const_reads():
        a('s_mov_b32 exec_lo, 0x%x\ns_mov_b32 exec_hi, 0x%x' % (EM_LO, EM_HI))
        for k in range(4): a('ds_read_b128 %s, v6 offset:%d' % (vr(CA + 4 * k), 2048 + 256 * k))
        a('s_mov_b64 exec, -1')
        for i in range(8): a('ds_read_b128 %s, v7 offset:%d' % (vr(CTW + 4 * i), (i >> 1) * 3072 + (i & 1) * 1024))
    if not opt.get('rs'): const_reads()
    ld = opt.get('k2ld', 'sc1')
    sent = opt.get('sent', 0)
    if not opt.get('early') and sent != 2 and not opt.get('pa'): a('s_waitcnt vmcnt(0)')
    stamp(a, opt, 4)
    if opt.get('slp'): a('s_sleep %d' % opt['slp'])
    if opt.get('lw'): a('s_waitcnt lgkmcnt(0)')
    if opt.get('lw') == 2: a('s_barrier')
    if opt.get('eh'):
        a('''s_mov_b64 exec, 0xff
s_waitcnt vmcnt(0)
v_cmp_ne_u32 vcc, s35, v9
s_cbranch_vccz L_POLL0
L_SENT:
global_load_dword v9, v55, s[12:13] sc1
s_waitcnt vmcnt(0)
v_cmp_ne_u32 vcc, s35, v9
s_cbranch_vccz L_SENT2
s_sub_u32 s55, s55, 1
s_cbranch_scc0 L_SENT
L_SENT2:''')
        for i in range(opt['eh'] - 1): a('global_load_dword v9, v55, s[12:13] sc1\ns_waitcnt vmcnt(0)')
    elif opt.get('ah'):
        a('''s_mov_b64 exec, 0xff
L_SENT:
s_waitcnt vmcnt(0)
v_cmp_ne_u32 vcc, s35, v9
s_and_b64 exec, exec, vcc
s_cbranch_scc0 L_POLL0
global_load_dword v9, v55, s[12:13] sc1
s_sub_u32 s55, s55, 1
s_cbranch_scc0 L_SENT''')
    elif opt.get('xh'):
        a('''s_cmp_lt_u32 s2, 256
s_cbranch_scc1 L_POLL0
s_lshl_b32 s20, s5, 10
s_add_u32 s20, s20, %d
v_lshl_add_u32 v8, v1, 3, s20
s_mov_b64 exec, 0xff
L_SENT:
global_load_dword v9, v8, s[12:13] sc1
s_waitcnt vmcnt(0)
v_cmp_ne_u32 vcc, s35, v9
s_and_b64 exec, exec, vcc
s_cbranch_scc0 L_POLL0
s_sub_u32 s55, s55, 1
s_cbranch_scc0 L_SENT''' % HINT)
    else:
        if sent:
            a('s_mov_b32 exec_lo, 0x%x\ns_mov_b32 exec_hi, 0x%x' % ((opt.get('sm', 0x0f0f0f0f),) * 2))
        else:
            a('s_cmp_lt_u32 s2, 256\ns_cbranch_scc1 L_POLL0\ns_mov_b64 exec, 15')
        a('''
L_SENT:
buffer_load_dwordx4 v1, s[12:15], s54 offen {ld} lds
s_waitcnt vmcnt(0)
ds_read_b64 v[8:9], v{tg}
s_waitcnt lgkmcnt(0)
v_cmp_ne_u32 vcc, s35, v9
s_cbranch_vccz L_POLL0
s_sub_u32 s55, s55, 1
s_cbranch_scc0 L_SENT'''.format(ld=ld, **V))
    a('''
L_POLL0:
s_mov_b64 exec, -1
'''.format(ld=ld, **V))
    for k in range(4): a('buffer_load_dwordx4 v1, s[12:15], s54 offen offset:%d %s lds' % (1024 * k, opt.get('ld1', ld)))
    if opt.get('rs'):
        a('s_barrier')
        const_reads()
    a('s_branch L_CHK\nL_POLL:')
    for k in range(4):
        a('s_mov_b64 exec, s[%d:%d]\ns_cbranch_execz L_NO%d' % (56 + 2 * k, 57 + 2 * k, k))
        a('buffer_load_dwordx4 v1, s[12:15], s54 offen offset:%d %s lds' % (1024 * k, ld))
        a('L_NO%d:' % k)
    a('s_mov_b64 exec, -1\nL_CHK:\ns_waitcnt vmcnt(0)')
    if not opt.get('slowchk'):
        a('''ds_read_b64 v[8:9], v{u}
s_waitcnt lgkmcnt(0)
v_and_b32 v8, 0xffff0000, v8
v_cmp_ne_u64 vcc, s[34:35], v[8:9]
s_cbranch_vccz L_GO'''.format(**V))
    for k in range(4): a('ds_read_b64 %s, v%d offset:%d' % (vr(8 + 2 * k, 2), V['tg'], 1024 * k))
    for k in range(4):
        a('s_waitcnt lgkmcnt(%d)' % (3 - k))
        a('v_and_b32 v%d, 0xffff0000, v%d' % (8 + 2 * k, 8 + 2 * k))
        a('v_cmp_ne_u64 s[%d:%d], s[34:35], %s' % (56 + 2 * k, 57 + 2 * k, vr(8 + 2 * k, 2)))
    a('''
s_or_b64 s[64:65], s[56:57], s[58:59]
s_or_b64 s[66:67], s[60:61], s[62:63]
s_or_b64 s[64:65], s[64:65], s[66:67]
s_cbranch_scc0 L_GO
s_sub_u32 s55, s55, 1
s_cbranch_scc0 L_POLL
L_GO:
''')
    stamp(a, opt, 5)
    if opt.get('stamp') and not opt.get('prof'): a('s_waitcnt lgkmcnt(0)')
    a('s_cmp_ge_u32 s2, 256\ns_barrier\ns_cbranch_scc1 L_ONE')
    pstamp(a, opt, 4)
    a('; phase 2')
    order = [(ta, kap, sub) for ta in range(2) for kap in range(4) for sub in range(2)]
    DA = lambda ta, sub: 8 + 4 * (sub + 2 * ta)
    OPR = lambda i: 24 + 4 * i
    def rd(i):
        ta, kap, sub = order[i]
        t = ['ds_read_b64_tr_b16 %s, v%d offset:%d' % (vr(OPR(i) + 2 * hh, 2), V['b0'] + ta, (4 * kap + 2 * hh) * 128 + sub * 2048) for hh in range(2)]
        return [t[0], ('T', i, t[1])]
    def mf(i):
        ta, kap, sub = order[i]
        return '%s %s, %s, %s, %s' % (M32, vr(DA(ta, sub)), vr(CA + 4 * kap), vr(OPR(i)), vr(DA(ta, sub)) if kap else '0')
    A1 = lambda tl, ta: 88 + 2 * (tl + 2 * ta)
    def cv(ta):
        return ['v_cvt_pk_bf16_f32 v%d, v%d, v%d' % (A1(tl, ta) + p, DA(ta, p) + 2 * tl, DA(ta, p) + 2 * tl + 1) for tl in range(2) for p in range(2)]
    D1 = lambda tl, ta, c: 96 + 4 * (c + 2 * tl) if ta == 0 else 112 + 4 * (c + 2 * tl)
    def b1(tl, ta, c):
        return '%s %s, %s, %s, 0' % (M16, vr(D1(tl, ta, c)), vr(A1(tl, ta), 2), vr(CB1 + 2 * c, 2))
    HT = lambda tl, ta: 24 + 8 * (tl + 2 * ta)
    HP = lambda tl, ta: 8 + 4 * tl if ta == 0 else 56 + 4 * tl
    def tw(tl, ta):
        r, i, h, co, si = D1(tl, ta, 0), D1(tl, ta, 1), HT(tl, ta), CTW + 8 * ta, CTW + 4 + 8 * ta
        o = []
        for x, y, c in ((r, i, co), (i, r, si), (r, i, co)):
            if '%d%d' % (tl, ta) in str(opt.get('pk', '')).split(','):
                o += ['v_pk_fma_f32 %s, %s, %s, %s' % (vr(x + q, 2), vr(c + q, 2), vr(y + q, 2), vr(x + q, 2)) for q in (0, 2)]
            else:
                o += ['v_fmac_f32 v%d, v%d, v%d' % (x + q, c + q, y + q) for q in range(4)]
        n = len(o) // 3
        o = o[:2 * n] + [t + ' ' for t in o[2 * n:]]
        for q in range(4):
            o.append('v_cvt_pk_bf16_f32 v%d, v%d, v%d' % (HP(tl, ta) + q, (r, r, i, i)[q] + 2 * (q & 1), (r, r, i, i)[q] + 2 * (q & 1) + 1))
        return o
    D2 = lambda tl, mu: 64 + 4 * (mu + 2 * tl)
    def b2(tl, mu, ta):
        return '%s %s, %s, %s, %s' % (M32, vr(D2(tl, mu)), vr(HP(tl, ta)), vr(CB2 + 4 * (2 * mu + ta)), vr(D2(tl, mu)) if ta else '0')
    F = lambda tl: 80 + 4 * tl
    M = lambda tl: 96 + 4 * tl
    st = opt.get('k2st', 'sc1')
    def fin(tl):
        o = []
        for mu in range(2):
            for h in range(2):
                o.append('v_cvt_pk_bf16_f32 v%d, v%d, v%d' % (F(tl) + 2 * mu + h, D2(tl, mu) + 2 * h, D2(tl, mu) + 2 * h + 1))
        return o
    def fin2(tl):
        return ['v_permlane16_swap_b32 v%d, v%d' % (F(tl), F(tl) + 2),
                'v_permlane16_swap_b32 v%d, v%d' % (F(tl) + 1, F(tl) + 3),
                'ds_bpermute_b32 v%d, v%d, v%d' % (2 + tl, V['p'], F(tl)),
                'buffer_store_dwordx4 %s, v%d, s[44:47], s%d offen %s' % (vr(F(tl)), V['f'], 48 + tl, st)]
    def mir(tl):
        return ['v_bfi_b32 v%d, s52, v%d, v%d' % (M(tl) + q, F(tl) + 4 - q, F(tl) + 3 - q) for q in (1, 2, 3)]
    def mir2(tl):
        return ['v_bfi_b32 v%d, s52, v%d, v%d' % (M(tl), 2 + tl, F(tl) + 3),
                'buffer_store_dwordx4 %s, v%d, s[44:47], s%d offen %s' % (vr(M(tl)), V['m'], 50 + tl, st)]
    t00, t10, t01, t11 = tw(0, 0), tw(1, 0), tw(0, 1), tw(1, 1)
    seq = R(*range(16)) + [mf(i) for i in range(8)] + cv(0) + [b1(0, 0, 0), b1(0, 0, 1), b1(1, 0, 0), b1(1, 0, 1)]
    seq += [mf(i) for i in range(8, 16)] + t00 + t10 + cv(1) + [b1(0, 1, 0), b1(0, 1, 1), b1(1, 1, 0), b1(1, 1, 1)]
    seq += [b2(0, 0, 0), b2(0, 1, 0), b2(1, 0, 0), b2(1, 1, 0)] + t01 + [b2(0, 0, 1), b2(0, 1, 1)] + t11 + [b2(1, 0, 1), b2(1, 1, 1)]
    seq += fin(0) + fin2(0) + mir(0) + mir2(0) + fin(1) + fin2(1) + mir(1) + mir2(1)
    bo = cv(0) + [b1(0, 0, 0), b1(0, 0, 1), b1(1, 0, 0), b1(1, 0, 1)] + [mf(i) for i in range(8)] if not opt.get('nob') else []
    bo2 = bo
    if opt.get('t0') == 1:
        bo2 = bo + t00 + cv(1)[:2] + [b1(0, 1, 0), b1(0, 1, 1), b2(0, 0, 0), b2(0, 1, 0)] + t01 + [b2(0, 0, 1), b2(0, 1, 1)] + fin(0) + fin2(0) + mir(0) + mir2(0)
    if opt.get('t0') == 2:
        bo2 = bo + t01 + [b2(0, 0, 1), b2(0, 1, 1)] + fin(0) + fin2(0) + mir(0) + mir2(0)
    for t in schedule(seq, boost=bo2, verbose=opt.get('v'), **SO): a(t)
    a('s_branch L_FIN\nL_ONE:\ns_cmp_lg_u32 s4, 0\ns_cbranch_scc1 L_FIN')
    seq = R(*range(16)) + [mf(i) for i in range(8)] + cv(0)[:2] + [b1(0, 0, 0), b1(0, 0, 1)]
    seq += [mf(i) for i in range(8, 16)] + t00 + cv(1)[:2] + [b1(0, 1, 0), b1(0, 1, 1), b2(0, 0, 0), b2(0, 1, 0)] + t01 + [b2(0, 0, 1), b2(0, 1, 1)]
    seq += fin(0) + fin2(0)[:2] + fin2(0)[3:]
    for t in schedule(seq, boost=bo, verbose=opt.get('v'), **SO): a(t)
    a('''
s_lshl_b32 s20, s5, 7
s_add_u32 s20, s20, %d
v_mov_b32 v4, s20
v_mov_b32 v6, s34
v_mov_b32 v7, s35
s_mov_b64 exec, 1
global_store_dwordx2 v4, v[6:7], s[12:13]
s_mov_b64 exec, -1
''' % CELL)
    a('L_FIN:')
    stamp_out(a, opt, 8)
    a('L_END:\ns_endpgm')
    for i in a.ins:
        if i.text == 'HLWAIT': i.__init__('s_waitcnt vmcnt(0)' if opt.get('hl') else ';')
    return a.finish(opt.get('v'))

def build(opt):
    tabs = d3.build_tables()
    hdr = open('cdna_kernels/%s.s.ref' % NAME).read().split('; Override launch')[0]
    s = hdr
    if opt.get('diag'):
        s += '; @launch kernel=%s grid=(%d,1,1) block=(256,1,1) lds=%d\n' % (KN, NWG, LDS + (16384 if opt.get('rs') else 0))
        s += '; @launch kernel=k3_kernel grid=(1,1,1) block=(64,1,1) lds=0\n'
    else:
        s += '; @launch grid=(%d,1,1) block=(256,1,1) lds=%d\n' % (NWG, LDS + (16384 if opt.get('rs') else 0))
    s += DOC
    s += '.amdgcn_target "amdgcn-amd-amdhsa--gfx950"\n.text\n'
    s += '.globl %s\n.p2align 8\n.type %s,@function\n' % (KN, KN) + gen(opt)
    if opt.get('diag'):
        s += '.globl k3_kernel\n.p2align 8\n.type k3_kernel,@function\n' + gen_k3(opt, [opt.get('nw', 1024)])
    s += '.p2align 8\n.type K2_TAB,@object\nK2_TAB:\n' + emit_data(k2_table(tabs))
    s += '.section .rodata,"a"\n' + kd(KN, 212 if opt.get('sp') else 196, 96)
    if opt.get('diag'):
        s += kd('k3_kernel', 8, 32)
    return s

if __name__ == '__main__':
    out = sys.argv[1]
    opt = {}
    for kv in sys.argv[2:]:
        k, _, v = kv.partition('=')
        opt[k] = int(v) if v.lstrip('-').isdigit() else (v.replace('+', ' ') if v else 1)
    s = build(opt)
    open(out, 'w').write(s)
    print(out, len(s), 'bytes')
```

```python
import sys, numpy as np
from asmlib import Asm
from sched import schedule
import design as dz
import design3 as d3
from gen import gen_k3, NAME, XB, OUTB, vr, op_bytes, emit_data, kd

KN = NAME + '_kernel'
NWG = 258
CH = 16384
WSB = 2 * 72 * CH
CELL = WSB
HINT = WSB + 1024
L_CONST = 16384
L_STG = 28672
L_DAT = L_STG + 4 * 2304
LDS = L_DAT
SB = 72
EM_LO, EM_HI = 0x00F0000F, 0xF0000F00
M32 = 'v_mfma_f32_16x16x32_bf16'
M16 = 'v_mfma_f32_16x16x16_bf16'


DOC = """;
;
"""

def pstamp(a, opt, i):
    if opt.get('prof'):
        a('s_memtime s[%d:%d]' % (SB + 2 * i, SB + 1 + 2 * i))

def stamp(a, opt, i):
    if opt.get('stamp') and not opt.get('prof'):
        a('s_memrealtime s[%d:%d]' % (SB + 2 * i, SB + 1 + 2 * i))

def stamp_out(a, opt, n):
    if not opt.get('stamp'):
        return
    stamp(a, opt, n - 2)
    if opt.get('prof'): n = opt['prof']; pstamp(a, opt, n - 1)
    a('s_waitcnt vmcnt(0)')
    stamp(a, opt, n - 1)
    a('s_getreg_b32 s58, hwreg(HW_REG_XCC_ID)')
    a('s_getreg_b32 s59, hwreg(HW_REG_HW_ID)')
    a('s_lshl_b32 s62, s2, 2\ns_add_u32 s62, s62, s4\ns_lshl_b32 s62, s62, 6\ns_add_u32 s62, s62, %d' % (16 << 20))
    a('s_load_dwordx2 s[12:13], s[0:1], 96')
    a('s_waitcnt lgkmcnt(0)\ns_add_u32 s60, s12, s62\ns_addc_u32 s61, s13, 0')
    a('v_mov_b32 v0, 0')
    for i in range(n):
        a('v_mov_b32 v1, s%d\nglobal_store_dword v0, v1, s[60:61] offset:%d' % (SB + 2 * i, 4 * i))
    a('v_mov_b32 v1, s55\nglobal_store_dword v0, v1, s[60:61] offset:52')
    a('v_mov_b32 v1, s58\nglobal_store_dword v0, v1, s[60:61] offset:56')
    a('v_mov_b32 v1, s59\nglobal_store_dword v0, v1, s[60:61] offset:60')

def k2_table(tabs):
    b = b''
    for ta in range(2):
        for x in tabs['k2tw'][ta]:
            b += x.astype('<f4').tobytes()
    for mu in range(2):
        for ta in range(2):
            b += op_bytes(tabs['k2B2'][mu][ta])
    b += op_bytes(np.concatenate(tabs['k2B1'], axis=1))
    act = [l for l in range(64) if ((l & 15) >> 2) == (l >> 4)]
    for v in range(5):
        for w in range(4):
            for k in range(4):
                b += op_bytes(tabs['k2A'][v][w][k][act])
    return b

CA, CB1, CTW, CB2 = 128, 144, 148, 164
VA = 180

def paired(a, rd, mf, after, n=16, depth=7):
    for i in range(depth): rd(i)
    issued = depth
    for k in range(n // 2):
        a('s_waitcnt lgkmcnt(%d)' % (2 * (issued - 2 * k - 2)))
        mf(2 * k); mf(2 * k + 1)
        for _ in range(2):
            if issued < n:
                rd(issued); issued += 1
        for t in after.get(k, []): a(t)

def emit(a, seq):
    pos = {}; n = 0
    for it in seq:
        if isinstance(it, tuple) and it[0] == 'W':
            a('s_waitcnt lgkmcnt(%d)' % (n - pos[it[1]]))
            continue
        if isinstance(it, tuple):
            _, key, it = it
            pos[key] = n + 1
        if it.startswith('ds_'): n += 1
        a(it)

def zipm(*lists):
    tot = sum(len(l) for l in lists); idx = [0] * len(lists); o = []
    for k in range(tot):
        j = min((j for j in range(len(lists)) if idx[j] < len(lists[j])), key=lambda j: (idx[j] + 0.5) / len(lists[j]))
        o.append(lists[j][idx[j]]); idx[j] += 1
    return o

def mix(xs, ys, step, first=0):
    ys = list(ys); o = []
    for n, x in enumerate(xs):
        if n >= first and (n - first) % step == 0 and ys:
            o.append(ys.pop(0))
        o.append(x)
    return o + ys

def gen(opt):
    a = Asm()
    SO = dict(ds_lat=opt.get('lat', 64), ds_gap=opt.get('gap', 83) / 10., slack=opt.get('slack', -20))
    CP = CH + opt.get('cp', 0); SK = opt.get('sk', 0); BR = 72 * CH if CP != CH or SK else 64 * CH
    assert 64 * CP + 4 * SK <= BR
    V = dict(b0=VA, b1=VA + 1, f=VA + 2, m=VA + 3, p=VA + 4, tg=VA + 5, t=VA + 6, u=VA + 7)
    a('''
%s:
s_bfe_u32 s5, s2, 0x10003
s_mul_i32 s7, s5, 40
s_load_dwordx2 s[8:9], s[0:1], s7
s_load_dwordx2 s[12:13], s[0:1], 96
s_load_dwordx2 s[44:45], s[0:1], 80
s_cmp_ge_u32 s2, %d
s_cbranch_scc1 L_END
''' % (KN, NWG))
    if opt.get('fp'):
        a('; code + table -> L2 (a few workgroups per die), then one touch per 64 bytes of this die group\'s x rows')
        a('''s_getpc_b64 s[16:17]
L_PC:
v_lshlrev_b32 v4, 7, v0
s_cmp_ge_u32 s2, %d
s_cbranch_scc1 L_NOCI
global_load_dword v59, v4, s[16:17]
L_NOCI:''' % opt.get('ci', 16))
        stamp(a, opt, 0)
        a('''s_and_b32 s33, s2, 7
s_sub_u32 s3, 16, s33
s_cmp_eq_u32 s33, 0
s_cselect_b32 s3, 8, s3
s_bfe_u32 s36, s2, 0x10004
s_cselect_b32 s3, s3, s33
s_bfe_u32 s6, s2, 0x30005
s_lshl_b32 s23, s6, 8
s_add_u32 s23, s23, s3
s_mul_i32 s23, s23, 896
v_lshrrev_b32 v9, 4, v0
v_mul_u32_u24 v9, 14336, v9
v_and_b32 v8, 15, v0
v_min_u32 v8, 13, v8
v_lshl_add_u32 v9, v8, 6, v9
s_mov_b32 s10, %d
s_mov_b32 s11, 0x20000
s_waitcnt lgkmcnt(0)''' % XB)
        stamp(a, opt, 1)
        a('buffer_load_dword v57, v9, s[8:11], s23 offen')
        a('''s_and_b32 s20, s2, 1
s_cmp_ge_u32 s2, 256
s_cselect_b32 s5, s20, s5
s_lshl_b32 s20, s5, 7
s_add_u32 s20, s20, %d
s_load_dwordx2 s[34:35], s[12:13], s20
v_lshrrev_b32 v6, 6, v0
v_and_b32 v0, 63, v0
v_readfirstlane_b32 s4, v6
s_sub_u32 s32, 16, s3
s_and_b32 s32, s32, 15
v_lshlrev_b32 v1, 4, v0
v_lshrrev_b32 v6, 4, v0
v_bfe_u32 v7, v0, 2, 2
v_mul_u32_u24 v2, 14336, v6
v_mul_u32_u24 v7, 114688, v7
v_lshrrev_b32 v3, 3, v0
v_and_b32 v3, 2, v3
v_xor_b32 v4, v3, v0
v_and_b32 v4, 3, v4
v_lshlrev_b32 v4, 4, v4
v_add3_u32 v2, v2, v7, v4
s_lshl_b32 s39, s4, 12
s_add_u32 m0, s39, 2048
s_mul_i32 s20, s4, 458752
s_and_b32 s37, s6, 1
s_mul_i32 s21, s6, 7
s_sub_u32 s21, s21, s37
s_lshl_b32 s21, s21, 3
s_mul_i32 s24, s3, 896
s_mul_i32 s26, s32, 896
s_add_u32 s24, s24, s20
s_add_u32 s26, s26, s20
s_add_u32 s24, s24, s21
s_sub_u32 s26, s26, s21
s_add_u32 s25, s24, 56320
s_add_u32 s27, s26, %d
s_add_u32 s26, s26, 832
s_mov_b32 s14, %d
s_mov_b32 s15, 0x20000''' % (CELL, 832 + 56320, WSB))
        xp = opt.get('xp', 1)
        XD = '''; x tiles -> LDS (mirror window first)
buffer_load_dwordx4 v2, s[8:11], s26 offen lds
buffer_load_dwordx4 v2, s[8:11], s27 offen offset:1024 lds
s_mov_b32 m0, s39
buffer_load_dwordx4 v2, s[8:11], s24 offen lds
buffer_load_dwordx4 v2, s[8:11], s25 offen offset:1024 lds
'''
        if xp == 0: a('s_cmp_ge_u32 s2, 256\ns_cbranch_scc1 L_SKIP1\n' + XD)
    else:
        if opt.get('ci'):
            a('''s_cmp_ge_u32 s2, %d
s_cbranch_scc1 L_NOCI
s_getpc_b64 s[16:17]
v_lshlrev_b32 v4, 7, v0
global_load_dword v59, v4, s[16:17]
L_NOCI:''' % opt['ci'])
        stamp(a, opt, 0)
        a('''
v_lshrrev_b32 v6, 6, v0
v_and_b32 v0, 63, v0
v_readfirstlane_b32 s4, v6
s_and_b32 s33, s2, 7
s_lshr_b32 s6, s2, 5
s_sub_u32 s3, 16, s33
s_cmp_eq_u32 s33, 0
s_cselect_b32 s3, 8, s3
s_bfe_u32 s36, s2, 0x10004
s_cselect_b32 s3, s3, s33
s_sub_u32 s32, 16, s3
s_and_b32 s32, s32, 15
v_lshrrev_b32 v6, 4, v0
v_bfe_u32 v7, v0, 2, 2
v_mul_u32_u24 v2, 14336, v6
v_mul_u32_u24 v7, 114688, v7
v_lshrrev_b32 v3, 3, v0
v_and_b32 v3, 2, v3
v_xor_b32 v4, v3, v0
v_and_b32 v4, 3, v4
v_lshlrev_b32 v4, 4, v4
v_add3_u32 v2, v2, v7, v4
s_lshl_b32 s39, s4, %d
s_add_u32 m0, s39, 2048
s_mul_i32 s20, s4, %d
s_and_b32 s37, s6, 1
s_mul_i32 s21, s6, 7
s_sub_u32 s21, s21, s37
s_lshl_b32 s21, s21, 3
s_mul_i32 s24, s3, 896
s_mul_i32 s26, s32, 896
s_add_u32 s24, s24, s20
s_add_u32 s26, s26, s20
s_add_u32 s24, s24, s21
s_sub_u32 s26, s26, s21
s_add_u32 s25, s24, 56320
s_add_u32 s27, s26, %d
s_add_u32 s26, s26, %d
''' % ((13, 917504) if opt.get('pw2') else (12, 458752)).__add__((832 + 56320, 832)))
        if opt.get('al'):
            for r in (24, 25, 26, 27): a('s_and_b32 s%d, s%d, %d' % (r, r, -opt['al']))
        if opt.get('pf'):
            a('''v_cmp_le_u32 vcc, 28, v0
v_lshlrev_b32 v9, 5, v0
v_add_u32 v8, 13440, v9
v_cndmask_b32 v9, v9, v8, vcc
v_cmp_gt_u32 vcc, 56, v0
v_mov_b32 v8, 0x40000000
s_lshl_b32 s23, s6, 2
s_add_u32 s23, s23, s4
s_lshl_b32 s23, s23, 6
s_add_u32 s23, s23, s3
s_mul_i32 s23, s23, 896
s_add_u32 s38, s23, 28672
v_cndmask_b32 v9, v8, v9, vcc''')
            if opt.get('pl'):
                a('''v_lshlrev_b32 v9, 5, v0
s_lshr_b32 s23, s2, 4
s_lshl_b32 s23, s23, 3
s_add_u32 s23, s23, s33
s_lshl_b32 s23, s23, 2
s_add_u32 s23, s23, s4
s_mul_i32 s23, s23, 3584
s_add_u32 s38, s23, 1792
v_cndmask_b32 v9, v8, v9, vcc''')
            if opt.get('p64') == 2:
                a('''v_cmp_gt_u32 vcc, 28, v0
v_mul_u32_u24 v9, 9363, v0
v_lshrrev_b32 v9, 16, v9
v_mul_u32_u24 v9, 13440, v9
v_lshl_add_u32 v9, v0, 7, v9
v_cndmask_b32 v9, v8, v9, vcc''')
            if opt.get('p64') == 1:
                a('''v_mul_u32_u24 v9, 4682, v0
v_lshrrev_b32 v9, 16, v9
v_mul_u32_u24 v9, 13440, v9
v_lshl_add_u32 v9, v0, 6, v9
v_cndmask_b32 v9, v8, v9, vcc''')
        a('''
s_mov_b32 s10, %d
s_mov_b32 s11, 0x20000
s_mov_b32 s14, %d
s_mov_b32 s15, 0x20000
s_and_b32 s20, s2, 1
s_cmp_ge_u32 s2, 256
s_cselect_b32 s5, s20, s5
s_lshl_b32 s20, s5, 7
s_add_u32 s20, s20, %d
v_lshlrev_b32 v1, 4, v0
s_cmp_ge_u32 s2, 256
s_waitcnt lgkmcnt(0)
''' % (XB, WSB, CELL))
        if opt.get('wo'): a('s_add_u32 s12, s12, %d\ns_addc_u32 s13, s13, 0\ns_cmp_ge_u32 s2, 256' % (opt['wo'] << 20))
        stamp(a, opt, 1)
        a('s_cbranch_scc1 L_SKIP1')
        PF = 'buffer_load_dword v57, v9, s[8:11], s23 offen %s\nbuffer_load_dword v58, v9, s[8:11], s38 offen %s' % ((opt.get('pff', ''),) * 2)
        xp = opt.get('xp', 0)
        if opt.get('p64'): PF = PF.split('\n')[0]
        if opt.get('pf') in (1, 2):
            a(PF)
            if opt['pf'] == 2: a('s_barrier')
        XD = '''
buffer_load_dwordx4 v2, s[8:11], s26 offen lds
buffer_load_dwordx4 v2, s[8:11], s27 offen offset:1024 lds
s_mov_b32 m0, s39
buffer_load_dwordx4 v2, s[8:11], s24 offen lds
buffer_load_dwordx4 v2, s[8:11], s25 offen offset:1024 lds
'''.replace(' lds', ' %s lds' % opt.get('xf', ''))
        if opt.get('pw2'):
            a('s_cmp_ge_u32 s4, 2\ns_cbranch_scc1 L_PRE')
            a(XD)
            a('s_add_u32 m0, s22, 6144\ns_add_u32 s22, s22, 4096')
            for r in (24, 25, 26, 27): a('s_add_u32 s%d, s%d, 458752' % (r, r))
            a(XD)
            a('''s_branch L_PRE2
L_PRE:
v_lshrrev_b32 v5, 3, v0
v_lshlrev_b32 v5, 14, v5
v_and_b32 v7, 0x70, v1
v_add_u32 v5, v5, v7
s_lshl_b32 s21, s5, 20
s_lshl_b32 s23, s3, 7
s_add_u32 s21, s21, s23
s_lshl_b32 s23, s6, 11
s_add_u32 s21, s21, s23
s_and_b32 s23, s4, 1
s_lshl_b32 s23, s23, 19
s_add_u32 s24, s21, s23
s_add_u32 s25, s24, 0x20000
s_add_u32 s26, s24, 0x40000
s_add_u32 s27, s24, 0x60000''')
            for i in range(4): a('v_mov_b32 v%d, 2.0' % (48 + i))
            for r in (24, 25, 26, 27): a('buffer_store_dwordx4 v[48:51], v5, s[12:15], s%d offen sc1' % r)
            a('L_PRE2:')
        elif xp == 0:
            a(XD)
            if opt.get('pf') == 3: a(PF)
    a('''
L_SKIP1:
%s
s_lshl_b32 s22, s4, 12
s_mov_b32 s46, %d
s_mov_b32 s47, 0x20000
''' % ('' if opt.get('fp') else 's_load_dwordx2 s[34:35], s[12:13], s20', OUTB))
    if opt.get('ah'):
        a('''s_getreg_b32 s20, hwreg(HW_REG_XCC_ID, 0, 3)
s_lshl_b32 s20, s20, 1
s_add_u32 s20, s20, s5
s_lshl_b32 s20, s20, 10
s_add_u32 s20, s20, %d
v_lshl_add_u32 v55, v1, 3, s20''' % HINT)
        if opt.get('aw') == 1:
            a('s_mov_b64 exec, 0xff\nglobal_load_dword v52, v55, s[12:13] sc1\ns_mov_b64 exec, -1')
    if not opt.get('fp'): a('s_getpc_b64 s[16:17]\nL_PC:')
    a('''
s_lshl_b32 s20, s6, 3
s_add_u32 s33, s33, s20
s_lshl_b32 s31, s36, 10
s_add_u32 s31, s31, s33
s_lshr_b32 s21, 128, s36
s_cmp_eq_u32 s33, 0
s_cselect_b32 s31, s21, s31
s_cselect_b32 s20, 2, 0
s_add_u32 s36, s20, s36
s_cmp_ge_u32 s2, 256
s_cselect_b32 s33, 0, s33
s_cselect_b32 s36, 4, s36
s_cselect_b32 s31, 1024, s31
s_add_u32 s16, s16, K2_TAB-L_PC
s_addc_u32 s17, s17, 0
s_add_u32 s40, s16, 8192
s_addc_u32 s41, s17, 0
s_lshl_b32 s20, s36, 12
s_lshl_b32 s21, s4, 10
s_add_u32 s20, s20, s21
s_add_u32 s20, s20, 7168
s_add_u32 s18, s16, s20
s_addc_u32 s19, s17, 0
s_lshl_b32 s21, s4, 11
s_add_u32 s16, s16, s21
s_addc_u32 s17, s17, 0
s_mul_i32 s53, s4, 3072
s_add_u32 s53, s53, %d
s_mul_i32 s20, s5, %d
s_mul_i32 s21, s33, %d
s_add_u32 s54, s20, s21
s_lshr_b32 s21, s33, 4
s_mul_i32 s21, s21, %d
s_add_u32 s54, s54, s21
s_add_u32 s54, s54, s22
s_cmp_ge_u32 s2, 256
s_cbranch_scc1 L_CONS
''' % (L_CONST, BR, CP, SK))
    CD = ['s_mov_b32 m0, s53',
          'global_load_dwordx4 %s, v1, s[40:41]' % vr(CB1),
          'global_load_lds_dwordx4 v1, s[16:17]',
          'global_load_lds_dwordx4 v1, s[16:17] offset:1024',
          'global_load_lds_dwordx4 v1, s[18:19] offset:2048']
    a('''v_bfe_u32 v5, v0, 3, 2
v_mul_u32_u24 v5, {c16}, v5
v_and_b32 v7, 0x70, v1
v_add_u32 v5, v5, v7
s_lshl_b32 s21, s4, 2
s_sub_u32 s22, 14, s21
s_sub_u32 s21, 16, s21
s_cmp_eq_u32 s4, 0
s_cselect_b32 s21, 8, s21
s_mul_i32 s21, s21, {cp}
s_mul_i32 s22, s22, {cp}
v_lshrrev_b32 v7, 5, v0
v_mad_u32_u24 v53, v7, s22, v5
v_mad_u32_u24 v5, v7, s21, v5
s_mul_i32 s20, s5, {br}
s_lshl_b32 s21, s3, 7
s_add_u32 s20, s20, s21
s_lshl_b32 s21, s6, 11
s_add_u32 s20, s20, s21
s_mul_i32 s21, s4, {c2}
s_add_u32 s28, s20, s21
s_add_u32 s29, s28, {cp}
'''.format(c16=16 * CP + SK, cp=CP, c2=2 * CP, br=BR))
    if opt.get('pre'):
        for i in range(4): a('v_mov_b32 v%d, 2.0' % (48 + i))
        PRE = ['buffer_store_dwordx4 v[48:51], v5, s[12:15], s28 offen %s' % opt.get('prest', 'sc1'),
               'buffer_store_dwordx4 v[48:51], v53, s[12:15], s29 offen %s' % opt.get('prest', 'sc1')]
        if opt['pre'] == 1:
            for t in PRE: a(t)
            a('s_nop 1')
    pw = opt.get('pw', 0)
    PW = []
    if pw:
        if opt.get('pwh'):
            a('s_lshl_b32 s20, s36, 11\ns_add_u32 s37, s54, s20\nv_lshlrev_b32 v55, 5, v0')
        else:
            a('s_mov_b32 s37, s54\nv_lshlrev_b32 v55, 6, v0')
        PW = ['buffer_load_dword v48, v55, s[12:15], s37 offen sc1']
    if opt.get('cde'):
        for t in CD: a(t)
    if pw == 2:
        for t in PW: a(t)
    if xp == 1: a(XD)
    a('''
s_lshl_b32 s20, s4, 1
v_bfe_u32 v32, v0, 1, 1
v_add_u32 v32, s20, v32
v_and_b32 v33, 1, v0
v_cmp_eq_u32 vcc, 0, v32
v_lshlrev_b32 v34, 3, v33
v_lshlrev_b32 v35, 2, v33
v_cndmask_b32 v32, v32, v34, vcc
v_cndmask_b32 v35, v35, 0, vcc
v_and_b32 v34, 1, v32
v_cvt_f32_u32 v32, v32
v_cvt_f32_u32 v35, v35
v_mul_u32_u24 v34, 0x8000, v34
v_mul_f32 v32, 0x3d800000, v32
v_mul_f32 v35, 0x3d800000, v35
v_lshl_or_b32 v34, v34, 16, v34
''')
    for i in range(8, 12): a('v_mov_b32 v%d, 0' % i)
    a('s_mov_b32 exec_lo, 0x%x\ns_mov_b32 exec_hi, 0x%x' % (EM_LO, EM_HI))
    for p in range(4):
        a('v_cos_f32 v36, v35\nv_add_f32 v35, v35, v32\nv_cos_f32 v37, v35')
        a('v_add_f32 v35, v35, v32' if p < 3 else 's_nop 0')
        a('v_cvt_pk_bf16_f32 v%d, v36, v37' % (8 + p))
    a('s_mov_b64 exec, -1')
    for p in range(4): a('v_xor_b32 v%d, v34, v%d' % (12 + p, 8 + p))
    if xp == 2: a(XD)
    a('''
v_lshlrev_b32 v38, 3, v0
v_and_b32 v38, 0x30, v38
v_and_b32 v39, 0x30, v0
v_add_u32 v40, s32, v39
v_add_u32 v39, s3, v39
v_and_b32 v47, 8, v0
v_cmp_ne_u32 s[56:57], 0, v47
v_cvt_f32_u32 v39, v39
v_cvt_f32_u32 v40, v40
v_cvt_f32_u32 v48, v33
v_sub_u32 v45, -16, v38
v_mul_f32 v39, 0x3a000000, v39
v_mul_f32 v40, 0x3a000000, v40
v_cndmask_b32 v45, v38, v45, s[56:57]
v_mul_f32 v49, 0x3e800000, v48
v_mul_f32 v50, 0.5, v48
v_add_u32 v45, s20, v45
v_add_f32 v43, v49, v50
v_add_u32 v46, 1, v45
v_cndmask_b32 v43, v49, v43, s[56:57]
v_add_f32 v44, v43, v50
v_mov_b32 v41, v43
v_mov_b32 v42, v44
s_cmp_lg_u32 s4, 0
s_cbranch_scc1 L_REG
v_cvt_f32_u32 v51, v6
v_add_u32 v45, v47, v38
v_and_b32 v56, 14, v0
v_add_f32 v41, 0x3e800000, v49
v_cmp_eq_u32 vcc, 0, v56
v_mul_f32 v51, v51, v50
v_cndmask_b32 v41, v49, v41, s[56:57]
s_cmp_eq_u32 s3, 0
s_cselect_b64 s[58:59], vcc, 0
v_cndmask_b32 v41, v41, v51, vcc
v_add_f32 v42, v41, v50
v_cndmask_b32 v42, v42, v41, s[58:59]
L_REG:
v_cvt_f32_i32 v45, v45
v_cvt_f32_i32 v46, v46
''')
    for al in range(2):
        a('v_mul_f32 v47, 0x3d000000, v%d' % (45 + al))
        for win in range(2):
            a('v_fma_f32 v50, v%d, v%d, v%d' % (45 + al, 39 + win, 41 + 2 * al + win))
            a('v_cos_f32 v36, v50\nv_sin_f32 v37, v50\nv_add_f32 v50, v50, v47')
            a('v_cvt_pk_bf16_f32 v%d, v36, v37' % (16 + 4 * al + 2 * win))
            a('v_cos_f32 v36, v50\nv_sin_f32 v37, v50\ns_nop 0')
            a('v_cvt_pk_bf16_f32 v%d, v36, v37' % (17 + 4 * al + 2 * win))
    a('''
s_cmp_lg_u32 s4, 0
s_cbranch_scc1 L_REG2
v_mov_b32 v36, 0xffff
v_not_b32 v37, v36
v_cndmask_b32 v36, v36, v37, s[56:57]
''')
    for p in range(4): a('v_and_b32 v%d, v36, v%d' % (16 + p, 16 + p))
    a('L_REG2:')
    if xp == 3: a(XD)
    a('''
v_and_b32 v36, 15, v0
v_lshl_add_u32 v37, v6, 2, v36
v_sub_u32 v38, 28, v37
v_sub_u32 v37, 12, v37
v_mov_b32 v41, 0
v_mov_b32 v42, 0x3f80
v_cmp_gt_u32 vcc, 4, v38
v_lshlrev_b32 v38, 4, v38
v_mov_b32 v30, 0
v_cndmask_b32 v40, 0, v42, vcc
v_cmp_gt_u32 vcc, 4, v37
v_lshlrev_b64 v[24:25], v38, v[40:41]
v_lshlrev_b32 v37, 4, v37
v_cndmask_b32 v40, 0, v42, vcc
s_mul_i32 s21, s37, 0x3f80
v_lshlrev_b64 v[26:27], v37, v[40:41]
v_mov_b32 v31, 0
v_mov_b32 v28, v26
v_mov_b32 v29, v27
v_writelane_b32 v26, s21, 48
v_writelane_b32 v28, s21, 12
''')
    a('''
v_lshlrev_b32 v3, 4, v3
v_and_b32 v4, 3, v0
v_and_b32 v7, 0x3c0, v1
s_xor_b32 s21, s37, 1
v_add_lshl_u32 v48, v4, s21, 3
v_add_lshl_u32 v49, v4, s37, 3
v_xor_b32 v48, v48, v3
v_xor_b32 v3, v49, v3
v_add_u32 v48, v48, v7
v_add_u32 v3, v3, v7
v_xor_b32 v49, 32, v48
s_mul_i32 s20, s4, 2304
s_add_u32 s20, s20, %d
v_lshrrev_b32 v2, 2, v0
v_mul_u32_u24 v2, 72, v2
v_lshl_add_u32 v2, v4, 4, v2
v_add_u32 v2, s20, v2
v_xor_b32 v4, 32, v3
s_lshl_b32 s21, s6, 4
s_and_b32 s21, s21, 32
s_add_u32 s22, s20, s21
s_xor_b32 s21, s21, 32
s_add_u32 s23, s20, s21
v_mul_u32_u24 v7, 72, v36
v_lshl_add_u32 v7, v6, 3, v7
v_add_u32 v6, s22, v7
v_add_u32 v7, s23, v7
s_mul_i32 s30, s37, 0xffff
''' % L_STG)
    NONCE = '''
s_waitcnt lgkmcnt(0)
s_or_b32 s34, s34, 0x40000000
s_or_b32 s35, s35, 0x40004000
s_add_u32 s34, s34, 0x2b150000
s_add_u32 s35, s35, 0x1e3739b9
s_and_b32 s34, s34, 0xbfff0000
s_and_b32 s35, s35, 0xbfffbfff
'''
    a(NONCE)
    if opt.get('pre', 0) >= 2:
        for i in range(4): a('v_mov_b32 v%d, 2.0' % (48 + i))
    a('s_mov_b32 s56, 0\ns_mov_b32 s57, 0xffff0000\nv_mov_b32 v54, s34')
    if opt.get('pw2'): a('s_cmp_ge_u32 s4, 2\ns_cbranch_scc1 L_NOXW')
    a('s_waitcnt vmcnt(%d)\nL_NOXW:' % (2 if opt.get('sp') else 0))
    stamp(a, opt, 2)
    if opt.get('stamp') and not opt.get('prof'): a('s_waitcnt lgkmcnt(0)')
    if opt.get('pre') == 3:
        for t in PRE: a(t)
    a('s_barrier')
    if opt.get('eh'):
        a('''s_lshl_b32 s20, s4, 8
s_add_u32 s20, s20, s2
s_cmp_lt_u32 s20, 1008
s_cbranch_scc1 L_NOEH
s_lshl_b32 s20, s2, 7
s_and_b32 s20, s20, 0x780
s_add_u32 s20, s20, %d
v_lshl_add_u32 v56, v1, 7, s20
v_mov_b32 v57, s35
s_mov_b64 exec, 0xff
global_store_dword v56, v57, s[12:13] sc1
s_mov_b64 exec, -1
L_NOEH:''' % HINT)
    pstamp(a, opt, 0)
    if opt.get('pre') == 2:
        pass
    CDL = (PRE if opt.get('pre') == 2 else []) + ([] if opt.get('cde') else CD) + (PW if pw == 1 else [])
    a('; phase 1')
    order = [(win, kap, nt, bp) for win in (1, 0) for kap in range(2) for nt in range(2) for bp in range(2)]
    ACC = lambda win, nt, bp: 32 + 4 * (bp + 2 * nt) if win else 112 + 4 * (bp + 2 * nt)
    OPR = lambda i: 56 + 4 * (i % 14) if i < 14 else 56 + 4 * (i - 14)
    def rd(i):
        win, kap, nt, bp = order[i]
        t = ['ds_read_b64_tr_b16 %s, v%d offset:%d' % (vr(OPR(i) + 2 * hh, 2), (48 if win else 3) + nt, (2 * kap + hh) * 4096 + win * 2048 + bp * 1024) for hh in range(2)]
        return [t[0], ('T', i, t[1])]
    def mf(i):
        win, kap, nt, bp = order[i]
        A = ACC(win, nt, bp)
        return '%s %s, %s, %s, %s' % (M32, vr(A), vr(8 + 4 * kap), vr(OPR(i)), vr(A) if kap else '0')
    A2 = lambda al, win, nt: 64 + 2 * (al + 2 * nt) if win else 32 + 2 * (al + 2 * nt)
    def cv(win, nt):
        return ['v_cvt_pk_bf16_f32 v%d, v%d, v%d' % (A2(al, win, nt) + p, ACC(win, nt, p) + 2 * al, ACC(win, nt, p) + 2 * al + 1) for al in range(2) for p in range(2)]
    D2M = lambda al, nt: 32 + 4 * (nt + 2 * al)
    B2 = lambda al: 72 + 4 * al
    D2 = lambda al, nt: (188 if opt.get('sp') else 80) + 4 * (nt + 2 * al)
    def m2m(al, nt): return '%s %s, %s, %s, 0' % (M16, vr(D2M(al, nt)), vr(A2(al, 1, nt), 2), vr(18 + 4 * al, 2))
    def cvm(al): return ['v_cvt_pk_bf16_f32 v%d, v%d, v%d' % (B2(al) + 2 * nt + h, D2M(al, nt) + 2 * h, D2M(al, nt) + 2 * h + 1) for nt in range(2) for h in range(2)]
    def mp(al, nt): return '%s %s, %s, %s, 0' % (M32, vr(D2(al, nt)), vr(24 + 4 * nt), vr(B2(al)))
    D3 = lambda al, nt: (204 if opt.get('sp') else 188) + 4 * al if nt else D2(al, 0)
    def m2(al, nt): return '%s %s, %s, %s, %s' % (M16, vr(D3(al, nt)), vr(A2(al, 0, nt), 2), vr(16 + 4 * al, 2), vr(D2(al, nt)))
    XT = ['v_cvt_pk_bf16_f32 v%d, v%d, v%d' % (50 + al, D2(al, 1), D2(al, 1)) for al in range(2)]
    PK = lambda al, nt: 96 + 2 * (nt + 2 * al)
    def pack(al, nt): return ['v_cvt_pk_bf16_f32 v%d, v%d, v%d' % (PK(al, nt) + h, D3(al, nt) + 2 * h, D3(al, nt) + 2 * h + 1) for h in range(2)]
    def wr(al, nt): return 'ds_write_b64 v%d, %s offset:%d' % (6 + nt, vr(PK(al, nt), 2), 1152 * al)
    R = lambda *ii: [x[2] if isinstance(x, tuple) else x for i in ii for x in rd(i)]
    seq = R(*range(14)) + [mf(i) for i in range(8)] + R(14, 15) + CDL + cv(1, 0) + cv(1, 1) + [m2m(0, 0), m2m(0, 1), m2m(1, 0), m2m(1, 1)]
    seq += [mf(i) for i in range(8, 12)] + cvm(0) + cvm(1) + [mp(0, 0), mp(0, 1), mp(1, 0), mp(1, 1)] + [mf(i) for i in range(12, 16)]
    seq += cv(0, 0) + cv(0, 1) + [m2(0, 0), m2(1, 0), m2(0, 1), m2(1, 1)] + XT
    seq += pack(0, 0) + pack(1, 0) + [wr(0, 0), wr(1, 0)] + pack(0, 1) + pack(1, 1)
    bo = cv(1, 0) + cv(1, 1) + [m2m(0, 0), m2m(0, 1), m2m(1, 0), m2m(1, 1)] + [mf(i) for i in range(8)] if not opt.get('nob') else []
    if opt.get('sp'):
        s1 = R(*range(8)) + [mf(i) for i in range(8)] + cv(1, 0) + cv(1, 1) + [m2m(0, 0), m2m(0, 1), m2m(1, 0), m2m(1, 1)]
        s1b = cvm(0) + cvm(1) + [mp(0, 0), mp(0, 1), mp(1, 0), mp(1, 1)]
        if opt['sp'] == 1: s1 += s1b; s1b = []
        s2 = R(*range(8, 16)) + CDL + s1b + [mf(i) for i in range(8, 16)] + cv(0, 0) + cv(0, 1) + [m2(0, 0), m2(1, 0), m2(0, 1), m2(1, 1)] + XT
        s2 += pack(0, 0) + pack(1, 0) + [wr(0, 0), wr(1, 0)] + pack(0, 1) + pack(1, 1)
        for t in schedule(s1, verbose=opt.get('v'), **SO): a(t)
        a('s_waitcnt vmcnt(0)\ns_barrier')
        for t in schedule(s2, boost=CDL, pin=[(CDL[i], R(*range(8, 16))[min(15, 7 + 2 * i)]) for i in range(len(CDL))], verbose=opt.get('v'), **SO): a(t)
    else:
        for t in schedule(seq, boost=bo + CDL, pin=[(CDL[i], R(*range(8))[min(15, opt.get('p0', 7) + 2 * i)]) for i in range(len(CDL))], verbose=opt.get('v'), **SO): a(t)
    pstamp(a, opt, 1)
    a('s_mov_b64 exec, s[56:57]')
    for al in range(2):
        a('v_and_or_b32 v%d, v%d, s30, v54\nv_mov_b32 v%d, s35' % (PK(al, 1), 50 + al, PK(al, 1) + 1))
    a('s_mov_b64 exec, -1')
    for al in range(2):
        a(wr(al, 1))
        a('ds_read2_b64 %s, v2 offset0:%d offset1:%d' % (vr(104 + 4 * al), 144 * al, 144 * al + 1))
    pstamp(a, opt, 2)
    if opt.get('prof'): a('s_waitcnt lgkmcnt(0)')
    a('s_waitcnt lgkmcnt(2)' + ('' if opt.get('cde') or opt.get('rs') or opt.get('nv') else ' vmcnt(0)'))
    if opt.get('pw2') or opt.get('bb'): a('s_barrier')
    a('buffer_store_dwordx4 v[104:107], v5, s[12:15], s28 offen %s' % opt.get('k1st', 'sc1'))
    a('s_waitcnt lgkmcnt(0)')
    a('buffer_store_dwordx4 v[108:111], v53, s[12:15], s29 offen %s' % opt.get('k1st', 'sc1'))
    stamp(a, opt, 3)
    pstamp(a, opt, 3)
    if opt.get('xh') and not opt.get('eh'):
        a('''s_lshl_b32 s20, s4, 8
s_add_u32 s20, s20, s2
s_cmp_lt_u32 s20, 1008
s_cbranch_scc1 L_P2
s_lshl_b32 s20, s2, 7
s_and_b32 s20, s20, 0x780
s_add_u32 s20, s20, %d
v_lshl_add_u32 v8, v1, 7, s20
v_mov_b32 v9, s35
s_mov_b64 exec, %d
HLWAIT
global_store_dword v8, v9, s[12:13] sc1
s_mov_b64 exec, -1
%s
s_branch %s''' % (HINT, 0xff if opt.get('ah') else 1, '' if opt.get('nv') else 's_waitcnt vmcnt(1)' if opt.get('pw2') or opt.get('bb') else 's_barrier\ns_waitcnt vmcnt(1)', 'L_P2' if opt.get('nv') else 'L_P3'))
    else:
        a('s_branch L_P2')
    a('L_CONS:')
    if opt.get('aw') == 2:
        a('''s_lshl_b32 s20, s5, 10
s_add_u32 s20, s20, %d
v_lshrrev_b32 v8, 3, v0
v_lshlrev_b32 v8, 11, v8
v_and_b32 v9, 7, v0
v_lshl_add_u32 v8, v9, 7, v8
v_add_u32 v8, s20, v8
global_load_dword v9, v8, s[12:13] sc1''' % HINT)
    a(NONCE)
    for t in CD: a(t)
    a('L_P2:\ns_waitcnt vmcnt(0)\ns_barrier' if opt.get('nv') else 'L_P2:' if opt.get('rs') else 's_waitcnt vmcnt(0)\ns_barrier\nL_P2:' if opt.get('pw2') or opt.get('bb') else 's_waitcnt vmcnt(0)\nL_P2:\ns_barrier')
    if opt.get('pa') and not opt.get('nv'): a('s_waitcnt vmcnt(0)')
    a('L_P3:')
    if opt.get('ah'):
        a('s_mov_b64 exec, 0xff\nglobal_load_dword v9, v55, s[12:13] sc1\ns_mov_b64 exec, -1')
    DB = L_DAT if opt.get('rs') else 0
    a('''
v_lshrrev_b32 v6, 4, v0
v_lshlrev_b32 v{b0}, 12, v6
v_and_b32 v7, 0xc0, v1
v_add_u32 v{b0}, v{b0}, v7
v_and_b32 v6, 1, v6
v_lshl_add_u32 v{b0}, v6, 5, v{b0}
v_and_b32 v6, 3, v0
v_lshl_add_u32 v{b0}, v6, 3, v{b0}
v_add_u32 v{b0}, {db}, v{b0}
v_xor_b32 v{b1}, 32, v{b0}
v_and_b32 v{f}, 31, v0
v_lshrrev_b32 v6, 5, v0
v_lshl_add_u32 v6, v{f}, 1, v6
v_add_u32 v7, 1, v6
v_cmp_ne_u32 vcc, 56, v7
v_mov_b32 v{t}, 0x40000000
v_lshlrev_b32 v6, 4, v6
v_cndmask_b32 v7, 0, v7, vcc
v_cmp_gt_u32 vcc, 28, v{f}
v_sub_u32 v{m}, 880, v6
v_and_b32 v{u}, 1, v7
v_cndmask_b32 v{f}, v{t}, v6, vcc
v_cndmask_b32 v{m}, v{t}, v{m}, vcc
v_lshlrev_b32 v7, 1, v7
v_and_b32 v7, 0x7c, v7
v_lshl_add_u32 v{p}, v{u}, 7, v7
s_lshl_b32 s22, s4, 12
s_add_u32 s22, s22, {db}
s_and_b32 s20, s4, 1
s_lshl_b32 s20, s20, 5
s_sub_u32 s20, 56, s20
s_add_u32 s20, s20, s22
v_and_b32 v{tg}, 0x3c0, v1
v_add_u32 v{tg}, s20, v{tg}
v_lshl_add_u32 v{u}, v1, 2, s20
v_and_b32 v6, 0xf0, v1
v_add_u32 v6, s53, v6
v_add_u32 v7, {cc}, v1
'''.format(cc=L_CONST, db=DB, **V))
    if opt.get('lin2'):
        a('''v_cmp_gt_u32 vcc, 56, v0
s_nop 1
v_cndmask_b32 v{f}, v{t}, v1, vcc
v_cndmask_b32 v{m}, v{t}, v1, vcc'''.format(**V))
    for i in range(16): a('v_mov_b32 v%d, 0' % (CA + i))
    a('''
s_lshl_b32 s21, s4, 8
s_add_u32 s48, s21, s31
s_add_u32 s49, s48, 128
s_cmp_eq_u32 s36, 2
s_cselect_b32 s21, 1023, -1
s_and_b32 s49, s49, s21
s_sub_u32 s50, 2048, s48
s_sub_u32 s51, 2048, s49
s_and_b32 s51, s51, 2047
s_mul_i32 s20, s5, 896
s_mul_i32 s48, s48, 1792
s_mul_i32 s49, s49, 1792
s_mul_i32 s50, s50, 1792
s_mul_i32 s51, s51, 1792
s_add_u32 s48, s48, s20
s_add_u32 s49, s49, s20
s_add_u32 s50, s50, s20
s_add_u32 s51, s51, s20
s_mov_b32 s52, 0xffff
s_mov_b32 s55, %s
s_mov_b32 m0, s22
''' % ('0x40000' if opt.get('stamp') else '0x400000'))
    def const_reads():
        a('s_mov_b32 exec_lo, 0x%x\ns_mov_b32 exec_hi, 0x%x' % (EM_LO, EM_HI))
        for k in range(4): a('ds_read_b128 %s, v6 offset:%d' % (vr(CA + 4 * k), 2048 + 256 * k))
        a('s_mov_b64 exec, -1')
        for i in range(8): a('ds_read_b128 %s, v7 offset:%d' % (vr(CTW + 4 * i), (i >> 1) * 3072 + (i & 1) * 1024))
    if not opt.get('rs'): const_reads()
    ld = opt.get('k2ld', 'sc1')
    sent = opt.get('sent', 0)
    if not opt.get('early') and sent != 2 and not opt.get('pa'): a('s_waitcnt vmcnt(0)')
    stamp(a, opt, 4)
    if opt.get('slp'): a('s_sleep %d' % opt['slp'])
    if opt.get('lw'): a('s_waitcnt lgkmcnt(0)')
    if opt.get('lw') == 2: a('s_barrier')
    if opt.get('eh'):
        a('''s_mov_b64 exec, 0xff
s_waitcnt vmcnt(0)
v_cmp_ne_u32 vcc, s35, v9
s_cbranch_vccz L_POLL0
L_SENT:
global_load_dword v9, v55, s[12:13] sc1
s_waitcnt vmcnt(0)
v_cmp_ne_u32 vcc, s35, v9
s_cbranch_vccz L_SENT2
s_sub_u32 s55, s55, 1
s_cbranch_scc0 L_SENT
L_SENT2:''')
        for i in range(opt['eh'] - 1): a('global_load_dword v9, v55, s[12:13] sc1\ns_waitcnt vmcnt(0)')
    elif opt.get('ah'):
        a('''s_mov_b64 exec, 0xff
L_SENT:
s_waitcnt vmcnt(0)
v_cmp_ne_u32 vcc, s35, v9
s_and_b64 exec, exec, vcc
s_cbranch_scc0 L_POLL0
global_load_dword v9, v55, s[12:13] sc1
s_sub_u32 s55, s55, 1
s_cbranch_scc0 L_SENT''')
    elif opt.get('xh'):
        a('''s_cmp_lt_u32 s2, 256
s_cbranch_scc1 L_POLL0
s_lshl_b32 s20, s5, 10
s_add_u32 s20, s20, %d
v_lshl_add_u32 v8, v1, 3, s20
s_mov_b64 exec, 0xff
L_SENT:
global_load_dword v9, v8, s[12:13] sc1
s_waitcnt vmcnt(0)
v_cmp_ne_u32 vcc, s35, v9
s_and_b64 exec, exec, vcc
s_cbranch_scc0 L_POLL0
s_sub_u32 s55, s55, 1
s_cbranch_scc0 L_SENT''' % HINT)
    else:
        if sent:
            a('s_mov_b32 exec_lo, 0x%x\ns_mov_b32 exec_hi, 0x%x' % ((opt.get('sm', 0x0f0f0f0f),) * 2))
        else:
            a('s_cmp_lt_u32 s2, 256\ns_cbranch_scc1 L_POLL0\ns_mov_b64 exec, 15')
        a('''
L_SENT:
buffer_load_dwordx4 v1, s[12:15], s54 offen {ld} lds
s_waitcnt vmcnt(0)
ds_read_b64 v[8:9], v{tg}
s_waitcnt lgkmcnt(0)
v_cmp_ne_u32 vcc, s35, v9
s_cbranch_vccz L_POLL0
s_sub_u32 s55, s55, 1
s_cbranch_scc0 L_SENT'''.format(ld=ld, **V))
    a('''
L_POLL0:
s_mov_b64 exec, -1
'''.format(ld=ld, **V))
    for k in range(4): a('buffer_load_dwordx4 v1, s[12:15], s54 offen offset:%d %s lds' % (1024 * k, opt.get('ld1', ld)))
    if opt.get('rs'):
        a('s_barrier')
        const_reads()
    a('s_branch L_CHK\nL_POLL:')
    for k in range(4):
        a('s_mov_b64 exec, s[%d:%d]\ns_cbranch_execz L_NO%d' % (56 + 2 * k, 57 + 2 * k, k))
        a('buffer_load_dwordx4 v1, s[12:15], s54 offen offset:%d %s lds' % (1024 * k, ld))
        a('L_NO%d:' % k)
    a('s_mov_b64 exec, -1\nL_CHK:\ns_waitcnt vmcnt(0)')
    if not opt.get('slowchk'):
        a('''ds_read_b64 v[8:9], v{u}
s_waitcnt lgkmcnt(0)
v_and_b32 v8, 0xffff0000, v8
v_cmp_ne_u64 vcc, s[34:35], v[8:9]
s_cbranch_vccz L_GO'''.format(**V))
    for k in range(4): a('ds_read_b64 %s, v%d offset:%d' % (vr(8 + 2 * k, 2), V['tg'], 1024 * k))
    for k in range(4):
        a('s_waitcnt lgkmcnt(%d)' % (3 - k))
        a('v_and_b32 v%d, 0xffff0000, v%d' % (8 + 2 * k, 8 + 2 * k))
        a('v_cmp_ne_u64 s[%d:%d], s[34:35], %s' % (56 + 2 * k, 57 + 2 * k, vr(8 + 2 * k, 2)))
    a('''
s_or_b64 s[64:65], s[56:57], s[58:59]
s_or_b64 s[66:67], s[60:61], s[62:63]
s_or_b64 s[64:65], s[64:65], s[66:67]
s_cbranch_scc0 L_GO
s_sub_u32 s55, s55, 1
s_cbranch_scc0 L_POLL
L_GO:
''')
    stamp(a, opt, 5)
    if opt.get('stamp') and not opt.get('prof'): a('s_waitcnt lgkmcnt(0)')
    a('s_cmp_ge_u32 s2, 256\ns_barrier\ns_cbranch_scc1 L_ONE')
    pstamp(a, opt, 4)
    a('; phase 2')
    order = [(ta, kap, sub) for ta in range(2) for kap in range(4) for sub in range(2)]
    DA = lambda ta, sub: 8 + 4 * (sub + 2 * ta)
    OPR = lambda i: 24 + 4 * i
    def rd(i):
        ta, kap, sub = order[i]
        t = ['ds_read_b64_tr_b16 %s, v%d offset:%d' % (vr(OPR(i) + 2 * hh, 2), V['b0'] + ta, (4 * kap + 2 * hh) * 128 + sub * 2048) for hh in range(2)]
        return [t[0], ('T', i, t[1])]
    def mf(i):
        ta, kap, sub = order[i]
        return '%s %s, %s, %s, %s' % (M32, vr(DA(ta, sub)), vr(CA + 4 * kap), vr(OPR(i)), vr(DA(ta, sub)) if kap else '0')
    A1 = lambda tl, ta: 88 + 2 * (tl + 2 * ta)
    def cv(ta):
        return ['v_cvt_pk_bf16_f32 v%d, v%d, v%d' % (A1(tl, ta) + p, DA(ta, p) + 2 * tl, DA(ta, p) + 2 * tl + 1) for tl in range(2) for p in range(2)]
    D1 = lambda tl, ta, c: 96 + 4 * (c + 2 * tl) if ta == 0 else 112 + 4 * (c + 2 * tl)
    def b1(tl, ta, c):
        return '%s %s, %s, %s, 0' % (M16, vr(D1(tl, ta, c)), vr(A1(tl, ta), 2), vr(CB1 + 2 * c, 2))
    HT = lambda tl, ta: 24 + 8 * (tl + 2 * ta)
    HP = lambda tl, ta: 8 + 4 * tl if ta == 0 else 56 + 4 * tl
    def tw(tl, ta):
        r, i, h, co, si = D1(tl, ta, 0), D1(tl, ta, 1), HT(tl, ta), CTW + 8 * ta, CTW + 4 + 8 * ta
        o = []
        for x, y, c in ((r, i, co), (i, r, si), (r, i, co)):
            if '%d%d' % (tl, ta) in str(opt.get('pk', '')).split(','):
                o += ['v_pk_fma_f32 %s, %s, %s, %s' % (vr(x + q, 2), vr(c + q, 2), vr(y + q, 2), vr(x + q, 2)) for q in (0, 2)]
            else:
                o += ['v_fmac_f32 v%d, v%d, v%d' % (x + q, c + q, y + q) for q in range(4)]
        n = len(o) // 3
        o = o[:2 * n] + [t + ' ' for t in o[2 * n:]]
        for q in range(4):
            o.append('v_cvt_pk_bf16_f32 v%d, v%d, v%d' % (HP(tl, ta) + q, (r, r, i, i)[q] + 2 * (q & 1), (r, r, i, i)[q] + 2 * (q & 1) + 1))
        return o
    D2 = lambda tl, mu: 64 + 4 * (mu + 2 * tl)
    def b2(tl, mu, ta):
        return '%s %s, %s, %s, %s' % (M32, vr(D2(tl, mu)), vr(HP(tl, ta)), vr(CB2 + 4 * (2 * mu + ta)), vr(D2(tl, mu)) if ta else '0')
    F = lambda tl: 80 + 4 * tl
    M = lambda tl: 96 + 4 * tl
    st = opt.get('k2st', 'sc1')
    def fin(tl):
        o = []
        for mu in range(2):
            for h in range(2):
                o.append('v_cvt_pk_bf16_f32 v%d, v%d, v%d' % (F(tl) + 2 * mu + h, D2(tl, mu) + 2 * h, D2(tl, mu) + 2 * h + 1))
        return o
    def fin2(tl):
        return ['v_permlane16_swap_b32 v%d, v%d' % (F(tl), F(tl) + 2),
                'v_permlane16_swap_b32 v%d, v%d' % (F(tl) + 1, F(tl) + 3),
                'ds_bpermute_b32 v%d, v%d, v%d' % (2 + tl, V['p'], F(tl)),
                'buffer_store_dwordx4 %s, v%d, s[44:47], s%d offen %s' % (vr(F(tl)), V['f'], 48 + tl, st)]
    def mir(tl):
        return ['v_bfi_b32 v%d, s52, v%d, v%d' % (M(tl) + q, F(tl) + 4 - q, F(tl) + 3 - q) for q in (1, 2, 3)]
    def mir2(tl):
        return ['v_bfi_b32 v%d, s52, v%d, v%d' % (M(tl), 2 + tl, F(tl) + 3),
                'buffer_store_dwordx4 %s, v%d, s[44:47], s%d offen %s' % (vr(M(tl)), V['m'], 50 + tl, st)]
    t00, t10, t01, t11 = tw(0, 0), tw(1, 0), tw(0, 1), tw(1, 1)
    seq = R(*range(16)) + [mf(i) for i in range(8)] + cv(0) + [b1(0, 0, 0), b1(0, 0, 1), b1(1, 0, 0), b1(1, 0, 1)]
    seq += [mf(i) for i in range(8, 16)] + t00 + t10 + cv(1) + [b1(0, 1, 0), b1(0, 1, 1), b1(1, 1, 0), b1(1, 1, 1)]
    seq += [b2(0, 0, 0), b2(0, 1, 0), b2(1, 0, 0), b2(1, 1, 0)] + t01 + [b2(0, 0, 1), b2(0, 1, 1)] + t11 + [b2(1, 0, 1), b2(1, 1, 1)]
    seq += fin(0) + fin2(0) + mir(0) + mir2(0) + fin(1) + fin2(1) + mir(1) + mir2(1)
    bo = cv(0) + [b1(0, 0, 0), b1(0, 0, 1), b1(1, 0, 0), b1(1, 0, 1)] + [mf(i) for i in range(8)] if not opt.get('nob') else []
    bo2 = bo
    if opt.get('t0') == 1:
        bo2 = bo + t00 + cv(1)[:2] + [b1(0, 1, 0), b1(0, 1, 1), b2(0, 0, 0), b2(0, 1, 0)] + t01 + [b2(0, 0, 1), b2(0, 1, 1)] + fin(0) + fin2(0) + mir(0) + mir2(0)
    if opt.get('t0') == 2:
        bo2 = bo + t01 + [b2(0, 0, 1), b2(0, 1, 1)] + fin(0) + fin2(0) + mir(0) + mir2(0)
    for t in schedule(seq, boost=bo2, verbose=opt.get('v'), **SO): a(t)
    a('s_branch L_FIN\nL_ONE:\ns_cmp_lg_u32 s4, 0\ns_cbranch_scc1 L_FIN')
    seq = R(*range(16)) + [mf(i) for i in range(8)] + cv(0)[:2] + [b1(0, 0, 0), b1(0, 0, 1)]
    seq += [mf(i) for i in range(8, 16)] + t00 + cv(1)[:2] + [b1(0, 1, 0), b1(0, 1, 1), b2(0, 0, 0), b2(0, 1, 0)] + t01 + [b2(0, 0, 1), b2(0, 1, 1)]
    seq += fin(0) + fin2(0)[:2] + fin2(0)[3:]
    for t in schedule(seq, boost=bo, verbose=opt.get('v'), **SO): a(t)
    a('''
s_lshl_b32 s20, s5, 7
s_add_u32 s20, s20, %d
v_mov_b32 v4, s20
v_mov_b32 v6, s34
v_mov_b32 v7, s35
s_mov_b64 exec, 1
global_store_dwordx2 v4, v[6:7], s[12:13]
s_mov_b64 exec, -1
''' % CELL)
    a('L_FIN:')
    stamp_out(a, opt, 8)
    a('L_END:\ns_endpgm')
    for i in a.ins:
        if i.text == 'HLWAIT': i.__init__('s_waitcnt vmcnt(0)' if opt.get('hl') else ';')
    return a.finish(opt.get('v'))

def build(opt):
    tabs = d3.build_tables()
    hdr = open('cdna_kernels/%s.s.ref' % NAME).read().split('; Override launch')[0]
    s = hdr
    if opt.get('diag'):
        s += '; @launch kernel=%s grid=(%d,1,1) block=(256,1,1) lds=%d\n' % (KN, NWG, LDS + (16384 if opt.get('rs') else 0))
        s += '; @launch kernel=k3_kernel grid=(1,1,1) block=(64,1,1) lds=0\n'
    else:
        s += '; @launch grid=(%d,1,1) block=(256,1,1) lds=%d\n' % (NWG, LDS + (16384 if opt.get('rs') else 0))
    s += DOC
    s += '.amdgcn_target "amdgcn-amd-amdhsa--gfx950"\n.text\n'
    s += '.globl %s\n.p2align 8\n.type %s,@function\n' % (KN, KN) + gen(opt)
    if opt.get('diag'):
        s += '.globl k3_kernel\n.p2align 8\n.type k3_kernel,@function\n' + gen_k3(opt, [opt.get('nw', 1024)])
    s += '.p2align 8\n.type K2_TAB,@object\nK2_TAB:\n' + emit_data(k2_table(tabs))
    s += '.section .rodata,"a"\n' + kd(KN, 212 if opt.get('sp') else 196, 96)
    if opt.get('diag'):
        s += kd('k3_kernel', 8, 32)
    return s

if __name__ == '__main__':
    out = sys.argv[1]
    opt = {}
    for kv in sys.argv[2:]:
        k, _, v = kv.partition('=')
        opt[k] = int(v) if v.lstrip('-').isdigit() else (v.replace('+', ' ') if v else 1)
    s = build(opt)
    open(out, 'w').write(s)
    print(out, len(s), 'bytes')
```

```python
import sys, numpy as np
from asmlib import Asm
from sched import schedule
import design as dz
import design3 as d3
from gen import gen_k3, NAME, XB, OUTB, vr, op_bytes, emit_data, kd

KN = NAME + '_kernel'
NWG = 258
CH = 16384
WSB = 2 * 72 * CH
CELL = WSB
HINT = WSB + 1024
L_CONST = 16384
L_STG = 28672
L_DAT = L_STG + 4 * 2304
LDS = L_DAT
SB = 72
EM_LO, EM_HI = 0x00F0000F, 0xF0000F00
M32 = 'v_mfma_f32_16x16x32_bf16'
M16 = 'v_mfma_f32_16x16x16_bf16'


DOC = """;
; Phase 2 (all workgroups: branch, t1, 8 values of t2): 16-point DFT over c, 448-point DFT over d (16 x 28, fp32
;
"""

def pstamp(a, opt, i):
    if opt.get('prof'):
        a('s_memtime s[%d:%d]' % (SB + 2 * i, SB + 1 + 2 * i))

def stamp(a, opt, i):
    if opt.get('st2'):
        i = {0: 0, 1: 1, 'a': 2, 'b': 3, 2: 4, 3: 5, 6: 6, 7: 7}.get(i)
        if i is None: return
    elif isinstance(i, str): return
    if opt.get('stamp') and not opt.get('prof'):
        a('s_memrealtime s[%d:%d]' % (SB + 2 * i, SB + 1 + 2 * i))

def stamp_out(a, opt, n):
    if not opt.get('stamp'):
        return
    stamp(a, opt, n - 2)
    if opt.get('prof'): n = opt['prof']; pstamp(a, opt, n - 1)
    a('s_waitcnt vmcnt(0)')
    stamp(a, opt, n - 1)
    a('s_getreg_b32 s58, hwreg(HW_REG_XCC_ID)')
    a('s_getreg_b32 s59, hwreg(HW_REG_HW_ID)')
    a('s_lshl_b32 s62, s2, 2\ns_add_u32 s62, s62, s4\ns_lshl_b32 s62, s62, 6\ns_add_u32 s62, s62, %d' % (16 << 20))
    a('s_load_dwordx2 s[12:13], s[0:1], 96')
    a('s_waitcnt lgkmcnt(0)\ns_add_u32 s60, s12, s62\ns_addc_u32 s61, s13, 0')
    a('v_mov_b32 v0, 0')
    for i in range(n):
        a('v_mov_b32 v1, s%d\nglobal_store_dword v0, v1, s[60:61] offset:%d' % (SB + 2 * i, 4 * i))
    a('v_mov_b32 v1, s55\nglobal_store_dword v0, v1, s[60:61] offset:52')
    a('v_mov_b32 v1, s58\nglobal_store_dword v0, v1, s[60:61] offset:56')
    a('v_mov_b32 v1, s59\nglobal_store_dword v0, v1, s[60:61] offset:60')

def k2_table(tabs):
    b = b''
    for ta in range(2):
        for x in tabs['k2tw'][ta]:
            b += x.astype('<f4').tobytes()
    for mu in range(2):
        for ta in range(2):
            b += op_bytes(tabs['k2B2'][mu][ta])
    b += op_bytes(np.concatenate(tabs['k2B1'], axis=1))
    act = [l for l in range(64) if ((l & 15) >> 2) == (l >> 4)]
    for v in range(5):
        for w in range(4):
            for k in range(4):
                b += op_bytes(tabs['k2A'][v][w][k][act])
    return b

CA, CB1, CTW, CB2 = 128, 144, 148, 164
VA = 180

def paired(a, rd, mf, after, n=16, depth=7):
    for i in range(depth): rd(i)
    issued = depth
    for k in range(n // 2):
        a('s_waitcnt lgkmcnt(%d)' % (2 * (issued - 2 * k - 2)))
        mf(2 * k); mf(2 * k + 1)
        for _ in range(2):
            if issued < n:
                rd(issued); issued += 1
        for t in after.get(k, []): a(t)

def emit(a, seq):
    pos = {}; n = 0
    for it in seq:
        if isinstance(it, tuple) and it[0] == 'W':
            a('s_waitcnt lgkmcnt(%d)' % (n - pos[it[1]]))
            continue
        if isinstance(it, tuple):
            _, key, it = it
            pos[key] = n + 1
        if it.startswith('ds_'): n += 1
        a(it)

def zipm(*lists):
    tot = sum(len(l) for l in lists); idx = [0] * len(lists); o = []
    for k in range(tot):
        j = min((j for j in range(len(lists)) if idx[j] < len(lists[j])), key=lambda j: (idx[j] + 0.5) / len(lists[j]))
        o.append(lists[j][idx[j]]); idx[j] += 1
    return o

def mix(xs, ys, step, first=0):
    ys = list(ys); o = []
    for n, x in enumerate(xs):
        if n >= first and (n - first) % step == 0 and ys:
            o.append(ys.pop(0))
        o.append(x)
    return o + ys

def gen(opt):
    a = Asm()
    SO = dict(ds_lat=opt.get('lat', 64), ds_gap=opt.get('gap', 83) / 10., slack=opt.get('slack', -20))
    CP = CH + opt.get('cp', 0); SK = opt.get('sk', 0); BR = 72 * CH if CP != CH or SK else 64 * CH
    assert 64 * CP + 4 * SK <= BR
    V = dict(b0=VA, b1=VA + 1, f=VA + 2, m=VA + 3, p=VA + 4, tg=VA + 5, t=VA + 6, u=VA + 7)
    a('''
%s:
s_bfe_u32 s5, s2, 0x10003
s_mul_i32 s7, s5, 40
s_load_dwordx2 s[8:9], s[0:1], s7
s_load_dwordx2 s[12:13], s[0:1], 96
s_load_dwordx2 s[44:45], s[0:1], 80
s_cmp_ge_u32 s2, %d
s_cbranch_scc1 L_END
''' % (KN, NWG))
    if opt.get('fp'):
        a('; code + table -> L2 (a few workgroups per die), then one touch per cache line of this die group\'s x rows')
        a('''s_getpc_b64 s[16:17]
L_PC:
v_lshlrev_b32 v4, 7, v0
s_cmp_ge_u32 s2, %d
s_cbranch_scc1 L_NOCI
global_load_dword v59, v4, s[16:17]
L_NOCI:''' % opt.get('ci', 16))
        stamp(a, opt, 0)
        a('''s_and_b32 s33, s2, 7
s_sub_u32 s3, 16, s33
s_cmp_eq_u32 s33, 0
s_cselect_b32 s3, 8, s3
s_bfe_u32 s36, s2, 0x10004
s_cselect_b32 s3, s3, s33
s_bfe_u32 s6, s2, 0x30005
s_lshl_b32 s23, s6, 8
s_add_u32 s23, s23, s3
s_mul_i32 s23, s23, 896
v_lshrrev_b32 v9, 4, v0
v_mul_u32_u24 v9, 14336, v9
v_and_b32 v8, 15, v0
v_min_u32 v8, %d, v8
v_lshl_add_u32 v9, v8, %d, v9
s_mov_b32 s10, %d
s_mov_b32 s11, 0x20000
s_waitcnt lgkmcnt(0)''' % ((6, 7, XB) if opt['fp'] == 2 else (13, 6, XB)))
        stamp(a, opt, 1)
        a('buffer_load_dword v57, v9, s[8:11], s23 offen %s' % opt.get('pff', ''))
        a('''s_and_b32 s20, s2, 1
s_cmp_ge_u32 s2, 256
s_cselect_b32 s5, s20, s5
s_lshl_b32 s20, s5, 7
s_add_u32 s20, s20, %d
s_load_dwordx2 s[34:35], s[12:13], s20
v_lshrrev_b32 v6, 6, v0
v_and_b32 v0, 63, v0
v_readfirstlane_b32 s4, v6
s_sub_u32 s32, 16, s3
s_and_b32 s32, s32, 15
v_lshlrev_b32 v1, 4, v0
v_lshrrev_b32 v6, 4, v0
v_bfe_u32 v7, v0, 2, 2
v_mul_u32_u24 v2, 14336, v6
v_mul_u32_u24 v7, 114688, v7
v_lshrrev_b32 v3, 3, v0
v_and_b32 v3, 2, v3
v_xor_b32 v4, v3, v0
v_and_b32 v4, 3, v4
v_lshlrev_b32 v4, 4, v4
v_add3_u32 v2, v2, v7, v4
s_lshl_b32 s39, s4, 12
s_add_u32 m0, s39, 2048
s_mul_i32 s20, s4, 458752
s_and_b32 s37, s6, 1
s_mul_i32 s21, s6, 7
s_sub_u32 s21, s21, s37
s_lshl_b32 s21, s21, 3
s_mul_i32 s24, s3, 896
s_mul_i32 s26, s32, 896
s_add_u32 s24, s24, s20
s_add_u32 s26, s26, s20
s_add_u32 s24, s24, s21
s_sub_u32 s26, s26, s21
s_add_u32 s25, s24, 56320
s_add_u32 s27, s26, %d
s_add_u32 s26, s26, 832
s_mov_b32 s14, %d
s_mov_b32 s15, 0x20000''' % (CELL, 832 + 56320, WSB))
        xp = opt.get('xp', 1)
        XD = '''; x tiles -> LDS (mirror window first)
buffer_load_dwordx4 v2, s[8:11], s26 offen lds
buffer_load_dwordx4 v2, s[8:11], s27 offen offset:1024 lds
s_mov_b32 m0, s39
buffer_load_dwordx4 v2, s[8:11], s24 offen lds
buffer_load_dwordx4 v2, s[8:11], s25 offen offset:1024 lds
'''
        if xp == 0: a('s_cmp_ge_u32 s2, 256\ns_cbranch_scc1 L_SKIP1\n' + XD); stamp(a, opt, 'a')
    else:
        if opt.get('ci'):
            a('''s_cmp_ge_u32 s2, %d
s_cbranch_scc1 L_NOCI
s_getpc_b64 s[16:17]
v_lshlrev_b32 v4, 7, v0
global_load_dword v59, v4, s[16:17]
L_NOCI:''' % opt['ci'])
        stamp(a, opt, 0)
        a('''
v_lshrrev_b32 v6, 6, v0
v_and_b32 v0, 63, v0
v_readfirstlane_b32 s4, v6
s_and_b32 s33, s2, 7
s_lshr_b32 s6, s2, 5
s_sub_u32 s3, 16, s33
s_cmp_eq_u32 s33, 0
s_cselect_b32 s3, 8, s3
s_bfe_u32 s36, s2, 0x10004
s_cselect_b32 s3, s3, s33
s_sub_u32 s32, 16, s3
s_and_b32 s32, s32, 15
v_lshrrev_b32 v6, 4, v0
v_bfe_u32 v7, v0, 2, 2
v_mul_u32_u24 v2, 14336, v6
v_mul_u32_u24 v7, 114688, v7
v_lshrrev_b32 v3, 3, v0
v_and_b32 v3, 2, v3
v_xor_b32 v4, v3, v0
v_and_b32 v4, 3, v4
v_lshlrev_b32 v4, 4, v4
v_add3_u32 v2, v2, v7, v4
s_lshl_b32 s39, s4, %d
s_add_u32 m0, s39, 2048
s_mul_i32 s20, s4, %d
s_and_b32 s37, s6, 1
s_mul_i32 s21, s6, 7
s_sub_u32 s21, s21, s37
s_lshl_b32 s21, s21, 3
s_mul_i32 s24, s3, 896
s_mul_i32 s26, s32, 896
s_add_u32 s24, s24, s20
s_add_u32 s26, s26, s20
s_add_u32 s24, s24, s21
s_sub_u32 s26, s26, s21
s_add_u32 s25, s24, 56320
s_add_u32 s27, s26, %d
s_add_u32 s26, s26, %d
''' % ((13, 917504) if opt.get('pw2') else (12, 458752)).__add__((832 + 56320, 832)))
        if opt.get('al'):
            for r in (24, 25, 26, 27): a('s_and_b32 s%d, s%d, %d' % (r, r, -opt['al']))
        if opt.get('pf'):
            a('''v_cmp_le_u32 vcc, 28, v0
v_lshlrev_b32 v9, 5, v0
v_add_u32 v8, 13440, v9
v_cndmask_b32 v9, v9, v8, vcc
v_cmp_gt_u32 vcc, 56, v0
v_mov_b32 v8, 0x40000000
s_lshl_b32 s23, s6, 2
s_add_u32 s23, s23, s4
s_lshl_b32 s23, s23, 6
s_add_u32 s23, s23, s3
s_mul_i32 s23, s23, 896
s_add_u32 s38, s23, 28672
v_cndmask_b32 v9, v8, v9, vcc''')
            if opt.get('pl'):
                a('''v_lshlrev_b32 v9, 5, v0
s_lshr_b32 s23, s2, 4
s_lshl_b32 s23, s23, 3
s_add_u32 s23, s23, s33
s_lshl_b32 s23, s23, 2
s_add_u32 s23, s23, s4
s_mul_i32 s23, s23, 3584
s_add_u32 s38, s23, 1792
v_cndmask_b32 v9, v8, v9, vcc''')
            if opt.get('p64') == 2:
                a('''v_cmp_gt_u32 vcc, 28, v0
v_mul_u32_u24 v9, 9363, v0
v_lshrrev_b32 v9, 16, v9
v_mul_u32_u24 v9, 13440, v9
v_lshl_add_u32 v9, v0, 7, v9
v_cndmask_b32 v9, v8, v9, vcc''')
            if opt.get('p64') == 1:
                a('''v_mul_u32_u24 v9, 4682, v0
v_lshrrev_b32 v9, 16, v9
v_mul_u32_u24 v9, 13440, v9
v_lshl_add_u32 v9, v0, 6, v9
v_cndmask_b32 v9, v8, v9, vcc''')
        a('''
s_mov_b32 s10, %d
s_mov_b32 s11, 0x20000
s_mov_b32 s14, %d
s_mov_b32 s15, 0x20000
s_and_b32 s20, s2, 1
s_cmp_ge_u32 s2, 256
s_cselect_b32 s5, s20, s5
s_lshl_b32 s20, s5, 7
s_add_u32 s20, s20, %d
v_lshlrev_b32 v1, 4, v0
s_cmp_ge_u32 s2, 256
s_waitcnt lgkmcnt(0)
''' % (XB, WSB, CELL))
        if opt.get('wo'): a('s_add_u32 s12, s12, %d\ns_addc_u32 s13, s13, 0\ns_cmp_ge_u32 s2, 256' % (opt['wo'] << 20))
        stamp(a, opt, 1)
        a('s_cbranch_scc1 L_SKIP1')
        PF = 'buffer_load_dword v57, v9, s[8:11], s23 offen %s\nbuffer_load_dword v58, v9, s[8:11], s38 offen %s' % ((opt.get('pff', ''),) * 2)
        xp = opt.get('xp', 0)
        if opt.get('p64'): PF = PF.split('\n')[0]
        if opt.get('pf') in (1, 2):
            a(PF)
            if opt['pf'] == 2: a('s_barrier')
        XD = '''
buffer_load_dwordx4 v2, s[8:11], s26 offen lds
buffer_load_dwordx4 v2, s[8:11], s27 offen offset:1024 lds
s_mov_b32 m0, s39
buffer_load_dwordx4 v2, s[8:11], s24 offen lds
buffer_load_dwordx4 v2, s[8:11], s25 offen offset:1024 lds
'''.replace(' lds', ' %s lds' % opt.get('xf', ''))
        if opt.get('pw2'):
            a('s_cmp_ge_u32 s4, 2\ns_cbranch_scc1 L_PRE')
            a(XD)
            a('s_add_u32 m0, s22, 6144\ns_add_u32 s22, s22, 4096')
            for r in (24, 25, 26, 27): a('s_add_u32 s%d, s%d, 458752' % (r, r))
            a(XD)
            a('''s_branch L_PRE2
L_PRE:
v_lshrrev_b32 v5, 3, v0
v_lshlrev_b32 v5, 14, v5
v_and_b32 v7, 0x70, v1
v_add_u32 v5, v5, v7
s_lshl_b32 s21, s5, 20
s_lshl_b32 s23, s3, 7
s_add_u32 s21, s21, s23
s_lshl_b32 s23, s6, 11
s_add_u32 s21, s21, s23
s_and_b32 s23, s4, 1
s_lshl_b32 s23, s23, 19
s_add_u32 s24, s21, s23
s_add_u32 s25, s24, 0x20000
s_add_u32 s26, s24, 0x40000
s_add_u32 s27, s24, 0x60000''')
            for i in range(4): a('v_mov_b32 v%d, 2.0' % (48 + i))
            for r in (24, 25, 26, 27): a('buffer_store_dwordx4 v[48:51], v5, s[12:15], s%d offen sc1' % r)
            a('L_PRE2:')
        elif xp == 0:
            a(XD)
            if opt.get('pf') == 3: a(PF)
    a('''
L_SKIP1:
%s
s_lshl_b32 s22, s4, 12
s_mov_b32 s46, %d
s_mov_b32 s47, 0x20000
''' % ('' if opt.get('fp') else 's_load_dwordx2 s[34:35], s[12:13], s20', OUTB))
    if opt.get('ah'):
        a('''s_getreg_b32 s20, hwreg(HW_REG_XCC_ID, 0, 3)
s_lshl_b32 s20, s20, 1
s_add_u32 s20, s20, s5
s_lshl_b32 s20, s20, 10
s_add_u32 s20, s20, %d
v_lshl_add_u32 v55, v1, 3, s20''' % HINT)
        if opt.get('aw') == 1:
            a('s_mov_b64 exec, 0xff\nglobal_load_dword v52, v55, s[12:13] sc1\ns_mov_b64 exec, -1')
    if not opt.get('fp'): a('s_getpc_b64 s[16:17]\nL_PC:')
    a('''
s_lshl_b32 s20, s6, 3
s_add_u32 s33, s33, s20
s_lshl_b32 s31, s36, 10
s_add_u32 s31, s31, s33
s_lshr_b32 s21, 128, s36
s_cmp_eq_u32 s33, 0
s_cselect_b32 s31, s21, s31
s_cselect_b32 s20, 2, 0
s_add_u32 s36, s20, s36
s_cmp_ge_u32 s2, 256
s_cselect_b32 s33, 0, s33
s_cselect_b32 s36, 4, s36
s_cselect_b32 s31, 1024, s31
s_add_u32 s16, s16, K2_TAB-L_PC
s_addc_u32 s17, s17, 0
s_add_u32 s40, s16, 8192
s_addc_u32 s41, s17, 0
s_lshl_b32 s20, s36, 12
s_lshl_b32 s21, s4, 10
s_add_u32 s20, s20, s21
s_add_u32 s20, s20, 7168
s_add_u32 s18, s16, s20
s_addc_u32 s19, s17, 0
s_lshl_b32 s21, s4, 11
s_add_u32 s16, s16, s21
s_addc_u32 s17, s17, 0
s_mul_i32 s53, s4, 3072
s_add_u32 s53, s53, %d
s_mul_i32 s20, s5, %d
s_mul_i32 s21, s33, %d
s_add_u32 s54, s20, s21
s_lshr_b32 s21, s33, 4
s_mul_i32 s21, s21, %d
s_add_u32 s54, s54, s21
s_add_u32 s54, s54, s22
s_cmp_ge_u32 s2, 256
s_cbranch_scc1 L_CONS
''' % (L_CONST, BR, CP, SK))
    CD = ['s_mov_b32 m0, s53',
          'global_load_dwordx4 %s, v1, s[40:41]' % vr(CB1),
          'global_load_lds_dwordx4 v1, s[16:17]',
          'global_load_lds_dwordx4 v1, s[16:17] offset:1024',
          'global_load_lds_dwordx4 v1, s[18:19] offset:2048']
    a('''v_bfe_u32 v5, v0, 3, 2
v_mul_u32_u24 v5, {c16}, v5
v_and_b32 v7, 0x70, v1
v_add_u32 v5, v5, v7
s_lshl_b32 s21, s4, 2
s_sub_u32 s22, 14, s21
s_sub_u32 s21, 16, s21
s_cmp_eq_u32 s4, 0
s_cselect_b32 s21, 8, s21
s_mul_i32 s21, s21, {cp}
s_mul_i32 s22, s22, {cp}
v_lshrrev_b32 v7, 5, v0
v_mad_u32_u24 v53, v7, s22, v5
v_mad_u32_u24 v5, v7, s21, v5
s_mul_i32 s20, s5, {br}
s_lshl_b32 s21, s3, 7
s_add_u32 s20, s20, s21
s_lshl_b32 s21, s6, 11
s_add_u32 s20, s20, s21
s_mul_i32 s21, s4, {c2}
s_add_u32 s28, s20, s21
s_add_u32 s29, s28, {cp}
'''.format(c16=16 * CP + SK, cp=CP, c2=2 * CP, br=BR))
    if opt.get('pre'):
        for i in range(4): a('v_mov_b32 v%d, 2.0' % (48 + i))
        PRE = ['buffer_store_dwordx4 v[48:51], v5, s[12:15], s28 offen %s' % opt.get('prest', 'sc1'),
               'buffer_store_dwordx4 v[48:51], v53, s[12:15], s29 offen %s' % opt.get('prest', 'sc1')]
        if opt['pre'] == 1:
            for t in PRE: a(t)
            a('s_nop 1')
    pw = opt.get('pw', 0)
    PW = []
    if pw:
        if opt.get('pwh'):
            a('s_lshl_b32 s20, s36, 11\ns_add_u32 s37, s54, s20\nv_lshlrev_b32 v55, 5, v0')
        else:
            a('s_mov_b32 s37, s54\nv_lshlrev_b32 v55, 6, v0')
        PW = ['buffer_load_dword v48, v55, s[12:15], s37 offen sc1']
    if opt.get('cde'):
        for t in CD: a(t)
    if pw == 2:
        for t in PW: a(t)
    if xp == 1: a(XD)
    a('''
s_lshl_b32 s20, s4, 1
v_bfe_u32 v32, v0, 1, 1
v_add_u32 v32, s20, v32
v_and_b32 v33, 1, v0
v_cmp_eq_u32 vcc, 0, v32
v_lshlrev_b32 v34, 3, v33
v_lshlrev_b32 v35, 2, v33
v_cndmask_b32 v32, v32, v34, vcc
v_cndmask_b32 v35, v35, 0, vcc
v_and_b32 v34, 1, v32
v_cvt_f32_u32 v32, v32
v_cvt_f32_u32 v35, v35
v_mul_u32_u24 v34, 0x8000, v34
v_mul_f32 v32, 0x3d800000, v32
v_mul_f32 v35, 0x3d800000, v35
v_lshl_or_b32 v34, v34, 16, v34
''')
    for i in range(8, 12): a('v_mov_b32 v%d, 0' % i)
    a('s_mov_b32 exec_lo, 0x%x\ns_mov_b32 exec_hi, 0x%x' % (EM_LO, EM_HI))
    for p in range(4):
        a('v_cos_f32 v36, v35\nv_add_f32 v35, v35, v32\nv_cos_f32 v37, v35')
        a('v_add_f32 v35, v35, v32' if p < 3 else 's_nop 0')
        a('v_cvt_pk_bf16_f32 v%d, v36, v37' % (8 + p))
    a('s_mov_b64 exec, -1')
    for p in range(4): a('v_xor_b32 v%d, v34, v%d' % (12 + p, 8 + p))
    if xp == 2: a(XD)
    a('''
v_lshlrev_b32 v38, 3, v0
v_and_b32 v38, 0x30, v38
v_and_b32 v39, 0x30, v0
v_add_u32 v40, s32, v39
v_add_u32 v39, s3, v39
v_and_b32 v47, 8, v0
v_cmp_ne_u32 s[56:57], 0, v47
v_cvt_f32_u32 v39, v39
v_cvt_f32_u32 v40, v40
v_cvt_f32_u32 v48, v33
v_sub_u32 v45, -16, v38
v_mul_f32 v39, 0x3a000000, v39
v_mul_f32 v40, 0x3a000000, v40
v_cndmask_b32 v45, v38, v45, s[56:57]
v_mul_f32 v49, 0x3e800000, v48
v_mul_f32 v50, 0.5, v48
v_add_u32 v45, s20, v45
v_add_f32 v43, v49, v50
v_add_u32 v46, 1, v45
v_cndmask_b32 v43, v49, v43, s[56:57]
v_add_f32 v44, v43, v50
v_mov_b32 v41, v43
v_mov_b32 v42, v44
s_cmp_lg_u32 s4, 0
s_cbranch_scc1 L_REG
v_cvt_f32_u32 v51, v6
v_add_u32 v45, v47, v38
v_and_b32 v56, 14, v0
v_add_f32 v41, 0x3e800000, v49
v_cmp_eq_u32 vcc, 0, v56
v_mul_f32 v51, v51, v50
v_cndmask_b32 v41, v49, v41, s[56:57]
s_cmp_eq_u32 s3, 0
s_cselect_b64 s[58:59], vcc, 0
v_cndmask_b32 v41, v41, v51, vcc
v_add_f32 v42, v41, v50
v_cndmask_b32 v42, v42, v41, s[58:59]
L_REG:
v_cvt_f32_i32 v45, v45
v_cvt_f32_i32 v46, v46
''')
    for al in range(2):
        a('v_mul_f32 v47, 0x3d000000, v%d' % (45 + al))
        for win in range(2):
            a('v_fma_f32 v50, v%d, v%d, v%d' % (45 + al, 39 + win, 41 + 2 * al + win))
            a('v_cos_f32 v36, v50\nv_sin_f32 v37, v50\nv_add_f32 v50, v50, v47')
            a('v_cvt_pk_bf16_f32 v%d, v36, v37' % (16 + 4 * al + 2 * win))
            a('v_cos_f32 v36, v50\nv_sin_f32 v37, v50\ns_nop 0')
            a('v_cvt_pk_bf16_f32 v%d, v36, v37' % (17 + 4 * al + 2 * win))
    a('''
s_cmp_lg_u32 s4, 0
s_cbranch_scc1 L_REG2
v_mov_b32 v36, 0xffff
v_not_b32 v37, v36
v_cndmask_b32 v36, v36, v37, s[56:57]
''')
    for p in range(4): a('v_and_b32 v%d, v36, v%d' % (16 + p, 16 + p))
    a('L_REG2:')
    if xp == 3: a(XD)
    a('''
v_and_b32 v36, 15, v0
v_lshl_add_u32 v37, v6, 2, v36
v_sub_u32 v38, 28, v37
v_sub_u32 v37, 12, v37
v_mov_b32 v41, 0
v_mov_b32 v42, 0x3f80
v_cmp_gt_u32 vcc, 4, v38
v_lshlrev_b32 v38, 4, v38
v_mov_b32 v30, 0
v_cndmask_b32 v40, 0, v42, vcc
v_cmp_gt_u32 vcc, 4, v37
v_lshlrev_b64 v[24:25], v38, v[40:41]
v_lshlrev_b32 v37, 4, v37
v_cndmask_b32 v40, 0, v42, vcc
s_mul_i32 s21, s37, 0x3f80
v_lshlrev_b64 v[26:27], v37, v[40:41]
v_mov_b32 v31, 0
v_mov_b32 v28, v26
v_mov_b32 v29, v27
v_writelane_b32 v26, s21, 48
v_writelane_b32 v28, s21, 12
''')
    a('''
v_lshlrev_b32 v3, 4, v3
v_and_b32 v4, 3, v0
v_and_b32 v7, 0x3c0, v1
s_xor_b32 s21, s37, 1
v_add_lshl_u32 v48, v4, s21, 3
v_add_lshl_u32 v49, v4, s37, 3
v_xor_b32 v48, v48, v3
v_xor_b32 v3, v49, v3
v_add_u32 v48, v48, v7
v_add_u32 v3, v3, v7
v_xor_b32 v49, 32, v48
s_mul_i32 s20, s4, 2304
s_add_u32 s20, s20, %d
v_lshrrev_b32 v2, 2, v0
v_mul_u32_u24 v2, 72, v2
v_lshl_add_u32 v2, v4, 4, v2
v_add_u32 v2, s20, v2
v_xor_b32 v4, 32, v3
s_lshl_b32 s21, s6, 4
s_and_b32 s21, s21, 32
s_add_u32 s22, s20, s21
s_xor_b32 s21, s21, 32
s_add_u32 s23, s20, s21
v_mul_u32_u24 v7, 72, v36
v_lshl_add_u32 v7, v6, 3, v7
v_add_u32 v6, s22, v7
v_add_u32 v7, s23, v7
s_mul_i32 s30, s37, 0xffff
''' % L_STG)
    NONCE = '''
s_waitcnt lgkmcnt(0)
s_or_b32 s34, s34, 0x40000000
s_or_b32 s35, s35, 0x40004000
s_add_u32 s34, s34, 0x2b150000
s_add_u32 s35, s35, 0x1e3739b9
s_and_b32 s34, s34, 0xbfff0000
s_and_b32 s35, s35, 0xbfffbfff
'''
    a(NONCE)
    if opt.get('pre', 0) >= 2:
        for i in range(4): a('v_mov_b32 v%d, 2.0' % (48 + i))
    a('s_mov_b32 s56, 0\ns_mov_b32 s57, 0xffff0000\nv_mov_b32 v54, s34')
    stamp(a, opt, 'b')
    if opt.get('pw2'): a('s_cmp_ge_u32 s4, 2\ns_cbranch_scc1 L_NOXW')
    a('s_waitcnt vmcnt(%d)\nL_NOXW:' % (2 if opt.get('sp') else 0))
    stamp(a, opt, 2)
    if opt.get('stamp') and not opt.get('prof'): a('s_waitcnt lgkmcnt(0)')
    if opt.get('pre') == 3:
        for t in PRE: a(t)
    a('s_barrier')
    if opt.get('eh'):
        a('''s_lshl_b32 s20, s4, 8
s_add_u32 s20, s20, s2
s_cmp_lt_u32 s20, 1008
s_cbranch_scc1 L_NOEH
s_lshl_b32 s20, s2, 7
s_and_b32 s20, s20, 0x780
s_add_u32 s20, s20, %d
v_lshl_add_u32 v56, v1, 7, s20
v_mov_b32 v57, s35
s_mov_b64 exec, 0xff
global_store_dword v56, v57, s[12:13] sc1
s_mov_b64 exec, -1
L_NOEH:''' % HINT)
    pstamp(a, opt, 0)
    if opt.get('pre') == 2:
        pass
    CDL = (PRE if opt.get('pre') == 2 else []) + ([] if opt.get('cde') else CD) + (PW if pw == 1 else [])
    a('; phase 1')
    order = [(win, kap, nt, bp) for win in (1, 0) for kap in range(2) for nt in range(2) for bp in range(2)]
    ACC = lambda win, nt, bp: 32 + 4 * (bp + 2 * nt) if win else 112 + 4 * (bp + 2 * nt)
    OPR = lambda i: 56 + 4 * (i % 14) if i < 14 else 56 + 4 * (i - 14)
    def rd(i):
        win, kap, nt, bp = order[i]
        t = ['ds_read_b64_tr_b16 %s, v%d offset:%d' % (vr(OPR(i) + 2 * hh, 2), (48 if win else 3) + nt, (2 * kap + hh) * 4096 + win * 2048 + bp * 1024) for hh in range(2)]
        return [t[0], ('T', i, t[1])]
    def mf(i):
        win, kap, nt, bp = order[i]
        A = ACC(win, nt, bp)
        return '%s %s, %s, %s, %s' % (M32, vr(A), vr(8 + 4 * kap), vr(OPR(i)), vr(A) if kap else '0')
    A2 = lambda al, win, nt: 64 + 2 * (al + 2 * nt) if win else 32 + 2 * (al + 2 * nt)
    def cv(win, nt):
        return ['v_cvt_pk_bf16_f32 v%d, v%d, v%d' % (A2(al, win, nt) + p, ACC(win, nt, p) + 2 * al, ACC(win, nt, p) + 2 * al + 1) for al in range(2) for p in range(2)]
    D2M = lambda al, nt: 32 + 4 * (nt + 2 * al)
    B2 = lambda al: 72 + 4 * al
    D2 = lambda al, nt: (188 if opt.get('sp') else 80) + 4 * (nt + 2 * al)
    def m2m(al, nt): return '%s %s, %s, %s, 0' % (M16, vr(D2M(al, nt)), vr(A2(al, 1, nt), 2), vr(18 + 4 * al, 2))
    def cvm(al): return ['v_cvt_pk_bf16_f32 v%d, v%d, v%d' % (B2(al) + 2 * nt + h, D2M(al, nt) + 2 * h, D2M(al, nt) + 2 * h + 1) for nt in range(2) for h in range(2)]
    def mp(al, nt): return '%s %s, %s, %s, 0' % (M32, vr(D2(al, nt)), vr(24 + 4 * nt), vr(B2(al)))
    D3 = lambda al, nt: (204 if opt.get('sp') else 188) + 4 * al if nt else D2(al, 0)
    def m2(al, nt): return '%s %s, %s, %s, %s' % (M16, vr(D3(al, nt)), vr(A2(al, 0, nt), 2), vr(16 + 4 * al, 2), vr(D2(al, nt)))
    XT = ['v_cvt_pk_bf16_f32 v%d, v%d, v%d' % (50 + al, D2(al, 1), D2(al, 1)) for al in range(2)]
    PK = lambda al, nt: 96 + 2 * (nt + 2 * al)
    def pack(al, nt): return ['v_cvt_pk_bf16_f32 v%d, v%d, v%d' % (PK(al, nt) + h, D3(al, nt) + 2 * h, D3(al, nt) + 2 * h + 1) for h in range(2)]
    def wr(al, nt): return 'ds_write_b64 v%d, %s offset:%d' % (6 + nt, vr(PK(al, nt), 2), 1152 * al)
    R = lambda *ii: [x[2] if isinstance(x, tuple) else x for i in ii for x in rd(i)]
    seq = R(*range(14)) + [mf(i) for i in range(8)] + R(14, 15) + CDL + cv(1, 0) + cv(1, 1) + [m2m(0, 0), m2m(0, 1), m2m(1, 0), m2m(1, 1)]
    seq += [mf(i) for i in range(8, 12)] + cvm(0) + cvm(1) + [mp(0, 0), mp(0, 1), mp(1, 0), mp(1, 1)] + [mf(i) for i in range(12, 16)]
    seq += cv(0, 0) + cv(0, 1) + [m2(0, 0), m2(1, 0), m2(0, 1), m2(1, 1)] + XT
    seq += pack(0, 0) + pack(1, 0) + [wr(0, 0), wr(1, 0)] + pack(0, 1) + pack(1, 1)
    bo = cv(1, 0) + cv(1, 1) + [m2m(0, 0), m2m(0, 1), m2m(1, 0), m2m(1, 1)] + [mf(i) for i in range(8)] if not opt.get('nob') else []
    if opt.get('sp'):
        s1 = R(*range(8)) + [mf(i) for i in range(8)] + cv(1, 0) + cv(1, 1) + [m2m(0, 0), m2m(0, 1), m2m(1, 0), m2m(1, 1)]
        s1b = cvm(0) + cvm(1) + [mp(0, 0), mp(0, 1), mp(1, 0), mp(1, 1)]
        if opt['sp'] == 1: s1 += s1b; s1b = []
        s2 = R(*range(8, 16)) + CDL + s1b + [mf(i) for i in range(8, 16)] + cv(0, 0) + cv(0, 1) + [m2(0, 0), m2(1, 0), m2(0, 1), m2(1, 1)] + XT
        s2 += pack(0, 0) + pack(1, 0) + [wr(0, 0), wr(1, 0)] + pack(0, 1) + pack(1, 1)
        for t in schedule(s1, verbose=opt.get('v'), **SO): a(t)
        a('s_waitcnt vmcnt(0)\ns_barrier')
        for t in schedule(s2, boost=CDL, pin=[(CDL[i], R(*range(8, 16))[min(15, 7 + 2 * i)]) for i in range(len(CDL))], verbose=opt.get('v'), **SO): a(t)
    else:
        for t in schedule(seq, boost=bo + CDL, pin=[(CDL[i], R(*range(8))[min(15, opt.get('p0', 7) + 2 * i)]) for i in range(len(CDL))], verbose=opt.get('v'), **SO): a(t)
    pstamp(a, opt, 1)
    a('s_mov_b64 exec, s[56:57]')
    for al in range(2):
        a('v_and_or_b32 v%d, v%d, s30, v54\nv_mov_b32 v%d, s35' % (PK(al, 1), 50 + al, PK(al, 1) + 1))
    a('s_mov_b64 exec, -1')
    for al in range(2):
        a(wr(al, 1))
        a('ds_read2_b64 %s, v2 offset0:%d offset1:%d' % (vr(104 + 4 * al), 144 * al, 144 * al + 1))
    pstamp(a, opt, 2)
    if opt.get('prof'): a('s_waitcnt lgkmcnt(0)')
    if opt.get('ol'): a('s_lshl_b32 s20, s4, 8\ns_add_u32 s20, s20, s2\ns_cmp_ge_u32 s20, 1008')
    a('s_waitcnt lgkmcnt(2)' + ('' if opt.get('cde') or opt.get('rs') or opt.get('nv') else ' vmcnt(0)'))
    if opt.get('pw2') or opt.get('bb'): a('s_barrier')
    a('buffer_store_dwordx4 v[104:107], v5, s[12:15], s28 offen %s' % opt.get('k1st', 'sc1'))
    a('s_waitcnt lgkmcnt(0)')
    a('buffer_store_dwordx4 v[108:111], v53, s[12:15], s29 offen %s' % opt.get('k1st', 'sc1'))
    stamp(a, opt, 3)
    pstamp(a, opt, 3)
    OL = []
    if opt.get('ol'):
        assert opt.get('nv') and opt.get('xh')
        a('s_cbranch_scc1 L_HINT\nL_P2:')
        if not opt.get('pb'): a('s_waitcnt vmcnt(0)\ns_barrier')
        OL.append('''; last workgroups: tell the two extra workgroups that the stores are on their way
L_HINT:
s_lshl_b32 s20, s2, 7
s_and_b32 s20, s20, 0x780
s_add_u32 s20, s20, %d
v_mov_b32 v8, s20
v_mov_b32 v9, s35
s_mov_b64 exec, 1
global_store_dword v8, v9, s[12:13] sc1
s_mov_b64 exec, -1
s_branch L_P2
; extra workgroups: no phase 1
L_CONS:''' % HINT + NONCE + '\n'.join(CD) + '\ns_branch L_P2')
    else:
        if opt.get('xh') and not opt.get('eh'):
            a('''s_lshl_b32 s20, s4, 8
s_add_u32 s20, s20, s2
s_cmp_lt_u32 s20, 1008
s_cbranch_scc1 L_P2
s_lshl_b32 s20, s2, 7
s_and_b32 s20, s20, 0x780
s_add_u32 s20, s20, %d
v_lshl_add_u32 v8, v1, 7, s20
v_mov_b32 v9, s35
s_mov_b64 exec, %d
HLWAIT
global_store_dword v8, v9, s[12:13] sc1
s_mov_b64 exec, -1
%s
s_branch %s''' % (HINT, 0xff if opt.get('ah') else 1, '' if opt.get('nv') else 's_waitcnt vmcnt(1)' if opt.get('pw2') or opt.get('bb') else 's_barrier\ns_waitcnt vmcnt(1)', 'L_P2' if opt.get('nv') else 'L_P3'))
        else:
            a('s_branch L_P2')
        a('L_CONS:')
        if opt.get('aw') == 2:
            a('''s_lshl_b32 s20, s5, 10
s_add_u32 s20, s20, %d
v_lshrrev_b32 v8, 3, v0
v_lshlrev_b32 v8, 11, v8
v_and_b32 v9, 7, v0
v_lshl_add_u32 v8, v9, 7, v8
v_add_u32 v8, s20, v8
global_load_dword v9, v8, s[12:13] sc1''' % HINT)
        a(NONCE)
        for t in CD: a(t)
        a('L_P2:\ns_waitcnt vmcnt(0)\ns_barrier' if opt.get('nv') else 'L_P2:' if opt.get('rs') else 's_waitcnt vmcnt(0)\ns_barrier\nL_P2:' if opt.get('pw2') or opt.get('bb') else 's_waitcnt vmcnt(0)\nL_P2:\ns_barrier')
    if opt.get('pa') and not opt.get('nv'): a('s_waitcnt vmcnt(0)')
    a('L_P3:')
    if opt.get('ah'):
        a('s_mov_b64 exec, 0xff\nglobal_load_dword v9, v55, s[12:13] sc1\ns_mov_b64 exec, -1')
    DB = L_DAT if opt.get('rs') else 0
    a('''
v_lshrrev_b32 v6, 4, v0
v_lshlrev_b32 v{b0}, 12, v6
v_and_b32 v7, 0xc0, v1
v_add_u32 v{b0}, v{b0}, v7
v_and_b32 v6, 1, v6
v_lshl_add_u32 v{b0}, v6, 5, v{b0}
v_and_b32 v6, 3, v0
v_lshl_add_u32 v{b0}, v6, 3, v{b0}
v_add_u32 v{b0}, {db}, v{b0}
v_xor_b32 v{b1}, 32, v{b0}
v_and_b32 v{f}, 31, v0
v_lshrrev_b32 v6, 5, v0
v_lshl_add_u32 v6, v{f}, 1, v6
v_add_u32 v7, 1, v6
v_cmp_ne_u32 vcc, 56, v7
v_mov_b32 v{t}, 0x40000000
v_lshlrev_b32 v6, 4, v6
v_cndmask_b32 v7, 0, v7, vcc
v_cmp_gt_u32 vcc, 28, v{f}
v_sub_u32 v{m}, 880, v6
v_and_b32 v{u}, 1, v7
v_cndmask_b32 v{f}, v{t}, v6, vcc
v_cndmask_b32 v{m}, v{t}, v{m}, vcc
v_lshlrev_b32 v7, 1, v7
v_and_b32 v7, 0x7c, v7
v_lshl_add_u32 v{p}, v{u}, 7, v7
s_lshl_b32 s22, s4, 12
s_add_u32 s22, s22, {db}
s_and_b32 s20, s4, 1
s_lshl_b32 s20, s20, 5
s_sub_u32 s20, 56, s20
s_add_u32 s20, s20, s22
v_and_b32 v{tg}, 0x3c0, v1
v_add_u32 v{tg}, s20, v{tg}
v_lshl_add_u32 v{u}, v1, 2, s20
v_and_b32 v6, 0xf0, v1
v_add_u32 v6, s53, v6
v_add_u32 v7, {cc}, v1
'''.format(cc=L_CONST, db=DB, **V))
    if opt.get('lin2'):
        a('''v_cmp_gt_u32 vcc, 56, v0
s_nop 1
v_cndmask_b32 v{f}, v{t}, v1, vcc
v_cndmask_b32 v{m}, v{t}, v1, vcc'''.format(**V))
    for i in range(16): a('v_mov_b32 v%d, 0' % (CA + i))
    a('''
s_lshl_b32 s21, s4, 8
s_add_u32 s48, s21, s31
s_add_u32 s49, s48, 128
s_cmp_eq_u32 s36, 2
s_cselect_b32 s21, 1023, -1
s_and_b32 s49, s49, s21
s_sub_u32 s50, 2048, s48
s_sub_u32 s51, 2048, s49
s_and_b32 s51, s51, 2047
s_mul_i32 s20, s5, 896
s_mul_i32 s48, s48, 1792
s_mul_i32 s49, s49, 1792
s_mul_i32 s50, s50, 1792
s_mul_i32 s51, s51, 1792
s_add_u32 s48, s48, s20
s_add_u32 s49, s49, s20
s_add_u32 s50, s50, s20
s_add_u32 s51, s51, s20
s_mov_b32 s52, 0xffff
s_mov_b32 s55, %s
s_mov_b32 m0, s22
''' % ('0x40000' if opt.get('stamp') else '0x400000'))
    def const_reads():
        a('s_mov_b32 exec_lo, 0x%x\ns_mov_b32 exec_hi, 0x%x' % (EM_LO, EM_HI))
        for k in range(4): a('ds_read_b128 %s, v6 offset:%d' % (vr(CA + 4 * k), 2048 + 256 * k))
        a('s_mov_b64 exec, -1')
        for i in range(8): a('ds_read_b128 %s, v7 offset:%d' % (vr(CTW + 4 * i), (i >> 1) * 3072 + (i & 1) * 1024))
    if opt.get('pb'): a('s_waitcnt vmcnt(0)\ns_barrier')
    if not opt.get('rs') and opt.get('pb') != 2: const_reads()
    ld = opt.get('k2ld', 'sc1')
    sent = opt.get('sent', 0)
    if not opt.get('early') and sent != 2 and not opt.get('pa'): a('s_waitcnt vmcnt(0)')
    stamp(a, opt, 4)
    if opt.get('slp'): a('s_sleep %d' % opt['slp'])
    if opt.get('lw'): a('s_waitcnt lgkmcnt(0)')
    if opt.get('lw') == 2: a('s_barrier')
    if opt.get('eh'):
        a('''s_mov_b64 exec, 0xff
s_waitcnt vmcnt(0)
v_cmp_ne_u32 vcc, s35, v9
s_cbranch_vccz L_POLL0
L_SENT:
global_load_dword v9, v55, s[12:13] sc1
s_waitcnt vmcnt(0)
v_cmp_ne_u32 vcc, s35, v9
s_cbranch_vccz L_SENT2
s_sub_u32 s55, s55, 1
s_cbranch_scc0 L_SENT
L_SENT2:''')
        for i in range(opt['eh'] - 1): a('global_load_dword v9, v55, s[12:13] sc1\ns_waitcnt vmcnt(0)')
    elif opt.get('ah'):
        a('''s_mov_b64 exec, 0xff
L_SENT:
s_waitcnt vmcnt(0)
v_cmp_ne_u32 vcc, s35, v9
s_and_b64 exec, exec, vcc
s_cbranch_scc0 L_POLL0
global_load_dword v9, v55, s[12:13] sc1
s_sub_u32 s55, s55, 1
s_cbranch_scc0 L_SENT''')
    elif opt.get('ol'):
        a('s_cmp_ge_u32 s2, 256\ns_cbranch_scc1 L_WAIT')
        OL.append('''; extra workgroups: wait for those notes (bounded) before the first fetch
L_WAIT:
s_lshl_b32 s20, s5, 10
s_add_u32 s20, s20, %d
v_lshl_add_u32 v8, v1, 3, s20
s_mov_b64 exec, 0xff
L_SENT:
global_load_dword v9, v8, s[12:13] sc1
s_waitcnt vmcnt(0)
v_cmp_ne_u32 vcc, s35, v9
s_and_b64 exec, exec, vcc
s_cbranch_scc0 L_SENT2
s_sub_u32 s55, s55, 1
s_cbranch_scc0 L_SENT
L_SENT2:
s_mov_b64 exec, -1
s_mov_b32 s55, 0x400000
s_branch L_POLL0''' % HINT)
    elif opt.get('xh'):
        a('''s_cmp_lt_u32 s2, 256
s_cbranch_scc1 L_POLL0
s_lshl_b32 s20, s5, 10
s_add_u32 s20, s20, %d
v_lshl_add_u32 v8, v1, 3, s20
s_mov_b64 exec, 0xff
L_SENT:
global_load_dword v9, v8, s[12:13] sc1
s_waitcnt vmcnt(0)
v_cmp_ne_u32 vcc, s35, v9
s_and_b64 exec, exec, vcc
s_cbranch_scc0 L_POLL0
s_sub_u32 s55, s55, 1
s_cbranch_scc0 L_SENT''' % HINT)
    else:
        if sent:
            a('s_mov_b32 exec_lo, 0x%x\ns_mov_b32 exec_hi, 0x%x' % ((opt.get('sm', 0x0f0f0f0f),) * 2))
        else:
            a('s_cmp_lt_u32 s2, 256\ns_cbranch_scc1 L_POLL0\ns_mov_b64 exec, 15')
        a('''
L_SENT:
buffer_load_dwordx4 v1, s[12:15], s54 offen {ld} lds
s_waitcnt vmcnt(0)
ds_read_b64 v[8:9], v{tg}
s_waitcnt lgkmcnt(0)
v_cmp_ne_u32 vcc, s35, v9
s_cbranch_vccz L_POLL0
s_sub_u32 s55, s55, 1
s_cbranch_scc0 L_SENT'''.format(ld=ld, **V))
    a('''
L_POLL0:
'''.format(ld=ld, **V))
    if not opt.get('ol'): a('s_mov_b64 exec, -1')
    for k in range(4): a('buffer_load_dwordx4 v1, s[12:15], s54 offen offset:%d %s lds' % (1024 * k, opt.get('ld1', ld)))
    if opt.get('rs'):
        a('s_barrier')
        const_reads()
    if opt.get('pb') == 2: const_reads()
    a('''L_CHK:
s_waitcnt vmcnt(0)
ds_read_b64 v[8:9], v{u}
s_waitcnt lgkmcnt(0)
v_and_b32 v8, 0xffff0000, v8
v_cmp_ne_u64 vcc, s[34:35], v[8:9]
s_cbranch_vccnz L_SLOW
L_GO:'''.format(**V))
    def slow():
        a('; some block is not there yet: fetch exactly those again\nL_SLOW:\ns_sub_u32 s55, s55, 1\ns_cbranch_scc1 L_GO')
        for k in range(4): a('ds_read_b64 %s, v%d offset:%d' % (vr(8 + 2 * k, 2), V['tg'], 1024 * k))
        for k in range(4):
            a('s_waitcnt lgkmcnt(%d)' % (3 - k))
            a('v_and_b32 v%d, 0xffff0000, v%d' % (8 + 2 * k, 8 + 2 * k))
            a('v_cmp_ne_u64 s[%d:%d], s[34:35], %s' % (56 + 2 * k, 57 + 2 * k, vr(8 + 2 * k, 2)))
        for k in range(4):
            a('s_mov_b64 exec, s[%d:%d]\ns_cbranch_execz L_NO%d' % (56 + 2 * k, 57 + 2 * k, k))
            a('buffer_load_dwordx4 v1, s[12:15], s54 offen offset:%d %s lds' % (1024 * k, ld))
            a('L_NO%d:' % k)
        a('s_mov_b64 exec, -1\ns_branch L_CHK')
    stamp(a, opt, 5)
    if opt.get('stamp') and not opt.get('prof'): a('s_waitcnt lgkmcnt(0)')
    a('s_cmp_ge_u32 s2, 256\ns_barrier\ns_cbranch_scc1 L_ONE')
    pstamp(a, opt, 4)
    a('; phase 2')
    order = [(ta, kap, sub) for ta in range(2) for kap in range(4) for sub in range(2)]
    DA = lambda ta, sub: 8 + 4 * (sub + 2 * ta)
    OPR = lambda i: 24 + 4 * i
    def rd(i):
        ta, kap, sub = order[i]
        t = ['ds_read_b64_tr_b16 %s, v%d offset:%d' % (vr(OPR(i) + 2 * hh, 2), V['b0'] + ta, (4 * kap + 2 * hh) * 128 + sub * 2048) for hh in range(2)]
        return [t[0], ('T', i, t[1])]
    def mf(i):
        ta, kap, sub = order[i]
        return '%s %s, %s, %s, %s' % (M32, vr(DA(ta, sub)), vr(CA + 4 * kap), vr(OPR(i)), vr(DA(ta, sub)) if kap else '0')
    A1 = lambda tl, ta: 88 + 2 * (tl + 2 * ta)
    def cv(ta):
        return ['v_cvt_pk_bf16_f32 v%d, v%d, v%d' % (A1(tl, ta) + p, DA(ta, p) + 2 * tl, DA(ta, p) + 2 * tl + 1) for tl in range(2) for p in range(2)]
    D1 = lambda tl, ta, c: 96 + 4 * (c + 2 * tl) if ta == 0 else 112 + 4 * (c + 2 * tl)
    def b1(tl, ta, c):
        return '%s %s, %s, %s, 0' % (M16, vr(D1(tl, ta, c)), vr(A1(tl, ta), 2), vr(CB1 + 2 * c, 2))
    HT = lambda tl, ta: 24 + 8 * (tl + 2 * ta)
    HP = lambda tl, ta: 8 + 4 * tl if ta == 0 else 56 + 4 * tl
    def tw(tl, ta):
        r, i, h, co, si = D1(tl, ta, 0), D1(tl, ta, 1), HT(tl, ta), CTW + 8 * ta, CTW + 4 + 8 * ta
        o = []
        for x, y, c in ((r, i, co), (i, r, si), (r, i, co)):
            if '%d%d' % (tl, ta) in str(opt.get('pk', '')).split(','):
                o += ['v_pk_fma_f32 %s, %s, %s, %s' % (vr(x + q, 2), vr(c + q, 2), vr(y + q, 2), vr(x + q, 2)) for q in (0, 2)]
            else:
                o += ['v_fmac_f32 v%d, v%d, v%d' % (x + q, c + q, y + q) for q in range(4)]
        n = len(o) // 3
        o = o[:2 * n] + [t + ' ' for t in o[2 * n:]]
        for q in range(4):
            o.append('v_cvt_pk_bf16_f32 v%d, v%d, v%d' % (HP(tl, ta) + q, (r, r, i, i)[q] + 2 * (q & 1), (r, r, i, i)[q] + 2 * (q & 1) + 1))
        return o
    D2 = lambda tl, mu: 64 + 4 * (mu + 2 * tl)
    def b2(tl, mu, ta):
        return '%s %s, %s, %s, %s' % (M32, vr(D2(tl, mu)), vr(HP(tl, ta)), vr(CB2 + 4 * (2 * mu + ta)), vr(D2(tl, mu)) if ta else '0')
    F = lambda tl: 80 + 4 * tl
    M = lambda tl: 96 + 4 * tl
    st = opt.get('k2st', 'sc1')
    def fin(tl):
        o = []
        for mu in range(2):
            for h in range(2):
                o.append('v_cvt_pk_bf16_f32 v%d, v%d, v%d' % (F(tl) + 2 * mu + h, D2(tl, mu) + 2 * h, D2(tl, mu) + 2 * h + 1))
        return o
    def fin2(tl):
        return ['v_permlane16_swap_b32 v%d, v%d' % (F(tl), F(tl) + 2),
                'v_permlane16_swap_b32 v%d, v%d' % (F(tl) + 1, F(tl) + 3),
                'ds_bpermute_b32 v%d, v%d, v%d' % (2 + tl, V['p'], F(tl)),
                'buffer_store_dwordx4 %s, v%d, s[44:47], s%d offen %s' % (vr(F(tl)), V['f'], 48 + tl, st)]
    def mir(tl):
        return ['v_bfi_b32 v%d, s52, v%d, v%d' % (M(tl) + q, F(tl) + 4 - q, F(tl) + 3 - q) for q in (1, 2, 3)]
    def mir2(tl):
        return ['v_bfi_b32 v%d, s52, v%d, v%d' % (M(tl), 2 + tl, F(tl) + 3),
                'buffer_store_dwordx4 %s, v%d, s[44:47], s%d offen %s' % (vr(M(tl)), V['m'], 50 + tl, st)]
    t00, t10, t01, t11 = tw(0, 0), tw(1, 0), tw(0, 1), tw(1, 1)
    seq = R(*range(16)) + [mf(i) for i in range(8)] + cv(0) + [b1(0, 0, 0), b1(0, 0, 1), b1(1, 0, 0), b1(1, 0, 1)]
    seq += [mf(i) for i in range(8, 16)] + t00 + t10 + cv(1) + [b1(0, 1, 0), b1(0, 1, 1), b1(1, 1, 0), b1(1, 1, 1)]
    seq += [b2(0, 0, 0), b2(0, 1, 0), b2(1, 0, 0), b2(1, 1, 0)] + t01 + [b2(0, 0, 1), b2(0, 1, 1)] + t11 + [b2(1, 0, 1), b2(1, 1, 1)]
    seq += fin(0) + fin2(0) + mir(0) + mir2(0) + fin(1) + fin2(1) + mir(1) + mir2(1)
    bo = cv(0) + [b1(0, 0, 0), b1(0, 0, 1), b1(1, 0, 0), b1(1, 0, 1)] + [mf(i) for i in range(8)] if not opt.get('nob') else []
    bo2 = bo
    if opt.get('t0') == 1:
        bo2 = bo + t00 + cv(1)[:2] + [b1(0, 1, 0), b1(0, 1, 1), b2(0, 0, 0), b2(0, 1, 0)] + t01 + [b2(0, 0, 1), b2(0, 1, 1)] + fin(0) + fin2(0) + mir(0) + mir2(0)
    if opt.get('t0') == 2:
        bo2 = bo + t01 + [b2(0, 0, 1), b2(0, 1, 1)] + fin(0) + fin2(0) + mir(0) + mir2(0)
    for t in schedule(seq, boost=bo2, verbose=opt.get('v'), **SO): a(t)
    a('s_branch L_FIN' if opt.get('stamp') else 's_endpgm')
    slow()
    for t in OL: a(t)
    a('L_ONE:\ns_cmp_lg_u32 s4, 0\ns_cbranch_scc1 L_FIN')
    seq = R(*range(16)) + [mf(i) for i in range(8)] + cv(0)[:2] + [b1(0, 0, 0), b1(0, 0, 1)]
    seq += [mf(i) for i in range(8, 16)] + t00 + cv(1)[:2] + [b1(0, 1, 0), b1(0, 1, 1), b2(0, 0, 0), b2(0, 1, 0)] + t01 + [b2(0, 0, 1), b2(0, 1, 1)]
    seq += fin(0) + fin2(0)[:2] + fin2(0)[3:]
    for t in schedule(seq, boost=bo, verbose=opt.get('v'), **SO): a(t)
    a('''
s_lshl_b32 s20, s5, 7
s_add_u32 s20, s20, %d
v_mov_b32 v4, s20
v_mov_b32 v6, s34
v_mov_b32 v7, s35
s_mov_b64 exec, 1
global_store_dwordx2 v4, v[6:7], s[12:13]
s_mov_b64 exec, -1
''' % CELL)
    a('L_FIN:')
    stamp_out(a, opt, 8)
    a('L_END:\ns_endpgm')
    a.ins = [i for i in a.ins if i.text not in ('v_add_u32 v180, 0, v180', 's_add_u32 s22, s22, 0', 'L_NOXW:', 'L_P3:') or (i.label and not opt.get('ol'))]
    for i in a.ins:
        if i.text == 'HLWAIT': i.__init__('s_waitcnt vmcnt(0)' if opt.get('hl') else ';')
    return a.finish(opt.get('v'))

def build(opt):
    tabs = d3.build_tables()
    hdr = open('cdna_kernels/%s.s.ref' % NAME).read().split('; Override launch')[0]
    s = hdr
    if opt.get('diag'):
        s += '; @launch kernel=%s grid=(%d,1,1) block=(256,1,1) lds=%d\n' % (KN, NWG, LDS + (16384 if opt.get('rs') else 0))
        s += '; @launch kernel=k3_kernel grid=(1,1,1) block=(64,1,1) lds=0\n'
    else:
        s += '; @launch grid=(%d,1,1) block=(256,1,1) lds=%d\n' % (NWG, LDS + (16384 if opt.get('rs') else 0))
    s += DOC
    s += '.amdgcn_target "amdgcn-amd-amdhsa--gfx950"\n.text\n'
    s += '.globl %s\n.p2align 8\n.type %s,@function\n' % (KN, KN) + gen(opt)
    if opt.get('diag'):
        s += '.globl k3_kernel\n.p2align 8\n.type k3_kernel,@function\n' + gen_k3(opt, [opt.get('nw', 1024)])
    s += '.p2align 8\n.type K2_TAB,@object\nK2_TAB:\n' + emit_data(k2_table(tabs))
    s += '.section .rodata,"a"\n' + kd(KN, 212 if opt.get('sp') else 196, 96 if opt.get('stamp') else 72)
    if opt.get('diag'):
        s += kd('k3_kernel', 8, 32)
    return s

if __name__ == '__main__':
    out = sys.argv[1]
    opt = {}
    for kv in sys.argv[2:]:
        k, _, v = kv.partition('=')
        opt[k] = int(v) if v.lstrip('-').isdigit() else (v.replace('+', ' ') if v else 1)
    s = build(opt)
    open(out, 'w').write(s)
    print(out, len(s), 'bytes')
```

```python
import sys, numpy as np
from asmlib import Asm
from sched import schedule
import design as dz
import design3 as d3
from gen import gen_k3, NAME, XB, OUTB, vr, op_bytes, emit_data, kd

KN = NAME + '_kernel'
NWG = 258
CH = 16384
WSB = 2 * 72 * CH
CELL = WSB
HINT = WSB + 1024
L_CONST = 16384
L_STG = 28672
L_DAT = L_STG + 4 * 2304
LDS = L_DAT
SB = 72
EM_LO, EM_HI = 0x00F0000F, 0xF0000F00
M32 = 'v_mfma_f32_16x16x32_bf16'
M16 = 'v_mfma_f32_16x16x16_bf16'


DOC = """;
; Phase 2 (all workgroups: branch, t1, 8 values of t2): 16-point DFT over c, 448-point DFT over d (16 x 28, fp32
;
"""

def pstamp(a, opt, i):
    if opt.get('prof'):
        a('s_memtime s[%d:%d]' % (SB + 2 * i, SB + 1 + 2 * i))

def stamp(a, opt, i):
    if opt.get('st2'):
        i = {0: 0, 1: 1, 'a': 2, 'b': 3, 2: 4, 3: 5, 6: 6, 7: 7}.get(i)
        if i is None: return
    elif isinstance(i, str): return
    if opt.get('stamp') and not opt.get('prof'):
        a('s_memrealtime s[%d:%d]' % (SB + 2 * i, SB + 1 + 2 * i))

def stamp_out(a, opt, n):
    if not opt.get('stamp'):
        return
    stamp(a, opt, n - 2)
    if opt.get('prof'): n = opt['prof']; pstamp(a, opt, n - 1)
    a('s_waitcnt vmcnt(0)')
    stamp(a, opt, n - 1)
    a('s_getreg_b32 s58, hwreg(HW_REG_XCC_ID)')
    a('s_getreg_b32 s59, hwreg(HW_REG_HW_ID)')
    a('s_lshl_b32 s62, s2, 2\ns_add_u32 s62, s62, s4\ns_lshl_b32 s62, s62, 6\ns_add_u32 s62, s62, %d' % (16 << 20))
    a('s_load_dwordx2 s[12:13], s[0:1], 96')
    a('s_waitcnt lgkmcnt(0)\ns_add_u32 s60, s12, s62\ns_addc_u32 s61, s13, 0')
    a('v_mov_b32 v0, 0')
    for i in range(n):
        a('v_mov_b32 v1, s%d\nglobal_store_dword v0, v1, s[60:61] offset:%d' % (SB + 2 * i, 4 * i))
    a('v_mov_b32 v1, s55\nglobal_store_dword v0, v1, s[60:61] offset:52')
    a('v_mov_b32 v1, s58\nglobal_store_dword v0, v1, s[60:61] offset:56')
    a('v_mov_b32 v1, s59\nglobal_store_dword v0, v1, s[60:61] offset:60')

def k2_table(tabs, rot=False):
    b = b''
    for ta in range(2):
        for x in tabs['k2tw'][ta]:
            b += x.astype('<f4').tobytes()
    for mu in range(2):
        for ta in range(2):
            b += op_bytes(tabs['k2B2'][mu][ta])
    b += op_bytes(np.concatenate(tabs['k2B1'], axis=1))
    act = [l for l in range(64) if ((l & 15) >> 2) == (l >> 4)]
    for v in range(5):
        for w in range(4):
            for k in range(4):
                b += op_bytes(tabs['k2A'][v][w][(k + w) & 3 if rot else k][act])
    return b

CA, CB1, CTW, CB2 = 128, 144, 148, 164
VA = 180

def paired(a, rd, mf, after, n=16, depth=7):
    for i in range(depth): rd(i)
    issued = depth
    for k in range(n // 2):
        a('s_waitcnt lgkmcnt(%d)' % (2 * (issued - 2 * k - 2)))
        mf(2 * k); mf(2 * k + 1)
        for _ in range(2):
            if issued < n:
                rd(issued); issued += 1
        for t in after.get(k, []): a(t)

def emit(a, seq):
    pos = {}; n = 0
    for it in seq:
        if isinstance(it, tuple) and it[0] == 'W':
            a('s_waitcnt lgkmcnt(%d)' % (n - pos[it[1]]))
            continue
        if isinstance(it, tuple):
            _, key, it = it
            pos[key] = n + 1
        if it.startswith('ds_'): n += 1
        a(it)

def zipm(*lists):
    tot = sum(len(l) for l in lists); idx = [0] * len(lists); o = []
    for k in range(tot):
        j = min((j for j in range(len(lists)) if idx[j] < len(lists[j])), key=lambda j: (idx[j] + 0.5) / len(lists[j]))
        o.append(lists[j][idx[j]]); idx[j] += 1
    return o

def mix(xs, ys, step, first=0):
    ys = list(ys); o = []
    for n, x in enumerate(xs):
        if n >= first and (n - first) % step == 0 and ys:
            o.append(ys.pop(0))
        o.append(x)
    return o + ys

def gen(opt):
    a = Asm()
    SO = dict(ds_lat=opt.get('lat', 64), ds_gap=opt.get('gap', 83) / 10., slack=opt.get('slack', -20))
    CP = CH + opt.get('cp', 0); SK = opt.get('sk', 0); BR = 72 * CH if CP != CH or SK else 64 * CH
    assert 64 * CP + 4 * SK <= BR
    V = dict(b0=VA, b1=VA + 1, f=VA + 2, m=VA + 3, p=VA + 4, tg=VA + 5, t=VA + 6, u=VA + 7)
    a('''
%s:
s_bfe_u32 s5, s2, 0x10003
s_mul_i32 s7, s5, 40
s_load_dwordx2 s[8:9], s[0:1], s7
%s
s_cmp_ge_u32 s2, %d
s_cbranch_scc1 L_END
''' % (KN, '' if opt.get('k1') else 's_load_dwordx2 s[12:13], s[0:1], 96\ns_load_dwordx2 s[44:45], s[0:1], 80', NWG))
    if opt.get('fp'):
        a('; code + table -> L2 (a few workgroups per die), then one touch per cache line of this die group\'s x rows')
        a('''s_getpc_b64 s[16:17]
L_PC:
v_lshlrev_b32 v4, 7, v0
s_cmp_ge_u32 s2, %d
s_cbranch_scc1 L_NOCI
global_load_dword v59, v4, s[16:17]
L_NOCI:''' % opt.get('ci', 16))
        stamp(a, opt, 0)
        a('''s_and_b32 s33, s2, 7
s_sub_u32 s3, 16, s33
s_cmp_eq_u32 s33, 0
s_cselect_b32 s3, 8, s3
s_bfe_u32 s36, s2, 0x10004
s_cselect_b32 s3, s3, s33
s_bfe_u32 s6, s2, 0x30005
s_lshl_b32 s23, s6, 8
s_add_u32 s23, s23, s3
s_mul_i32 s23, s23, 896
v_lshrrev_b32 v9, 4, v0
v_mul_u32_u24 v9, 14336, v9
v_and_b32 v8, 15, v0
v_min_u32 v8, %d, v8
v_lshl_add_u32 v9, v8, %d, v9
s_mov_b32 s10, %d
s_mov_b32 s11, 0x20000
s_waitcnt lgkmcnt(0)''' % ((opt.get('nl', 7) - 1, 7, XB) if opt['fp'] == 2 else (13, 6, XB)))
        stamp(a, opt, 1)
        a('buffer_load_dword v57, v9, s[8:11], s23 offen %s' % opt.get('pff', ''))
        TA0 = '''s_lshl_b32 s39, s4, 12
s_add_u32 m0, s39, 2048
s_mul_i32 s20, s4, 458752
s_and_b32 s37, s6, 1
s_mul_i32 s21, s6, 7
s_sub_u32 s21, s21, s37
s_lshl_b32 s21, s21, 3
s_mul_i32 s24, s3, 896
s_mul_i32 s26, s32, 896
s_add_u32 s24, s24, s20
s_add_u32 s26, s26, s20
s_add_u32 s24, s24, s21
s_sub_u32 s26, s26, s21
s_add_u32 s25, s24, 56320
s_add_u32 s27, s26, 57152
s_add_u32 s26, s26, 832
'''
        TA1 = '''s_lshl_b32 m0, s4, 12
s_lshr_b32 s20, s4, 1
s_mul_i32 s20, s20, 917504
s_and_b32 s67, s4, 1
s_mul_i32 s21, s67, 57344
s_add_u32 s20, s20, s21
s_and_b32 s37, s6, 1
s_mul_i32 s21, s6, 7
s_sub_u32 s21, s21, s37
s_lshl_b32 s21, s21, 3
s_mul_i32 s24, s3, 896
s_mul_i32 s26, s32, 896
s_add_u32 s24, s24, s20
s_add_u32 s26, s26, s20
s_add_u32 s24, s24, s21
s_sub_u32 s26, s26, s21
s_add_u32 s27, s26, %d
s_add_u32 s26, s26, 832
s_add_u32 s25, s24, %d
s_lshl_b32 s39, s4, 12
s_add_u32 s39, s39, 2048
''' % (832 + 458752 - 1024, 458752 - 1024)
        if opt.get('k1'): a('s_load_dwordx2 s[12:13], s[0:1], 96\ns_load_dwordx2 s[44:45], s[0:1], 80')
        a('''s_and_b32 s20, s2, 1
s_cmp_ge_u32 s2, 256
s_cselect_b32 s5, s20, s5
s_lshl_b32 s38, s5, 7
s_add_u32 s38, s38, %d
KCELL1
v_lshrrev_b32 v6, 6, v0
v_and_b32 v0, 63, v0
v_readfirstlane_b32 s4, v6
s_sub_u32 s32, 16, s3
s_and_b32 s32, s32, 15
v_lshlrev_b32 v1, 4, v0
v_lshrrev_b32 v6, 4, v0
v_bfe_u32 v7, v0, 2, 2
v_mul_u32_u24 v2, 14336, v6
v_mul_u32_u24 v7, 114688, v7
v_lshrrev_b32 v3, 3, v0
v_and_b32 v3, 2, v3
v_xor_b32 v4, v3, v0
v_and_b32 v4, 3, v4
v_lshlrev_b32 v4, 4, v4
v_add3_u32 v2, v2, v7, v4
%s
s_mov_b32 s14, %d
s_mov_b32 s15, 0x20000''' % (CELL, TA1 if opt.get('e1') else TA0, WSB))
        xp = opt.get('xp', 1)
        XD = '''; x tiles -> LDS (mirror window first)
buffer_load_dwordx4 v2, s[8:11], s26 offen lds
buffer_load_dwordx4 v2, s[8:11], s27 offen offset:1024 lds
s_mov_b32 m0, s39
buffer_load_dwordx4 v2, s[8:11], s24 offen lds
buffer_load_dwordx4 v2, s[8:11], s25 offen offset:1024 lds
'''
        if opt.get('xf'): XD = XD.replace(' lds\n', ' %s lds\n' % opt['xf'])
        if opt.get('al'):
            for r in (24, 25, 26, 27): a('s_and_b32 s%d, s%d, %d' % (r, r, -opt['al']))
        if xp == 0: a('s_cmp_ge_u32 s2, 256\ns_cbranch_scc1 L_SKIP1\n' + XD); stamp(a, opt, 'a')
    else:
        if opt.get('ci'):
            a('''s_cmp_ge_u32 s2, %d
s_cbranch_scc1 L_NOCI
s_getpc_b64 s[16:17]
v_lshlrev_b32 v4, 7, v0
global_load_dword v59, v4, s[16:17]
L_NOCI:''' % opt['ci'])
        stamp(a, opt, 0)
        a('''
v_lshrrev_b32 v6, 6, v0
v_and_b32 v0, 63, v0
v_readfirstlane_b32 s4, v6
s_and_b32 s33, s2, 7
s_lshr_b32 s6, s2, 5
s_sub_u32 s3, 16, s33
s_cmp_eq_u32 s33, 0
s_cselect_b32 s3, 8, s3
s_bfe_u32 s36, s2, 0x10004
s_cselect_b32 s3, s3, s33
s_sub_u32 s32, 16, s3
s_and_b32 s32, s32, 15
v_lshrrev_b32 v6, 4, v0
v_bfe_u32 v7, v0, 2, 2
v_mul_u32_u24 v2, 14336, v6
v_mul_u32_u24 v7, 114688, v7
v_lshrrev_b32 v3, 3, v0
v_and_b32 v3, 2, v3
v_xor_b32 v4, v3, v0
v_and_b32 v4, 3, v4
v_lshlrev_b32 v4, 4, v4
v_add3_u32 v2, v2, v7, v4
s_lshl_b32 s39, s4, %d
s_add_u32 m0, s39, 2048
s_mul_i32 s20, s4, %d
s_and_b32 s37, s6, 1
s_mul_i32 s21, s6, 7
s_sub_u32 s21, s21, s37
s_lshl_b32 s21, s21, 3
s_mul_i32 s24, s3, 896
s_mul_i32 s26, s32, 896
s_add_u32 s24, s24, s20
s_add_u32 s26, s26, s20
s_add_u32 s24, s24, s21
s_sub_u32 s26, s26, s21
s_add_u32 s25, s24, 56320
s_add_u32 s27, s26, %d
s_add_u32 s26, s26, %d
''' % ((13, 917504) if opt.get('pw2') else (12, 458752)).__add__((832 + 56320, 832)))
        if opt.get('al'):
            for r in (24, 25, 26, 27): a('s_and_b32 s%d, s%d, %d' % (r, r, -opt['al']))
        if opt.get('pf'):
            a('''v_cmp_le_u32 vcc, 28, v0
v_lshlrev_b32 v9, 5, v0
v_add_u32 v8, 13440, v9
v_cndmask_b32 v9, v9, v8, vcc
v_cmp_gt_u32 vcc, 56, v0
v_mov_b32 v8, 0x40000000
s_lshl_b32 s23, s6, 2
s_add_u32 s23, s23, s4
s_lshl_b32 s23, s23, 6
s_add_u32 s23, s23, s3
s_mul_i32 s23, s23, 896
s_add_u32 s38, s23, 28672
v_cndmask_b32 v9, v8, v9, vcc''')
            if opt.get('pl'):
                a('''v_lshlrev_b32 v9, 5, v0
s_lshr_b32 s23, s2, 4
s_lshl_b32 s23, s23, 3
s_add_u32 s23, s23, s33
s_lshl_b32 s23, s23, 2
s_add_u32 s23, s23, s4
s_mul_i32 s23, s23, 3584
s_add_u32 s38, s23, 1792
v_cndmask_b32 v9, v8, v9, vcc''')
            if opt.get('p64') == 2:
                a('''v_cmp_gt_u32 vcc, 28, v0
v_mul_u32_u24 v9, 9363, v0
v_lshrrev_b32 v9, 16, v9
v_mul_u32_u24 v9, 13440, v9
v_lshl_add_u32 v9, v0, 7, v9
v_cndmask_b32 v9, v8, v9, vcc''')
            if opt.get('p64') == 1:
                a('''v_mul_u32_u24 v9, 4682, v0
v_lshrrev_b32 v9, 16, v9
v_mul_u32_u24 v9, 13440, v9
v_lshl_add_u32 v9, v0, 6, v9
v_cndmask_b32 v9, v8, v9, vcc''')
        a('''
s_mov_b32 s10, %d
s_mov_b32 s11, 0x20000
s_mov_b32 s14, %d
s_mov_b32 s15, 0x20000
s_and_b32 s20, s2, 1
s_cmp_ge_u32 s2, 256
s_cselect_b32 s5, s20, s5
s_lshl_b32 s20, s5, 7
s_add_u32 s20, s20, %d
v_lshlrev_b32 v1, 4, v0
s_cmp_ge_u32 s2, 256
s_waitcnt lgkmcnt(0)
''' % (XB, WSB, CELL))
        if opt.get('wo'): a('s_add_u32 s12, s12, %d\ns_addc_u32 s13, s13, 0\ns_cmp_ge_u32 s2, 256' % (opt['wo'] << 20))
        stamp(a, opt, 1)
        a('s_cbranch_scc1 L_SKIP1')
        PF = 'buffer_load_dword v57, v9, s[8:11], s23 offen %s\nbuffer_load_dword v58, v9, s[8:11], s38 offen %s' % ((opt.get('pff', ''),) * 2)
        xp = opt.get('xp', 0)
        if opt.get('p64'): PF = PF.split('\n')[0]
        if opt.get('pf') in (1, 2):
            a(PF)
            if opt['pf'] == 2: a('s_barrier')
        XD = '''
buffer_load_dwordx4 v2, s[8:11], s26 offen lds
buffer_load_dwordx4 v2, s[8:11], s27 offen offset:1024 lds
s_mov_b32 m0, s39
buffer_load_dwordx4 v2, s[8:11], s24 offen lds
buffer_load_dwordx4 v2, s[8:11], s25 offen offset:1024 lds
'''.replace(' lds', ' %s lds' % opt.get('xf', ''))
        if opt.get('pw2'):
            a('s_cmp_ge_u32 s4, 2\ns_cbranch_scc1 L_PRE')
            a(XD)
            a('s_add_u32 m0, s22, 6144\ns_add_u32 s22, s22, 4096')
            for r in (24, 25, 26, 27): a('s_add_u32 s%d, s%d, 458752' % (r, r))
            a(XD)
            a('''s_branch L_PRE2
L_PRE:
v_lshrrev_b32 v5, 3, v0
v_lshlrev_b32 v5, 14, v5
v_and_b32 v7, 0x70, v1
v_add_u32 v5, v5, v7
s_lshl_b32 s21, s5, 20
s_lshl_b32 s23, s3, 7
s_add_u32 s21, s21, s23
s_lshl_b32 s23, s6, 11
s_add_u32 s21, s21, s23
s_and_b32 s23, s4, 1
s_lshl_b32 s23, s23, 19
s_add_u32 s24, s21, s23
s_add_u32 s25, s24, 0x20000
s_add_u32 s26, s24, 0x40000
s_add_u32 s27, s24, 0x60000''')
            for i in range(4): a('v_mov_b32 v%d, 2.0' % (48 + i))
            for r in (24, 25, 26, 27): a('buffer_store_dwordx4 v[48:51], v5, s[12:15], s%d offen sc1' % r)
            a('L_PRE2:')
        elif xp == 0:
            a(XD)
            if opt.get('pf') == 3: a(PF)
    a('''
L_SKIP1:
KCELL2
%s
s_lshl_b32 s22, s4, 12
s_mov_b32 s46, %d
s_mov_b32 s47, 0x20000
''' % ('' if opt.get('fp') else 's_load_dwordx2 s[34:35], s[12:13], s20', OUTB))
    if opt.get('ah'):
        a('''s_getreg_b32 s20, hwreg(HW_REG_XCC_ID, 0, 3)
s_lshl_b32 s20, s20, 1
s_add_u32 s20, s20, s5
s_lshl_b32 s20, s20, 10
s_add_u32 s20, s20, %d
v_lshl_add_u32 v55, v1, 3, s20''' % HINT)
        if opt.get('aw') == 1:
            a('s_mov_b64 exec, 0xff\nglobal_load_dword v52, v55, s[12:13] sc1\ns_mov_b64 exec, -1')
    if not opt.get('fp'): a('s_getpc_b64 s[16:17]\nL_PC:')
    a('''
s_lshl_b32 s20, s6, 3
s_add_u32 s33, s33, s20
s_lshl_b32 s31, s36, 10
s_add_u32 s31, s31, s33
s_lshr_b32 s21, 128, s36
s_cmp_eq_u32 s33, 0
s_cselect_b32 s31, s21, s31
s_cselect_b32 s20, 2, 0
s_add_u32 s36, s20, s36
s_cmp_ge_u32 s2, 256
s_cselect_b32 s33, 0, s33
s_cselect_b32 s36, 4, s36
s_cselect_b32 s31, 1024, s31
s_add_u32 s16, s16, K2_TAB-L_PC
s_addc_u32 s17, s17, 0
s_add_u32 s40, s16, 8192
s_addc_u32 s41, s17, 0
s_lshl_b32 s20, s36, 12
s_lshl_b32 s21, s4, 10
s_add_u32 s20, s20, s21
s_add_u32 s20, s20, 7168
s_add_u32 s18, s16, s20
s_addc_u32 s19, s17, 0
s_lshl_b32 s21, s4, 11
s_add_u32 s16, s16, s21
s_addc_u32 s17, s17, 0
s_mul_i32 s53, s4, 3072
s_add_u32 s53, s53, %d
s_mul_i32 s20, s5, %d
s_mul_i32 s21, s33, %d
s_add_u32 s54, s20, s21
s_lshr_b32 s21, s33, 4
s_mul_i32 s21, s21, %d
s_add_u32 s54, s54, s21
EQ54
s_cmp_ge_u32 s2, 256
s_cbranch_scc1 L_CONS
''' % (L_CONST, BR, CP, SK))
    CD = ['s_mov_b32 m0, s53',
          'global_load_dwordx4 %s, v1, s[40:41]' % vr(CB1),
          'global_load_lds_dwordx4 v1, s[16:17]',
          'global_load_lds_dwordx4 v1, s[16:17] offset:1024',
          'global_load_lds_dwordx4 v1, s[18:19] offset:2048']
    a('''v_bfe_u32 v5, v0, 3, 2
v_mul_u32_u24 v5, {c16}, v5
v_and_b32 v7, 0x70, v1
v_add_u32 v5, v5, v7
s_lshl_b32 s21, s4, 2
s_sub_u32 s22, 14, s21
s_sub_u32 s21, 16, s21
s_cmp_eq_u32 s4, 0
s_cselect_b32 s21, 8, s21
s_mul_i32 s21, s21, {cp}
s_mul_i32 s22, s22, {cp}
v_lshrrev_b32 v7, 5, v0
v_mad_u32_u24 v53, v7, s22, v5
v_mad_u32_u24 v5, v7, s21, v5
s_mul_i32 s20, s5, {br}
s_lshl_b32 s21, s3, 7
s_add_u32 s20, s20, s21
s_lshl_b32 s21, s6, 11
s_add_u32 s20, s20, s21
s_mul_i32 s21, s4, {c2}
s_add_u32 s28, s20, s21
s_add_u32 s29, s28, {cp}
'''.format(c16=16 * CP + SK, cp=CP, c2=2 * CP, br=BR))
    if opt.get('pre'):
        for i in range(4): a('v_mov_b32 v%d, 2.0' % (48 + i))
        PRE = ['buffer_store_dwordx4 v[48:51], v5, s[12:15], s28 offen %s' % opt.get('prest', 'sc1'),
               'buffer_store_dwordx4 v[48:51], v53, s[12:15], s29 offen %s' % opt.get('prest', 'sc1')]
        if opt['pre'] == 1:
            for t in PRE: a(t)
            a('s_nop 1')
    pw = opt.get('pw', 0)
    PW = []
    if pw:
        if opt.get('pwh'):
            a('s_lshl_b32 s20, s36, 11\ns_add_u32 s37, s54, s20\nv_lshlrev_b32 v55, 5, v0')
        else:
            a('s_mov_b32 s37, s54\nv_lshlrev_b32 v55, 6, v0')
        PW = ['buffer_load_dword v48, v55, s[12:15], s37 offen sc1']
    if opt.get('cde') == 1:
        for t in CD: a(t)
    if pw == 2:
        for t in PW: a(t)
    if xp == 1: a(XD)
    a('''
s_lshl_b32 s20, s4, 1
v_bfe_u32 v32, v0, 1, 1
v_add_u32 v32, s20, v32
v_and_b32 v33, 1, v0
v_cmp_eq_u32 vcc, 0, v32
v_lshlrev_b32 v34, 3, v33
v_lshlrev_b32 v35, 2, v33
v_cndmask_b32 v32, v32, v34, vcc
v_cndmask_b32 v35, v35, 0, vcc
v_and_b32 v34, 1, v32
E1PH
v_cvt_f32_u32 v32, v32
v_cvt_f32_u32 v35, v35
v_mul_u32_u24 v34, 0x8000, v34
v_mul_f32 v32, 0x3d800000, v32
v_mul_f32 v35, 0x3d800000, v35
v_lshl_or_b32 v34, v34, 16, v34
''')
    for i in range(8, 12): a('v_mov_b32 v%d, 0' % i)
    a('s_mov_b32 exec_lo, 0x%x\ns_mov_b32 exec_hi, 0x%x' % (EM_LO, EM_HI))
    for p in range(4):
        a('v_cos_f32 v36, v35\nv_add_f32 v35, v35, v32\nv_cos_f32 v37, v35')
        a('v_add_f32 v35, v35, v32' if p < 3 else 's_nop 0')
        a('v_cvt_pk_bf16_f32 v%d, v36, v37' % (8 + p))
    a('s_mov_b64 exec, -1')
    for p in range(4): a('v_xor_b32 v%d, v34, v%d' % (12 + p, 8 + p))
    if xp == 2: a(XD)
    a('''
v_lshlrev_b32 v38, 3, v0
v_and_b32 v38, 0x30, v38
v_and_b32 v39, 0x30, v0
E1U
v_add_u32 v40, s32, v39
v_add_u32 v39, s3, v39
v_and_b32 v47, 8, v0
v_cmp_ne_u32 s[56:57], 0, v47
v_cvt_f32_u32 v39, v39
v_cvt_f32_u32 v40, v40
v_cvt_f32_u32 v48, v33
v_sub_u32 v45, -16, v38
v_mul_f32 v39, 0x3a000000, v39
v_mul_f32 v40, 0x3a000000, v40
v_cndmask_b32 v45, v38, v45, s[56:57]
v_mul_f32 v49, 0x3e800000, v48
v_mul_f32 v50, 0.5, v48
v_add_u32 v45, s20, v45
v_add_f32 v43, v49, v50
v_add_u32 v46, 1, v45
v_cndmask_b32 v43, v49, v43, s[56:57]
v_add_f32 v44, v43, v50
v_mov_b32 v41, v43
v_mov_b32 v42, v44
s_cmp_lg_u32 s4, 0
s_cbranch_scc1 L_REG
v_cvt_f32_u32 v51, v6
v_add_u32 v45, v47, v38
v_and_b32 v56, 14, v0
v_add_f32 v41, 0x3e800000, v49
v_cmp_eq_u32 vcc, 0, v56
v_mul_f32 v51, v51, v50
v_cndmask_b32 v41, v49, v41, s[56:57]
s_cmp_eq_u32 s3, 0
s_cselect_b64 s[58:59], vcc, 0
v_cndmask_b32 v41, v41, v51, vcc
v_add_f32 v42, v41, v50
v_cndmask_b32 v42, v42, v41, s[58:59]
L_REG:
v_cvt_f32_i32 v45, v45
v_cvt_f32_i32 v46, v46
''')
    for al in range(2):
        a('v_mul_f32 v47, %s, v%d' % ('s68' if opt.get('e1') else '0x3d000000', 45 + al))
        for win in range(2):
            a('v_fma_f32 v50, v%d, v%d, v%d' % (45 + al, 39 + win, 41 + 2 * al + win))
            a('v_cos_f32 v36, v50\nv_sin_f32 v37, v50\nv_add_f32 v50, v50, v47')
            a('v_cvt_pk_bf16_f32 v%d, v36, v37' % (16 + 4 * al + 2 * win))
            a('v_cos_f32 v36, v50\nv_sin_f32 v37, v50\ns_nop 0')
            a('v_cvt_pk_bf16_f32 v%d, v36, v37' % (17 + 4 * al + 2 * win))
    a('''
s_cmp_lg_u32 s4, 0
s_cbranch_scc1 L_REG2
v_mov_b32 v36, 0xffff
v_not_b32 v37, v36
v_cndmask_b32 v36, v36, v37, s[56:57]
''')
    for p in range(4): a('v_and_b32 v%d, v36, v%d' % (16 + p, 16 + p))
    a('L_REG2:')
    if xp == 3: a(XD)
    if opt.get('cde') == 3:
        for t in CD: a(t)
    a('''
v_and_b32 v36, 15, v0
v_lshl_add_u32 v37, v6, 2, v36
v_sub_u32 v38, 28, v37
v_sub_u32 v37, 12, v37
v_mov_b32 v41, 0
v_mov_b32 v42, 0x3f80
v_cmp_gt_u32 vcc, 4, v38
v_lshlrev_b32 v38, 4, v38
v_mov_b32 v30, 0
v_cndmask_b32 v40, 0, v42, vcc
v_cmp_gt_u32 vcc, 4, v37
v_lshlrev_b64 v[24:25], v38, v[40:41]
v_lshlrev_b32 v37, 4, v37
v_cndmask_b32 v40, 0, v42, vcc
s_mul_i32 s21, s37, 0x3f80
v_lshlrev_b64 v[26:27], v37, v[40:41]
v_mov_b32 v31, 0
v_mov_b32 v28, v26
v_mov_b32 v29, v27
v_writelane_b32 v26, s21, 48
v_writelane_b32 v28, s21, 12
''')
    a('''
v_lshlrev_b32 v3, 4, v3
v_and_b32 v4, 3, v0
v_and_b32 v7, 0x3c0, v1
s_xor_b32 s21, s37, 1
v_add_lshl_u32 v48, v4, s21, 3
v_add_lshl_u32 v49, v4, s37, 3
v_xor_b32 v48, v48, v3
v_xor_b32 v3, v49, v3
v_add_u32 v48, v48, v7
v_add_u32 v3, v3, v7
v_xor_b32 v49, 32, v48
s_mul_i32 s20, s4, 2304
s_add_u32 s20, s20, %d
v_lshrrev_b32 v2, 2, v0
v_mul_u32_u24 v2, 72, v2
v_lshl_add_u32 v2, v4, 4, v2
v_add_u32 v2, s20, v2
v_xor_b32 v4, 32, v3
E1B
s_lshl_b32 s21, s6, 4
s_and_b32 s21, s21, 32
s_add_u32 s22, s20, s21
s_xor_b32 s21, s21, 32
s_add_u32 s23, s20, s21
v_mul_u32_u24 v7, 72, v36
v_lshl_add_u32 v7, v6, 3, v7
v_add_u32 v6, s22, v7
v_add_u32 v7, s23, v7
s_mul_i32 s30, s37, 0xffff
''' % L_STG)
    NONCE = '''
s_waitcnt lgkmcnt(0)
s_or_b32 s34, s34, 0x40000000
s_or_b32 s35, s35, 0x40004000
s_add_u32 s34, s34, 0x2b150000
s_add_u32 s35, s35, 0x1e3739b9
s_and_b32 s34, s34, 0xbfff0000
s_and_b32 s35, s35, 0xbfffbfff
'''
    if opt.get('cde') == 2:
        for t in CD: a(t)
    for _ in range(opt.get('pad1', 0)): a('s_nop 0')
    a(NONCE)
    if opt.get('pre', 0) >= 2:
        for i in range(4): a('v_mov_b32 v%d, 2.0' % (48 + i))
    a('s_mov_b32 s56, 0\ns_mov_b32 s57, 0xffff0000\nv_mov_b32 v54, s34')
    stamp(a, opt, 'b')
    if opt.get('pw2'): a('s_cmp_ge_u32 s4, 2\ns_cbranch_scc1 L_NOXW')
    a('s_waitcnt vmcnt(%d)\nL_NOXW:' % (2 if opt.get('sp') else 0))
    stamp(a, opt, 2)
    if opt.get('stamp') and not opt.get('prof'): a('s_waitcnt lgkmcnt(0)')
    if opt.get('pre') == 3:
        for t in PRE: a(t)
    a('s_barrier')
    if opt.get('eh'):
        a('''s_lshl_b32 s20, s4, 8
s_add_u32 s20, s20, s2
s_cmp_lt_u32 s20, 1008
s_cbranch_scc1 L_NOEH
s_lshl_b32 s20, s2, 7
s_and_b32 s20, s20, 0x780
s_add_u32 s20, s20, %d
v_lshl_add_u32 v56, v1, 7, s20
v_mov_b32 v57, s35
s_mov_b64 exec, 0xff
global_store_dword v56, v57, s[12:13] sc1
s_mov_b64 exec, -1
L_NOEH:''' % HINT)
    pstamp(a, opt, 0)
    if opt.get('pre') == 2:
        pass
    CDL = (PRE if opt.get('pre') == 2 else []) + ([] if opt.get('cde') else CD) + (PW if pw == 1 else [])
    a('; phase 1')
    order = [(win, kap, nt, bp) for win in (1, 0) for kap in range(2) for nt in range(2) for bp in range(2)]
    HD = [0, 2, 8, 10]
    ACC = lambda win, nt, bp: 32 + 4 * (bp + 2 * nt) if win else 112 + 4 * (bp + 2 * nt)
    OPR = lambda i: 56 + 4 * (i % 14) if i < 14 else 56 + 4 * (i - 14)
    def rd(i):
        win, kap, nt, bp = order[i]
        t = ['ds_read_b64_tr_b16 %s, v%d offset:%d' % ((vr(OPR(i) + 2 * hh, 2), 204 + 4 * (2 * kap + bp) + 2 * win + nt, (1 - win) * 2048 + hh * 1024) if opt.get('e1') else (vr(OPR(i) + 2 * hh, 2), (48 if win else 3) + nt, (2 * kap + hh) * 4096 + win * 2048 + bp * 1024)) for hh in range(2)]
        return [t[0], ('T', i, t[1])]
    def mf(i):
        win, kap, nt, bp = order[i]
        A = ACC(win, nt, bp)
        return '%s %s, %s, %s, %s' % (M32, vr(A), vr(8 + 4 * kap), vr(OPR(i)), vr(A) if kap else '0')
    A2 = lambda al, win, nt: 64 + 2 * (al + 2 * nt) if win else 32 + 2 * (al + 2 * nt)
    def cv(win, nt):
        return ['v_cvt_pk_bf16_f32 v%d, v%d, v%d' % (A2(al, win, nt) + p, ACC(win, nt, p) + 2 * al, ACC(win, nt, p) + 2 * al + 1) for al in range(2) for p in range(2)]
    D2M = lambda al, nt: 32 + 4 * (nt + 2 * al)
    B2 = lambda al: 72 + 4 * al
    D2 = lambda al, nt: (188 if opt.get('sp') else 80) + 4 * (nt + 2 * al)
    def m2m(al, nt): return '%s %s, %s, %s, 0' % (M16, vr(D2M(al, nt)), vr(A2(al, 1, nt), 2), vr(18 + 4 * al, 2))
    def cvm(al): return ['v_cvt_pk_bf16_f32 v%d, v%d, v%d' % (B2(al) + 2 * nt + h, D2M(al, nt) + 2 * h, D2M(al, nt) + 2 * h + 1) for nt in range(2) for h in range(2)]
    def mp(al, nt): return '%s %s, %s, %s, 0' % (M32, vr(D2(al, nt)), vr(24 + 4 * nt), vr(B2(al)))
    D3 = lambda al, nt: (204 if opt.get('sp') else 188) + 4 * al if nt else D2(al, 0)
    def m2(al, nt): return '%s %s, %s, %s, %s' % (M16, vr(D3(al, nt)), vr(A2(al, 0, nt), 2), vr(16 + 4 * al, 2), vr(D2(al, nt)))
    XT = ['v_cvt_pk_bf16_f32 v%d, v%d, v%d' % (50 + al, D2(al, 1), D2(al, 1)) for al in range(2)]
    PK = lambda al, nt: 96 + 2 * (nt + 2 * al)
    def pack(al, nt): return ['v_cvt_pk_bf16_f32 v%d, v%d, v%d' % (PK(al, nt) + h, D3(al, nt) + 2 * h, D3(al, nt) + 2 * h + 1) for h in range(2)]
    def wr(al, nt): return 'ds_write_b64 v%d, %s offset:%d' % (6 + nt, vr(PK(al, nt), 2), 1152 * al)
    R = lambda *ii: [x[2] if isinstance(x, tuple) else x for i in ii for x in rd(i)]
    RO = HD + [i for i in range(14) if i not in HD] if opt.get('e1') else list(range(14))
    seq = R(*RO) + [mf(i) for i in range(8)] + R(14, 15) + CDL + cv(1, 0) + cv(1, 1) + [m2m(0, 0), m2m(0, 1), m2m(1, 0), m2m(1, 1)]
    seq += [mf(i) for i in range(8, 12)] + cvm(0) + cvm(1) + [mp(0, 0), mp(0, 1), mp(1, 0), mp(1, 1)] + [mf(i) for i in range(12, 16)]
    seq += cv(0, 0) + cv(0, 1) + [m2(0, 0), m2(1, 0), m2(0, 1), m2(1, 1)] + XT
    seq += pack(0, 0) + pack(1, 0) + [wr(0, 0), wr(1, 0)] + pack(0, 1) + pack(1, 1)
    bo = cv(1, 0) + cv(1, 1) + [m2m(0, 0), m2m(0, 1), m2m(1, 0), m2m(1, 1)] + [mf(i) for i in range(8)] if not opt.get('nob') else []
    if opt.get('sp'):
        s1 = R(*range(8)) + [mf(i) for i in range(8)] + cv(1, 0) + cv(1, 1) + [m2m(0, 0), m2m(0, 1), m2m(1, 0), m2m(1, 1)]
        s1b = cvm(0) + cvm(1) + [mp(0, 0), mp(0, 1), mp(1, 0), mp(1, 1)]
        if opt['sp'] == 1: s1 += s1b; s1b = []
        s2 = R(*range(8, 16)) + CDL + s1b + [mf(i) for i in range(8, 16)] + cv(0, 0) + cv(0, 1) + [m2(0, 0), m2(1, 0), m2(0, 1), m2(1, 1)] + XT
        s2 += pack(0, 0) + pack(1, 0) + [wr(0, 0), wr(1, 0)] + pack(0, 1) + pack(1, 1)
        for t in schedule(s1, verbose=opt.get('v'), **SO): a(t)
        a('s_waitcnt vmcnt(0)\ns_barrier')
        for t in schedule(s2, boost=CDL, pin=[(CDL[i], R(*range(8, 16))[min(15, 7 + 2 * i)]) for i in range(len(CDL))], verbose=opt.get('v'), **SO): a(t)
    else:
        if opt.get('e1'):
            l = schedule(seq, boost=bo + CDL, pin=[(CDL[i], R(*RO)[8 + min(15, opt.get('p0', 3) + 2 * i)]) for i in range(len(CDL))], head=8, verbose=opt.get('v'), **SO)
            assert l[:8] == R(*HD)
            k = len(a.ins) - 1
            while a.ins[k].text != 's_barrier': k -= 1
            a.ins[k:k] = [type(a.ins[0])(t) for t in l[:8]]
            for t in l[8:]: a(t)
        else:
            for t in schedule(seq, boost=bo + CDL, pin=[(CDL[i], R(*range(8))[min(15, opt.get('p0', 7) + 2 * i)]) for i in range(len(CDL))], verbose=opt.get('v'), **SO): a(t)
    pstamp(a, opt, 1)
    a('s_mov_b64 exec, s[56:57]')
    for al in range(2):
        a('v_and_or_b32 v%d, v%d, s30, v54\nv_mov_b32 v%d, s35' % (PK(al, 1), 50 + al, PK(al, 1) + 1))
    a('s_mov_b64 exec, -1')
    for al in range(2):
        a(wr(al, 1))
        a('ds_read2_b64 %s, v2 offset0:%d offset1:%d' % (vr(104 + 4 * al), 144 * al, 144 * al + 1))
    pstamp(a, opt, 2)
    if opt.get('prof'): a('s_waitcnt lgkmcnt(0)')
    if opt.get('ol'): a('s_lshl_b32 s20, s4, 8\ns_add_u32 s20, s20, s2\ns_cmp_ge_u32 s20, 1008')
    a('s_waitcnt lgkmcnt(2)' + ('' if opt.get('cde') or opt.get('rs') or opt.get('nv') else ' vmcnt(0)'))
    if opt.get('pw2') or opt.get('bb'): a('s_barrier')
    a('buffer_store_dwordx4 v[104:107], v5, s[12:15], s28 offen %s' % opt.get('k1st', 'sc1'))
    a('s_waitcnt lgkmcnt(0)')
    a('buffer_store_dwordx4 v[108:111], v53, s[12:15], s29 offen %s' % opt.get('k1st', 'sc1'))
    stamp(a, opt, 3)
    pstamp(a, opt, 3)
    OL = []
    if opt.get('ol'):
        assert opt.get('nv') and opt.get('xh')
        a('s_cbranch_scc1 L_HINT\nL_P2:')
        if not opt.get('pb'): a('s_waitcnt vmcnt(0)\ns_barrier')
        OL.append('''; last workgroups: tell the two extra workgroups that the stores are on their way
L_HINT:
s_lshl_b32 s20, s2, 7
s_and_b32 s20, s20, 0x780
s_add_u32 s20, s20, %d
v_mov_b32 v8, s20
v_mov_b32 v9, s35
s_mov_b64 exec, 1
global_store_dword v8, v9, s[12:13] sc1
s_mov_b64 exec, -1
s_branch L_P2
; extra workgroups: no phase 1
L_CONS:''' % HINT + NONCE + '\n'.join(CD) + '\ns_branch L_P2')
    else:
        if opt.get('xh') and not opt.get('eh'):
            a('''s_lshl_b32 s20, s4, 8
s_add_u32 s20, s20, s2
s_cmp_lt_u32 s20, 1008
s_cbranch_scc1 L_P2
s_lshl_b32 s20, s2, 7
s_and_b32 s20, s20, 0x780
s_add_u32 s20, s20, %d
v_lshl_add_u32 v8, v1, 7, s20
v_mov_b32 v9, s35
s_mov_b64 exec, %d
HLWAIT
global_store_dword v8, v9, s[12:13] sc1
s_mov_b64 exec, -1
%s
s_branch %s''' % (HINT, 0xff if opt.get('ah') else 1, '' if opt.get('nv') else 's_waitcnt vmcnt(1)' if opt.get('pw2') or opt.get('bb') else 's_barrier\ns_waitcnt vmcnt(1)', 'L_P2' if opt.get('nv') else 'L_P3'))
        else:
            a('s_branch L_P2')
        a('L_CONS:')
        if opt.get('aw') == 2:
            a('''s_lshl_b32 s20, s5, 10
s_add_u32 s20, s20, %d
v_lshrrev_b32 v8, 3, v0
v_lshlrev_b32 v8, 11, v8
v_and_b32 v9, 7, v0
v_lshl_add_u32 v8, v9, 7, v8
v_add_u32 v8, s20, v8
global_load_dword v9, v8, s[12:13] sc1''' % HINT)
        a(NONCE)
        for t in CD: a(t)
        a('L_P2:\ns_waitcnt vmcnt(0)\ns_barrier' if opt.get('nv') else 'L_P2:' if opt.get('rs') else 's_waitcnt vmcnt(0)\ns_barrier\nL_P2:' if opt.get('pw2') or opt.get('bb') else 's_waitcnt vmcnt(0)\nL_P2:\ns_barrier')
    if opt.get('pa') and not opt.get('nv'): a('s_waitcnt vmcnt(0)')
    a('L_P3:')
    if opt.get('ah'):
        a('s_mov_b64 exec, 0xff\nglobal_load_dword v9, v55, s[12:13] sc1\ns_mov_b64 exec, -1')
    DB = L_DAT if opt.get('rs') else 0
    a(('''
''' + ('''v_lshrrev_b32 v6, 4, v0
v_lshlrev_b32 v{b0}, 12, v6
v_and_b32 v7, 0xc0, v1
v_add_u32 v{b0}, v{b0}, v7
v_and_b32 v6, 1, v6
v_lshl_add_u32 v{b0}, v6, 5, v{b0}
v_and_b32 v6, 3, v0
v_lshl_add_u32 v{b0}, v6, 3, v{b0}
v_add_u32 v{b0}, {db}, v{b0}
v_xor_b32 v{b1}, 32, v{b0}
''' if not opt.get('eq') else '''v_lshrrev_b32 v6, 4, v0
v_lshlrev_b32 v{b0}, 10, v6
v_and_b32 v7, 0xc0, v1
v_add_u32 v{b0}, v{b0}, v7
v_and_b32 v6, 1, v6
v_lshl_add_u32 v{b0}, v6, 5, v{b0}
v_and_b32 v7, 3, v0
v_lshl_add_u32 v{b0}, v7, 3, v{b0}
s_lshl_b32 s20, s4, 12
v_add_u32 v196, s20, v{b0}
s_add_u32 s20, s20, 4096
s_and_b32 s20, s20, 0x3000
v_add_u32 v198, s20, v{b0}
s_add_u32 s20, s20, 4096
s_and_b32 s20, s20, 0x3000
v_add_u32 v200, s20, v{b0}
s_add_u32 s20, s20, 4096
s_and_b32 s20, s20, 0x3000
v_add_u32 v202, s20, v{b0}
v_xor_b32 v197, 32, v196
v_xor_b32 v199, 32, v198
v_xor_b32 v201, 32, v200
v_xor_b32 v203, 32, v202
v_lshlrev_b32 v{b1}, 5, v6
v_lshrrev_b32 v7, 5, v0
v_mul_u32_u24 v7, 1536, v7
v_add_u32 v{b0}, v7, v1
s_add_u32 s64, s54, 3072
s_add_u32 s65, s54, 6144
s_add_u32 s66, s54, 9216
''') + '''v_and_b32 v{f}, 31, v0
v_lshrrev_b32 v6, 5, v0
v_lshl_add_u32 v6, v{f}, 1, v6
v_add_u32 v7, 1, v6
v_cmp_ne_u32 vcc, 56, v7
v_mov_b32 v{t}, 0x40000000
v_lshlrev_b32 v6, 4, v6
v_cndmask_b32 v7, 0, v7, vcc
v_cmp_gt_u32 vcc, 28, v{f}
v_sub_u32 v{m}, 880, v6
v_and_b32 v{u}, 1, v7
v_cndmask_b32 v{f}, v{t}, v6, vcc
v_cndmask_b32 v{m}, v{t}, v{m}, vcc
v_lshlrev_b32 v7, 1, v7
v_and_b32 v7, 0x7c, v7
v_lshl_add_u32 v{p}, v{u}, 7, v7
s_lshl_b32 s22, s4, 12
s_add_u32 s22, s22, {db}
''' + ('''s_and_b32 s20, s4, 1
s_lshl_b32 s20, s20, 5
s_sub_u32 s20, 56, s20
s_add_u32 s20, s20, s22
v_and_b32 v{tg}, 0x3c0, v1
v_add_u32 v{tg}, s20, v{tg}
v_lshl_add_u32 v{u}, v1, 2, s20
''' if not opt.get('eq') else '''s_add_u32 s20, s22, 56
v_and_b32 v{tg}, 0x3c0, v1
v_add_u32 v{tg}, s20, v{tg}
v_lshl_add_u32 v{u}, v1, 2, s20
v_sub_u32 v{u}, v{u}, v{b1}
''') + '''v_and_b32 v6, 0xf0, v1
v_add_u32 v6, s53, v6
v_add_u32 v7, {cc}, v1
''').format(cc=L_CONST, db=DB, **V))
    if opt.get('lin2'):
        a('''v_cmp_gt_u32 vcc, 56, v0
s_nop 1
v_cndmask_b32 v{f}, v{t}, v1, vcc
v_cndmask_b32 v{m}, v{t}, v1, vcc'''.format(**V))
    for _ in range(opt.get('pad2', 0)): a('s_nop 0')
    for i in range(16): a('v_mov_b32 v%d, 0' % (CA + i))
    a('''
s_lshl_b32 s21, s4, 8
s_add_u32 s48, s21, s31
s_add_u32 s49, s48, 128
s_cmp_eq_u32 s36, 2
s_cselect_b32 s21, 1023, -1
s_and_b32 s49, s49, s21
s_sub_u32 s50, 2048, s48
s_sub_u32 s51, 2048, s49
s_and_b32 s51, s51, 2047
s_mul_i32 s20, s5, 896
s_mul_i32 s48, s48, 1792
s_mul_i32 s49, s49, 1792
s_mul_i32 s50, s50, 1792
s_mul_i32 s51, s51, 1792
s_add_u32 s48, s48, s20
s_add_u32 s49, s49, s20
s_add_u32 s50, s50, s20
s_add_u32 s51, s51, s20
s_mov_b32 s52, 0xffff
s_mov_b32 s55, %s
s_mov_b32 m0, s22
''' % ('0x40000' if opt.get('stamp') else '0x400000'))
    def const_reads():
        a('s_mov_b32 exec_lo, 0x%x\ns_mov_b32 exec_hi, 0x%x' % (EM_LO, EM_HI))
        for k in range(4): a('ds_read_b128 %s, v6 offset:%d' % (vr(CA + 4 * k), 2048 + 256 * k))
        a('s_mov_b64 exec, -1')
        for i in range(8): a('ds_read_b128 %s, v7 offset:%d' % (vr(CTW + 4 * i), (i >> 1) * 3072 + (i & 1) * 1024))
    if opt.get('pb'): a('s_waitcnt vmcnt(0)\ns_barrier')
    if not opt.get('rs') and opt.get('pb') != 2: const_reads()
    ld = opt.get('k2ld', 'sc1')
    sent = opt.get('sent', 0)
    if not opt.get('early') and sent != 2 and not opt.get('pa'): a('s_waitcnt vmcnt(0)')
    stamp(a, opt, 4)
    if opt.get('slp'): a('s_sleep %d' % opt['slp'])
    if opt.get('lw'): a('s_waitcnt lgkmcnt(0)')
    if opt.get('lw') == 2: a('s_barrier')
    if opt.get('eh'):
        a('''s_mov_b64 exec, 0xff
s_waitcnt vmcnt(0)
v_cmp_ne_u32 vcc, s35, v9
s_cbranch_vccz L_POLL0
L_SENT:
global_load_dword v9, v55, s[12:13] sc1
s_waitcnt vmcnt(0)
v_cmp_ne_u32 vcc, s35, v9
s_cbranch_vccz L_SENT2
s_sub_u32 s55, s55, 1
s_cbranch_scc0 L_SENT
L_SENT2:''')
        for i in range(opt['eh'] - 1): a('global_load_dword v9, v55, s[12:13] sc1\ns_waitcnt vmcnt(0)')
    elif opt.get('ah'):
        a('''s_mov_b64 exec, 0xff
L_SENT:
s_waitcnt vmcnt(0)
v_cmp_ne_u32 vcc, s35, v9
s_and_b64 exec, exec, vcc
s_cbranch_scc0 L_POLL0
global_load_dword v9, v55, s[12:13] sc1
s_sub_u32 s55, s55, 1
s_cbranch_scc0 L_SENT''')
    elif opt.get('ol'):
        a('s_cmp_ge_u32 s2, 256\ns_cbranch_scc1 L_WAIT')
        OL.append('''; extra workgroups: wait for those notes (bounded) before the first fetch
L_WAIT:
s_lshl_b32 s20, s5, 10
s_add_u32 s20, s20, %d
v_lshl_add_u32 v8, v1, 3, s20
s_mov_b64 exec, 0xff
L_SENT:
global_load_dword v9, v8, s[12:13] sc1
s_waitcnt vmcnt(0)
v_cmp_ne_u32 vcc, s35, v9
s_and_b64 exec, exec, vcc
s_cbranch_scc0 L_SENT2
s_sub_u32 s55, s55, 1
s_cbranch_scc0 L_SENT
L_SENT2:
s_mov_b64 exec, -1
s_mov_b32 s55, 0x400000
s_branch L_POLL0''' % HINT)
    elif opt.get('xh'):
        a('''s_cmp_lt_u32 s2, 256
s_cbranch_scc1 L_POLL0
s_lshl_b32 s20, s5, 10
s_add_u32 s20, s20, %d
v_lshl_add_u32 v8, v1, 3, s20
s_mov_b64 exec, 0xff
L_SENT:
global_load_dword v9, v8, s[12:13] sc1
s_waitcnt vmcnt(0)
v_cmp_ne_u32 vcc, s35, v9
s_and_b64 exec, exec, vcc
s_cbranch_scc0 L_POLL0
s_sub_u32 s55, s55, 1
s_cbranch_scc0 L_SENT''' % HINT)
    else:
        if sent:
            a('s_mov_b32 exec_lo, 0x%x\ns_mov_b32 exec_hi, 0x%x' % ((opt.get('sm', 0x0f0f0f0f),) * 2))
        else:
            a('s_cmp_lt_u32 s2, 256\ns_cbranch_scc1 L_POLL0\ns_mov_b64 exec, 15')
        a('''
L_SENT:
buffer_load_dwordx4 v1, s[12:15], s54 offen {ld} lds
s_waitcnt vmcnt(0)
ds_read_b64 v[8:9], v{tg}
s_waitcnt lgkmcnt(0)
v_cmp_ne_u32 vcc, s35, v9
s_cbranch_vccz L_POLL0
s_sub_u32 s55, s55, 1
s_cbranch_scc0 L_SENT'''.format(ld=ld, **V))
    a('''
L_POLL0:
'''.format(ld=ld, **V))
    if not opt.get('ol'): a('s_mov_b64 exec, -1')
    FV = 'v%d' % V['b0'] if opt.get('eq') else 'v1'
    FS = ['s54', 's64', 's65', 's66'] if opt.get('eq') else ['s54'] * 4
    for k in range(4): a('buffer_load_dwordx4 %s, s[12:15], %s offen offset:%d %s lds' % (FV, FS[k], 1024 * k, opt.get('ld1', ld)))
    if opt.get('rs'):
        a('s_barrier')
        const_reads()
    if opt.get('pb') == 2: const_reads()
    a('''L_CHK:
s_waitcnt vmcnt(0)
ds_read_b64 v[4:5], v{u}
EQREADS
v_and_b32 v4, 0xffff0000, v4
v_cmp_ne_u64 vcc, s[34:35], v[4:5]
s_cbranch_vccnz L_SLOW
L_GO:'''.format(**V))
    def slow():
        a('; some block is not there yet: fetch exactly those again\nL_SLOW:\ns_sub_u32 s55, s55, 1\ns_cbranch_scc1 L_GO')
        for k in range(4): a('ds_read_b64 %s, v%d offset:%d' % (vr(8 + 2 * k, 2), V['tg'], 1024 * k - (32 * (k & 1) if opt.get('eq') else 0)))
        for k in range(4):
            a('s_waitcnt lgkmcnt(%d)' % (3 - k))
            a('v_and_b32 v%d, 0xffff0000, v%d' % (8 + 2 * k, 8 + 2 * k))
            a('v_cmp_ne_u64 s[%d:%d], s[34:35], %s' % (56 + 2 * k, 57 + 2 * k, vr(8 + 2 * k, 2)))
        for k in range(4):
            a('s_mov_b64 exec, s[%d:%d]\ns_cbranch_execz L_NO%d' % (56 + 2 * k, 57 + 2 * k, k))
            a('buffer_load_dwordx4 %s, s[12:15], %s offen offset:%d %s lds' % (FV, FS[k], 1024 * k, ld))
            a('L_NO%d:' % k)
        a('s_mov_b64 exec, -1\ns_branch L_CHK')
    stamp(a, opt, 5)
    if opt.get('stamp') and not opt.get('prof'): a('s_waitcnt lgkmcnt(0)')
    a('s_cmp_ge_u32 s2, 256\ns_barrier\ns_cbranch_scc1 L_ONE')
    pstamp(a, opt, 4)
    a('; phase 2')
    order = [(ta, kap, sub) for ta in range(2) for kap in range(4) for sub in range(2)]
    if opt.get('eq'): order = [(ta, 0, sub) for ta in range(2) for sub in range(2)] + [(ta, kap, sub) for ta in range(2) for kap in range(1, 4) for sub in range(2)]
    DA = lambda ta, sub: 8 + 4 * (sub + 2 * ta)
    OPR = lambda i: 24 + 4 * i
    def rd(i):
        ta, kap, sub = order[i]
        t = ['ds_read_b64_tr_b16 %s, v%d offset:%d' % ((vr(OPR(i) + 2 * hh, 2), 196 + 2 * kap + ta, hh * 256 + sub * 512) if opt.get('eq') else (vr(OPR(i) + 2 * hh, 2), V['b0'] + ta, (4 * kap + 2 * hh) * 128 + sub * 2048)) for hh in range(2)]
        return [t[0], ('T', i, t[1])]
    def mf(i):
        ta, kap, sub = order[i]
        return '%s %s, %s, %s, %s' % (M32, vr(DA(ta, sub)), vr(CA + 4 * kap), vr(OPR(i)), vr(DA(ta, sub)) if kap else '0')
    A1 = lambda tl, ta: 88 + 2 * (tl + 2 * ta)
    def cv(ta):
        return ['v_cvt_pk_bf16_f32 v%d, v%d, v%d' % (A1(tl, ta) + p, DA(ta, p) + 2 * tl, DA(ta, p) + 2 * tl + 1) for tl in range(2) for p in range(2)]
    D1 = lambda tl, ta, c: 96 + 4 * (c + 2 * tl) if ta == 0 else 112 + 4 * (c + 2 * tl)
    def b1(tl, ta, c):
        return '%s %s, %s, %s, 0' % (M16, vr(D1(tl, ta, c)), vr(A1(tl, ta), 2), vr(CB1 + 2 * c, 2))
    HT = lambda tl, ta: 24 + 8 * (tl + 2 * ta)
    HP = lambda tl, ta: 8 + 4 * tl if ta == 0 else 56 + 4 * tl
    def tw(tl, ta):
        r, i, h, co, si = D1(tl, ta, 0), D1(tl, ta, 1), HT(tl, ta), CTW + 8 * ta, CTW + 4 + 8 * ta
        o = []
        for x, y, c in ((r, i, co), (i, r, si), (r, i, co)):
            if '%d%d' % (tl, ta) in str(opt.get('pk', '')).split(','):
                o += ['v_pk_fma_f32 %s, %s, %s, %s' % (vr(x + q, 2), vr(c + q, 2), vr(y + q, 2), vr(x + q, 2)) for q in (0, 2)]
            else:
                o += ['v_fmac_f32 v%d, v%d, v%d' % (x + q, c + q, y + q) for q in range(4)]
        n = len(o) // 3
        o = o[:2 * n] + [t + ' ' for t in o[2 * n:]]
        for q in range(4):
            o.append('v_cvt_pk_bf16_f32 v%d, v%d, v%d' % (HP(tl, ta) + q, (r, r, i, i)[q] + 2 * (q & 1), (r, r, i, i)[q] + 2 * (q & 1) + 1))
        return o
    D2 = lambda tl, mu: 64 + 4 * (mu + 2 * tl)
    def b2(tl, mu, ta):
        return '%s %s, %s, %s, %s' % (M32, vr(D2(tl, mu)), vr(HP(tl, ta)), vr(CB2 + 4 * (2 * mu + ta)), vr(D2(tl, mu)) if ta else '0')
    F = lambda tl: 80 + 4 * tl
    M = lambda tl: 96 + 4 * tl
    st = opt.get('k2st', 'sc1')
    def fin(tl):
        o = []
        for mu in range(2):
            for h in range(2):
                o.append('v_cvt_pk_bf16_f32 v%d, v%d, v%d' % (F(tl) + 2 * mu + h, D2(tl, mu) + 2 * h, D2(tl, mu) + 2 * h + 1))
        return o
    def fin2(tl):
        return ['v_permlane16_swap_b32 v%d, v%d' % (F(tl), F(tl) + 2),
                'v_permlane16_swap_b32 v%d, v%d' % (F(tl) + 1, F(tl) + 3),
                'ds_bpermute_b32 v%d, v%d, v%d' % (2 + tl, V['p'], F(tl)),
                'buffer_store_dwordx4 %s, v%d, s[44:47], s%d offen %s' % (vr(F(tl)), V['f'], 48 + tl, st)]
    def mir(tl):
        return ['v_bfi_b32 v%d, s52, v%d, v%d' % (M(tl) + q, F(tl) + 4 - q, F(tl) + 3 - q) for q in (1, 2, 3)]
    def mir2(tl):
        return ['v_bfi_b32 v%d, s52, v%d, v%d' % (M(tl), 2 + tl, F(tl) + 3),
                'buffer_store_dwordx4 %s, v%d, s[44:47], s%d offen %s' % (vr(M(tl)), V['m'], 50 + tl, st)]
    t00, t10, t01, t11 = tw(0, 0), tw(1, 0), tw(0, 1), tw(1, 1)
    T0 = [i for i in range(16) if order[i][0] == 0]; T1 = [i for i in range(16) if order[i][0] == 1]
    seq = R(*range(16)) + [mf(i) for i in T0] + cv(0) + [b1(0, 0, 0), b1(0, 0, 1), b1(1, 0, 0), b1(1, 0, 1)]
    seq += [mf(i) for i in T1] + t00 + t10 + cv(1) + [b1(0, 1, 0), b1(0, 1, 1), b1(1, 1, 0), b1(1, 1, 1)]
    seq += [b2(0, 0, 0), b2(0, 1, 0), b2(1, 0, 0), b2(1, 1, 0)] + t01 + [b2(0, 0, 1), b2(0, 1, 1)] + t11 + [b2(1, 0, 1), b2(1, 1, 1)]
    seq += fin(0) + fin2(0) + mir(0) + mir2(0) + fin(1) + fin2(1) + mir(1) + mir2(1)
    bo = cv(0) + [b1(0, 0, 0), b1(0, 0, 1), b1(1, 0, 0), b1(1, 0, 1)] + [mf(i) for i in T0] if not opt.get('nob') else []
    bo2 = bo
    if opt.get('t0') == 1:
        bo2 = bo + t00 + cv(1)[:2] + [b1(0, 1, 0), b1(0, 1, 1), b2(0, 0, 0), b2(0, 1, 0)] + t01 + [b2(0, 0, 1), b2(0, 1, 1)] + fin(0) + fin2(0) + mir(0) + mir2(0)
    if opt.get('t0') == 2:
        bo2 = bo + t01 + [b2(0, 0, 1), b2(0, 1, 1)] + fin(0) + fin2(0) + mir(0) + mir2(0)
    def cut(l):
        if not opt.get('eq'): return l
        assert l[:8] == R(0, 1, 2, 3), l[:10]
        return l[8:]
    HS = dict(head=8) if opt.get('eq') else {}
    for t in cut(schedule(seq, boost=bo2, verbose=opt.get('v'), **SO, **HS)): a(t)
    k = [n for n, i in enumerate(a.ins) if i.text == 'EQREADS'][0]
    a.ins[k:k + 1] = [type(a.ins[0])(t) for t in (R(0, 1, 2, 3) + ['s_waitcnt lgkmcnt(8)'] if opt.get('eq') else ['s_waitcnt lgkmcnt(0)'])]
    k = [n for n, i in enumerate(a.ins) if i.text == 'EQ54'][0]
    a.ins[k:k + 1] = [type(a.ins[0])(t) for t in (['s_lshl_b32 s21, s4, 9', 's_add_u32 s54, s54, s21'] if opt.get('eq') else ['s_add_u32 s54, s54, s22'])]
    a('s_branch L_FIN' if opt.get('stamp') else 's_endpgm')
    slow()
    for t in OL: a(t)
    a('L_ONE:\ns_cmp_lg_u32 s4, 0\ns_cbranch_scc1 L_FIN')
    seq = R(*range(16)) + [mf(i) for i in T0] + cv(0)[:2] + [b1(0, 0, 0), b1(0, 0, 1)]
    seq += [mf(i) for i in T1] + t00 + cv(1)[:2] + [b1(0, 1, 0), b1(0, 1, 1), b2(0, 0, 0), b2(0, 1, 0)] + t01 + [b2(0, 0, 1), b2(0, 1, 1)]
    seq += fin(0) + fin2(0)[:2] + fin2(0)[3:]
    for t in cut(schedule(seq, boost=bo, verbose=opt.get('v'), **SO, **HS)): a(t)
    a('''
s_lshl_b32 s20, s5, 7
s_add_u32 s20, s20, %d
v_mov_b32 v4, s20
v_mov_b32 v6, s34
v_mov_b32 v7, s35
s_mov_b64 exec, 1
global_store_dwordx2 v4, v[6:7], s[12:13]
s_mov_b64 exec, -1
''' % CELL)
    a('L_FIN:')
    stamp_out(a, opt, 8)
    a('L_END:\ns_endpgm')
    a.ins = [i for i in a.ins if i.text not in ('v_add_u32 v180, 0, v180', 's_add_u32 s22, s22, 0', 'L_NOXW:', 'L_P3:') or (i.label and not opt.get('ol'))]
    for n, i in enumerate(a.ins):
        if i.text == 'KCELL1': i.__init__(';' if opt.get('k1') else 's_load_dwordx2 s[34:35], s[12:13], s38')
        if i.text == 'KCELL2':
            i.__init__('s_waitcnt lgkmcnt(0)' if opt.get('k1') else ';')
            if opt.get('k1'): a.ins.insert(n + 1, type(i)('s_load_dwordx2 s[34:35], s[12:13], s38'))
    sub = {'E1PH': ['s_lshr_b32 s21, s4, 1', 's_lshl_b32 s21, s21, 3', 'v_mad_u32_u24 v35, v32, s21, v35'],
           'E1U': ['v_lshl_add_u32 v39, s67, 6, v39', 's_lshl_b32 s68, s67, 31', 's_or_b32 s68, s68, 0x3d000000'],
           'E1B': [x for q in range(4) for x in ['s_xor_b32 s21, s4, %d' % q, 's_lshl_b32 s21, s21, 12'] +
                   ['v_add_u32 v%d, s21, v%d' % (204 + 4 * q + j, (3, 4, 48, 49)[j]) for j in range(4)]]}
    l = []
    for i in a.ins:
        if i.text in sub: l += [type(i)(t) for t in sub[i.text]] if opt.get('e1') else []
        else: l.append(i)
    a.ins = l
    a.ins = [i for i in a.ins if i.text != ';']
    if opt.get('xe'):
        w = [n for n, i in enumerate(a.ins) if i.text == 's_waitcnt lgkmcnt(0)'][0]
        b = [n for n, i in enumerate(a.ins) if i.text == 'v_lshrrev_b32 v6, 6, v0'][0]
        blk = a.ins[b:b + opt['xe']]
        a.ins[b:b + opt['xe']] = []
        a.ins[w:w] = blk
    for i in a.ins:
        if i.text == 'HLWAIT': i.__init__('s_waitcnt vmcnt(0)' if opt.get('hl') else ';')
    return a.finish(opt.get('v'))

def build(opt):
    tabs = d3.build_tables()
    hdr = open('cdna_kernels/%s.s.ref' % NAME).read().split('; Override launch')[0]
    s = hdr
    if opt.get('diag'):
        s += '; @launch kernel=%s grid=(%d,1,1) block=(256,1,1) lds=%d\n' % (KN, NWG, LDS + (16384 if opt.get('rs') else 0))
        s += '; @launch kernel=k3_kernel grid=(1,1,1) block=(64,1,1) lds=0\n'
    else:
        s += '; @launch grid=(%d,1,1) block=(256,1,1) lds=%d\n' % (NWG, LDS + (16384 if opt.get('rs') else 0))
    s += DOC
    s += '.amdgcn_target "amdgcn-amd-amdhsa--gfx950"\n.text\n'
    s += '.globl %s\n.p2align 8\n.type %s,@function\n' % (KN, KN) + gen(opt)
    if opt.get('diag'):
        s += '.globl k3_kernel\n.p2align 8\n.type k3_kernel,@function\n' + gen_k3(opt, [opt.get('nw', 1024)])
    s += '.p2align 8\n.type K2_TAB,@object\nK2_TAB:\n' + emit_data(k2_table(tabs, opt.get('eq')))
    s += '.section .rodata,"a"\n' + kd(KN, 220 if opt.get('e1') else 204 if opt.get('eq') else 212 if opt.get('sp') else 196, 96 if opt.get('stamp') else 72)
    if opt.get('diag'):
        s += kd('k3_kernel', 8, 32)
    return s

if __name__ == '__main__':
    out = sys.argv[1]
    opt = {}
    for kv in sys.argv[2:]:
        k, _, v = kv.partition('=')
        opt[k] = int(v) if v.lstrip('-').isdigit() else (v.replace('+', ' ') if v else 1)
    s = build(opt)
    open(out, 'w').write(s)
    print(out, len(s), 'bytes')
```
